```python
import torch

def _softmax(x, axis=-1):
    return torch.softmax(x, dim=axis)
def _gelu(x):
    return torch.nn.functional.gelu(x, approximate="tanh")
def _silu(x):
    return torch.nn.functional.silu(x)
def _sigmoid(x):
    return torch.sigmoid(x)
def _layernorm(x, axis=-1, eps=1e-5):
    m = x.mean(dim=axis, keepdim=True)
    v = x.var(dim=axis, keepdim=True, unbiased=False)
    return (x - m) / torch.sqrt(v + eps)
def _scatter_add(tgt, idx, src, axis=0):
    return tgt.clone().index_add_(axis, idx, src)
def _segment_sum(src, seg, n):
    out = torch.zeros((n,) + src.shape[1:], dtype=src.dtype)
    return out.index_add_(0, seg, src)
def _pad(x, pw):
    flat = tuple(v for pair in reversed(pw) for v in pair)
    return torch.nn.functional.pad(x, flat)

kernel_name = 'gated_mix__linear_attn_block__ssm_conv_s4__prompt'

def setup_inputs():

    _w = (lambda a: (lambda t: t.to(torch.bfloat16) if t.is_floating_point() else t)(torch.as_tensor(a)))
    def _A_setup():
        B, S, D = 1, 2048, 576
        return {
            "x": _w((lambda *s: torch.randn(*s, dtype=torch.bfloat16) * 0.05)(B, S, D)),
            "wqkv": _w((lambda *s: torch.randn(*s, dtype=torch.bfloat16) * 0.8)(D, 3 * D)),
            "wo": _w((lambda *s: torch.randn(*s, dtype=torch.bfloat16) * 0.05)(D, D)),
        }
    _A_in = _A_setup()

    def _B_setup():
        B, L, D, N = 1, 2048, 576, 128
        A_re = -(lambda _x: torch.exp(torch.as_tensor(_x)))((lambda *s: torch.randn(*s, dtype=torch.bfloat16) * 3.2)(D, N))
        A_im = torch.pi * (lambda *s: torch.randn(*s, dtype=torch.bfloat16) * 0.05)(D, N)
        B_re = (lambda *s: torch.randn(*s, dtype=torch.bfloat16) * 0.2)(D, N)
        B_im = (lambda *s: torch.randn(*s, dtype=torch.bfloat16) * 0.2)(D, N)
        C_re = (lambda *s: torch.randn(*s, dtype=torch.bfloat16) * 0.2)(D, N)
        C_im = (lambda *s: torch.randn(*s, dtype=torch.bfloat16) * 0.2)(D, N)
        log_dt = (lambda *s: torch.randn(*s, dtype=torch.bfloat16) * 0.05)(D) * 0.5 - 4.0
        Dskip = (lambda *s: torch.randn(*s, dtype=torch.bfloat16) * 0.05)(D)
        return {
            "u": _w((lambda *s: torch.randn(*s, dtype=torch.bfloat16) * 0.05)(B, L, D)),
            "A_re": _w(A_re),
            "A_im": _w(A_im),
            "B_re": _w(B_re),
            "B_im": _w(B_im),
            "C_re": _w(C_re),
            "C_im": _w(C_im),
            "log_dt": _w(log_dt),
            "Dskip": _w(Dskip),
        }
    _B_in = _B_setup()

    return {
        "A_x": _A_in["x"],
        "A_wqkv": _A_in["wqkv"],
        "A_wo": _A_in["wo"],
        "B_u": _B_in["u"],
        "B_A_re": _B_in["A_re"],
        "B_A_im": _B_in["A_im"],
        "B_B_re": _B_in["B_re"],
        "B_B_im": _B_in["B_im"],
        "B_C_re": _B_in["C_re"],
        "B_C_im": _B_in["C_im"],
        "B_log_dt": _B_in["log_dt"],
        "B_Dskip": _B_in["Dskip"],
        "gate_w": _w((lambda *s: torch.randn(*s, dtype=torch.bfloat16) * 0.05)(576) * 16.0),
    }

def reference(A_x, A_wqkv, A_wo, B_u, B_A_re, B_A_im, B_B_re, B_B_im, B_C_re, B_C_im, B_log_dt, B_Dskip, gate_w):
    def _A_ref(x, wqkv, wo):
        B, S, D = x.shape
        H = 32; Dh = D // H
        qkv = (lambda x, *d: x.permute(*d))((x @ wqkv).reshape(B, S, 3, H, Dh), 2, 0, 3, 1, 4)
        q, k, v = qkv[0], qkv[1], qkv[2]
        phi = lambda t: torch.where(t > 0, t + 1, torch.exp(t)) + 1e-6
        pq, pk = phi(q), phi(k)
        kv = torch.einsum("bhsd,bhse->bhde", pk, v)
        z = torch.einsum("bhsd->bhd", pk)
        num = torch.einsum("bhqd,bhde->bhqe", pq, kv)
        den = torch.einsum("bhqd,bhd->bhq", pq, z)[..., None] + 1e-6
        o = num / den
        return (lambda x, *d: x.permute(*d))(o, 0, 2, 1, 3).reshape(B, S, D) @ wo

    def _B_ref(u, A_re, A_im, B_re, B_im, C_re, C_im, log_dt, Dskip):
        Bsz, L, D = u.shape
        dt = torch.exp(log_dt)[:, None]
        A = A_re + 1j * A_im
        Bc = B_re + 1j * B_im
        Cc = C_re + 1j * C_im
        logdA = dt * A
        dB = dt * Bc
        l = (lambda x, dt: x.to(dt))(torch.arange(L), A_re.dtype)
        P = torch.exp(logdA[:, :, None] * l[None, None, :])
        K = torch.einsum("dn,dnl,dn->dl", Cc, P, dB).real
        L2 = 2 * L
        Kp = _pad(K, ((0, 0), (0, L)))
        up = (lambda x, *d: x.permute(*d))(u, 0, 2, 1)
        up = _pad(up, ((0, 0), (0, 0), (0, L)))
        Kf = (lambda x, axes=(-2,-1): torch.fft.rfft2(x.float(), dim=axes))(Kp[:, None, :], axes=(-2, -1))
        Uf = (lambda x, axes=(-2,-1): torch.fft.rfft2(x.float(), dim=axes))(up[:, :, None, :], axes=(-2, -1))
        Yf = Uf * Kf[None, :, :, :]
        y = (lambda x, s, axes=(-2,-1): torch.fft.irfft2(x, s=s, dim=axes).to(torch.bfloat16))(Yf, (1, L2), axes=(-2, -1))[:, :, 0, :L]
        y = (lambda x, *d: x.permute(*d))(y, 0, 2, 1) + u * Dskip[None, None, :]
        return y

    x = A_x
    g = _sigmoid((x * gate_w).sum(-1, keepdims=True))
    a = _A_ref(x, A_wqkv, A_wo)
    b = _B_ref(x, B_A_re, B_A_im, B_B_re, B_B_im, B_C_re, B_C_im, B_log_dt, B_Dskip)
    return g * a + (1 - g) * b
```

```python
import re

REG_RE = re.compile(r'^(-|\|)?(?:abs\()?([vsa])(\d+|\[(\d+):(\d+)\])\)?\|?$')

def parse_reg(tok):
    t = tok.strip()
    if t in ('vcc', 'exec', 'm0', 'scc'):
        return [(t, 0)]
    if t in ('vcc_lo', 'vcc_hi'): return [('vcc', 0)]
    if t in ('exec_lo', 'exec_hi'): return [('exec', 0)]
    m = REG_RE.match(t)
    if not m: return []
    k = m.group(2)
    if m.group(4) is not None:
        return [(k, i) for i in range(int(m.group(4)), int(m.group(5)) + 1)]
    return [(k, int(m.group(3)))]

TRANS = ('v_exp_f32', 'v_log_f32', 'v_rcp_f32', 'v_rsq_f32', 'v_sqrt_f32', 'v_sin_f32', 'v_cos_f32')
RMW = ('v_fmac_f32', 'v_dot2c_f32_bf16', 'v_fma_mixlo_f16', 'v_fma_mixhi_f16', 'v_writelane_b32', 'v_pk_fmac_f16')

class Ins:
    __slots__ = ('text', 'op', 'kind', 'r', 'w', 'srcc', 'ab', 'dpp', 'wide', 'lds_dma')
    def __init__(self, text):
        self.text = text
        body = text.split(';')[0].strip()
        parts = body.split(None, 1)
        op = parts[0]; self.op = op
        rest = parts[1] if len(parts) > 1 else ''
        ops = []; depth = 0; cur = ''
        for ch in rest:
            if ch in '[(': depth += 1
            if ch in '])': depth -= 1
            if ch == ',' and depth == 0:
                ops.append(cur.strip()); cur = ''
            else: cur += ch
        if cur.strip(): ops.append(cur.strip())
        mods = ''
        if ops:
            sp = ops[-1].split(None, 1)
            ops[-1] = sp[0]
            if len(sp) > 1: mods = sp[1]
        regs = [parse_reg(o) for o in ops]
        self.r = []; self.w = []; self.srcc = []; self.ab = []; self.dpp = False; self.wide = False; self.lds_dma = False
        base = op.replace('_e32', '').replace('_e64', '').replace('_dpp', '').replace('_sdwa', '')
        if op.endswith('_dpp') or 'row_shr' in mods or 'row_ror' in mods or 'quad_perm' in mods or 'row_bcast' in mods or 'row_shl' in mods or 'row_mirror' in mods or 'row_half_mirror' in mods:
            self.dpp = True
        flat = lambda L: [x for l in L for x in l]
        if op.startswith('v_mfma'):
            self.kind = 'mfma'; self.w = regs[0]; self.ab = regs[1] + regs[2]; self.srcc = regs[3]; self.r = self.ab + self.srcc
        elif op.startswith('v_cmp'):
            self.kind = 'valu'; self.w = regs[0]; self.r = flat(regs[1:])
            if op.startswith('v_cmpx'): self.w = self.w + [('exec', 0)]
        elif base in ('v_add_co_u32', 'v_sub_co_u32', 'v_addc_co_u32', 'v_subb_co_u32', 'v_mad_u64_u32'):
            self.kind = 'valu'; self.w = regs[0] + regs[1]; self.r = flat(regs[2:])
        elif base.startswith('v_permlane') and 'swap' in base:
            self.kind = 'permlane'; self.w = regs[0] + regs[1]; self.r = regs[0] + regs[1]
        elif base in ('v_readfirstlane_b32', 'v_readlane_b32'):
            self.kind = 'readlane'; self.w = regs[0]; self.r = flat(regs[1:])
        elif op.startswith('v_'):
            self.kind = 'trans' if base in TRANS else 'valu'
            self.w = regs[0]; self.r = flat(regs[1:])
            if base in RMW or self.dpp or '_sdwa' in op: self.r = self.r + regs[0]
            if base == 'v_cndmask_b32' and len(ops) == 3: self.r.append(('vcc', 0))
            if base == 'v_nop': self.kind = 'nop'
        elif op.startswith('ds_'):
            self.kind = 'ds'
            if op.startswith('ds_read') or op.startswith('ds_bpermute') or op.startswith('ds_permute') or op.startswith('ds_swizzle') or '_rtn' in op:
                self.w = regs[0]; self.r = flat(regs[1:])
                if 'd16' in op: self.r = self.r + regs[0]
            else:
                self.r = flat(regs)
        elif op.startswith('buffer_') or op.startswith('global_'):
            self.kind = 'vmem'
            toks = mods.split()
            if op in ('buffer_inv', 'buffer_wbl2'):
                pass
            elif 'lds' in toks or 'load_lds' in op:
                self.lds_dma = True; self.r = flat(regs) + [('m0', 0)]
            elif '_load' in op:
                self.w = regs[0]; self.r = flat(regs[1:])
                if 'd16' in op: self.r = self.r + regs[0]
            elif 'atomic' in op:
                self.r = flat(regs)
                if 'sc0' in toks: self.w = regs[0]
            else:
                self.r = flat(regs)
                if 'x3' in op or 'x4' in op: self.wide = True
        elif op.startswith('s_load') or op.startswith('s_buffer_load') or op in ('s_memtime', 's_memrealtime') or op.startswith('s_atomic'):
            self.kind = 'smem'; self.w = regs[0]; self.r = flat(regs[1:])
        elif op in ('s_waitcnt', 's_nop', 's_barrier', 's_endpgm', 's_branch', 's_setprio', 's_sleep') or op.startswith('s_cbranch'):
            self.kind = 'ctl'
        elif op.startswith('s_cmp') or op.startswith('s_bitcmp'):
            self.kind = 'salu'; self.r = flat(regs)
        elif op.startswith('s_'):
            self.kind = 'salu'; self.w = regs[0]; self.r = flat(regs[1:])
            if 'saveexec' in op: self.w = self.w + [('exec', 0)]
        else:
            raise ValueError('unknown op ' + text)

class Asm:
    def __init__(self):
        self.out = []
        self.pos = 0
        self.last = {}
        self.vmq = []
        self.lgq = []
        self.ninst = 0
    def raw(self, text):
        self.out.append(text)
    def comment(self, t): self.out.append('; ' + t)
    def _nop(self, n):
        while n > 0:
            k = min(n, 16)
            self.out.append(f's_nop {k-1}'); self.pos += k; n -= k; self.ninst += 1
    def _need(self, tag, regs, ws):
        need = 0
        for rg in regs:
            p = self.last.get((tag, rg))
            if p is not None:
                d = self.pos - p - 1
                need = max(need, ws - d)
        return need
    def _waits(self, ins):
        touched = set(ins.r) | set(ins.w)
        vm = None
        for i, d in enumerate(self.vmq):
            if d & touched: vm = len(self.vmq) - 1 - i
        lg = None
        for i, (d, sm) in enumerate(self.lgq):
            if d & touched: lg = len(self.lgq) - 1 - i
        if lg is not None and any(sm for d, sm in self.lgq): lg = 0
        s = []
        if vm is not None:
            vm = min(vm, 63); s.append(f'vmcnt({vm})'); self.vmq = self.vmq[len(self.vmq) - vm:] if vm else []
        if lg is not None:
            lg = min(lg, 15); s.append(f'lgkmcnt({lg})'); self.lgq = self.lgq[len(self.lgq) - lg:] if lg else []
        if s:
            self.out.append('s_waitcnt ' + ' '.join(s)); self.pos += 1; self.ninst += 1
    def wait(self, vm=None, lg=None):
        s = []
        if vm is not None:
            s.append(f'vmcnt({vm})'); self.vmq = self.vmq[len(self.vmq) - vm:] if vm and vm < len(self.vmq) else ([] if not vm else self.vmq)
        if lg is not None:
            s.append(f'lgkmcnt({lg})'); self.lgq = self.lgq[len(self.lgq) - lg:] if lg and lg < len(self.lgq) else ([] if not lg else self.lgq)
        self.out.append('s_waitcnt ' + ' '.join(s)); self.pos += 1; self.ninst += 1
    def flush(self):
        if self.vmq or self.lgq: self.wait(vm=0 if self.vmq else None, lg=0 if self.lgq else None)
        need = 0
        for (tag, rg), p in self.last.items():
            ws = {'mfma_w': 8, 'valu_w': 2, 'valu_ws': 5, 'trans_w': 1, 'mfma_c': 3, 'm0_w': 1, 'st_data': 2, 'exec_vw': 5, 'opsel_w': 1}.get(tag, 0)
            if ws: need = max(need, ws - (self.pos - p - 1))
        if need > 0: self._nop(need)
        self.last = {}
    def nopflush(self):
        need = 0
        for (tag, rg), p in self.last.items():
            ws = {'mfma_w': 8, 'valu_w': 2, 'valu_ws': 5, 'trans_w': 1, 'mfma_c': 3, 'm0_w': 1, 'st_data': 2, 'exec_vw': 5, 'opsel_w': 1}.get(tag, 0)
            if ws: need = max(need, ws - (self.pos - p - 1))
        if need > 0: self._nop(need)
        self.last = {}
    def branch(self, text):
        self.nopflush()
        self.out.append(text); self.pos += 1; self.ninst += 1
        return ([set(x) for x in self.vmq], [(set(d), sm) for d, sm in self.lgq])
    def merge(self, name, snap):
        vm0, lg0 = snap
        vm_new = len(self.vmq) > 0 and not (len(self.vmq) <= len(vm0) and self.vmq == vm0[len(vm0)-len(self.vmq):])
        lg_new = len(self.lgq) > 0 and not (len(self.lgq) <= len(lg0) and self.lgq == lg0[len(lg0)-len(self.lgq):])
        if vm_new or lg_new: self.wait(vm=0 if vm_new else None, lg=0 if lg_new else None)
        self.nopflush()
        self.out.append(name + ':')
        self.vmq = [set(x) for x in vm0]; self.lgq = [(set(d), sm) for d, sm in lg0]
    def restore(self, name, snap):
        self.out.append(name + ':')
        self.last = {}
        vm0, lg0 = snap
        self.vmq = [set(x) for x in vm0]; self.lgq = [(set(d), sm) for d, sm in lg0]
    def label(self, name, flush=True):
        if flush: self.flush()
        self.out.append(name + ':')
    def __call__(self, text):
        for line in text.strip().split('\n'):
            line = line.strip()
            if not line or line.startswith(';'):
                continue
            self.emit(line)
    def emit(self, text):
        ins = Ins(text)
        k = ins.kind
        if ins.op == 's_nop':
            n = int(text.split()[1]) + 1
            self.out.append(text); self.pos += n; self.ninst += 1; return
        if ins.op in ('s_branch',) or ins.op.startswith('s_cbranch'):
            self.flush()
        self._waits(ins)
        need = 0
        vr = [x for x in ins.r if x[0] == 'v']; vw = [x for x in ins.w if x[0] == 'v']
        sr = [x for x in ins.r if x[0] in ('s', 'vcc')]
        isvalu = k in ('valu', 'trans', 'permlane', 'readlane')
        if k == 'mfma':
            need = max(need, self._need('valu_w', vr, 2))
            need = max(need, self._need('mfma_w', ins.ab, 8))
            for rg in ins.srcc:
                p = self.last.get(('mfma_w', rg))
                if p is not None and self.last.get(('mfma_wt', rg)) != tuple(ins.srcc):
                    need = max(need, 6 - (self.pos - p - 1))
            if tuple(ins.w) != tuple(ins.srcc):
                need = max(need, self._need('mfma_w', ins.w, 8))
            need = max(need, self._need('exec_vw', [('exec', 0)], 4))
        if isvalu:
            need = max(need, self._need('mfma_w', vr + vw, 8))
            need = max(need, self._need('mfma_c', vw, 3))
            need = max(need, self._need('valu_ws', sr, 2))
            need = max(need, self._need('st_data', vw, 2))
            if k != 'trans': need = max(need, self._need('trans_w', vr, 1))
            if k == 'permlane' or ins.dpp: need = max(need, self._need('valu_w', vr, 2))
            if k == 'readlane':
                need = max(need, self._need('valu_w', vr, 1))
                need = max(need, self._need('valu_ws', sr, 4))
            need = max(need, self._need('opsel_w', vr + vw, 1))
        if k in ('ds', 'vmem'):
            need = max(need, self._need('mfma_w', vr + vw, 8))
            need = max(need, self._need('trans_w', vr, 1))
            need = max(need, self._need('st_data', vw, 1))
        if k == 'ds' and 'addtid' in ins.op:
            need = max(need, self._need('m0_w', [('m0', 0)], 1))
        if k == 'vmem':
            need = max(need, self._need('valu_ws', sr, 5))
            if ins.lds_dma: need = max(need, self._need('m0_w', [('m0', 0)], 1))
        if k in ('salu', 'smem'):
            need = max(need, self._need('valu_ws', sr, 1))
        if need > 0: self._nop(need)
        p = self.pos
        self.out.append(text); self.pos += 1; self.ninst += 1
        if k == 'mfma':
            for rg in ins.w:
                self.last[('mfma_w', rg)] = p; self.last[('mfma_wt', rg)] = tuple(ins.w)
            for rg in ins.srcc: self.last[('mfma_c', rg)] = p
        if isvalu:
            for rg in vw:
                self.last[('valu_w', rg)] = p
                self.last.pop(('mfma_w', rg), None)
                if k == 'trans': self.last[('trans_w', rg)] = p
                if 'mix' in ins.op or '_sdwa' in ins.op: self.last[('opsel_w', rg)] = p
            for rg in ins.w:
                if rg[0] in ('s', 'vcc'): self.last[('valu_ws', rg)] = p
                if rg[0] == 'exec': self.last[('exec_vw', rg)] = p
        if k == 'salu':
            for rg in ins.w:
                if rg[0] == 'm0': self.last[('m0_w', rg)] = p
                self.last.pop(('valu_ws', rg), None)
        if k == 'vmem':
            self.vmq.append(set(ins.w))
            if ins.wide:
                for rg in vr: self.last[('st_data', rg)] = p
        if k == 'ds': self.lgq.append((set(ins.w), False))
        if k == 'smem': self.lgq.append((set(ins.w), True))
    def text(self):
        return '\n'.join(self.out)

class VAlloc:
    def __init__(self, start, limit):
        self.free = [True] * limit
        for i in range(start): self.free[i] = False
        self.limit = limit; self.high = start
    def get(self, n=1, align=None):
        if align is None: align = 2 if n > 1 else 1
        i = 0
        while i + n <= self.limit:
            if i % align == 0 and all(self.free[i:i + n]):
                for j in range(i, i + n): self.free[j] = False
                self.high = max(self.high, i + n)
                return i
            i += 1
        raise RuntimeError('out of registers')
    def put(self, i, n=1):
        for j in range(i, i + n):
            assert not self.free[j]; self.free[j] = True

def v(i, n=1): return f'v{i}' if n == 1 else f'v[{i}:{i+n-1}]'
def s(i, n=1): return f's{i}' if n == 1 else f's[{i}:{i+n-1}]'

import os
STAMPS = bool(os.environ.get("STAMPS"))
def stamp(a, idx):
    if STAMPS:
        a.raw(f"{'s_memtime' if os.environ.get('STAMPS') == 'cyc' else 's_memrealtime'} s[{72+2*idx}:{73+2*idx}]")
def stamp_dump(a, n, srd, wave_sgpr, vt0, vt1, nw=12):
    if not STAMPS: return
    a.raw("s_waitcnt lgkmcnt(0)")
    a.raw("s_mov_b64 exec, 1")
    a.raw(f"s_mul_i32 s70, s2, {nw}")
    a.raw(f"s_add_u32 s70, s70, s{wave_sgpr}")
    a.raw("s_lshl_b32 s70, s70, 6")
    a.raw("s_add_u32 s70, s70, 0x600000")
    a.raw(f"s_mov_b32 s{srd+2}, 0x1000000")
    a.raw(f"v_mov_b32 v{vt1}, 0")
    for i in range(n):
        a.raw(f"v_mov_b32 v{vt0}, s{72+2*i}")
        a.raw(f"buffer_store_dword v{vt0}, v{vt1}, s[{srd}:{srd+3}], s70 offen offset:{4*i}")
        a.raw("s_nop 1")
```

```python
import sys
from asmlib import *
from layout import *
HDR = open("gated_mix__linear_attn_block__ssm_conv_s4__prompt.s.ref").read().split("; Override launch")[0]
DOC = '''; Design (generated by hand-written python generators; two launches):
'''
def kdesc(name, vgpr, sgpr=102):
    acc = min(256, (vgpr + 3)//4*4)
    return f""".p2align 6
.amdhsa_kernel {name}
  .amdhsa_next_free_vgpr {vgpr}
  .amdhsa_next_free_sgpr {sgpr}
  .amdhsa_accum_offset {acc}
  .amdhsa_group_segment_fixed_size 0
  .amdhsa_kernarg_size 128
  .amdhsa_user_sgpr_count 2
  .amdhsa_user_sgpr_kernarg_segment_ptr 1
  .amdhsa_system_sgpr_workgroup_id_x 1
.end_amdhsa_kernel
"""
def build(kernels, path):
    o = HDR + DOC
    for (n, t, vg, grid, block, lds) in kernels:
        o += f"; @launch kernel={n} grid=({grid},1,1) block=({block},1,1) lds={lds}\n"
    o += '.amdgcn_target "amdgcn-amd-amdhsa--gfx950"\n.text\n'
    for (n, t, vg, grid, block, lds) in kernels:
        o += f".globl {n}\n.p2align 8\n.type {n},@function\n{n}:\n{t}\ns_endpgm\n"
    o += '.section .rodata,"a"\n'
    for (n, t, vg, grid, block, lds) in kernels:
        o += kdesc(n, vg)
    open(path, "w").write(o)
if __name__ == "__main__":
    import k2
    a, hi = k2.gen_k2()
    print("k2 vgpr", hi, "ninst", a.ninst)
    build([("k2_kernel", a.text(), hi, 256, 576, k2.K2_LDS)], "t_k2.s")
```

```python
from asmlib import *
from layout import *
import k1_conv

def gen_k1(roles=("conv","gemm","aux")):
    a = Asm()
    a("""
    s_cmp_ge_u32 s2, 256
    s_cbranch_scc1 K1_end
    v_lshrrev_b32 v1, 6, v0
    s_and_b32 s16, s2, 7
    s_lshr_b32 s17, s2, 3
    v_readfirstlane_b32 s20, v1
    s_cmp_ge_u32 s17, 12
    s_cbranch_scc1 K1_notconv
    """)
    hi = 0
    if "conv" in roles:
        a("""
        s_mul_i32 s21, s16, 12
        s_add_u32 s21, s21, s17
        """)
        R = VAlloc(1, 168)
        k1_conv.gen_conv(a, R); hi = max(hi, R.high)
    else:
        a.raw("s_endpgm")
    a.restore("K1_notconv", ([], []))
    a("""
    s_cmp_ge_u32 s17, 30
    s_cbranch_scc1 K1_aux
    """)
    if "gemm" in roles:
        import k1_gemm
        R = VAlloc(1, 168)
        k1_gemm.gen_gemm(a, R); hi = max(hi, R.high)
    else:
        a.raw("s_endpgm")
    a.restore("K1_aux", ([], []))
    if "aux" in roles:
        import k1_aux
        R = VAlloc(1, 168)
        k1_aux.gen_aux(a, R); hi = max(hi, R.high)
    if MERGE:
        import ph2
        hi = max(hi, ph2.gen_ph2(a))
    a.label("K1_end", flush=False)
    return a, hi
```

```python
from asmlib import *
from layout import *
from k1_conv import LOG2E

def gen_aux(a, R):
    lane = R.get(); t0 = R.get(); t1 = R.get(); t2 = R.get(); t3 = R.get()
    a(f"""
    s_load_dwordx2 s[4:5], s[0:1], 0
    s_load_dwordx2 s[6:7], s[0:1], 120
    s_load_dwordx2 s[36:37], s[0:1], 16
    s_load_dwordx2 s[38:39], s[0:1], 96
    v_and_b32 v{lane}, 63, v0
    s_lshl_b32 s21, s16, 1
    s_add_u32 s21, s21, s17
    s_sub_u32 s21, s21, 30
    s_mov_b32 s12, s6
    s_mov_b32 s13, s7
    s_mov_b32 s14, {WS_SIZE}
    s_mov_b32 s15, 0x20000
    s_mov_b32 s8, s4
    s_mov_b32 s9, s5
    s_mov_b32 s10, 2359296
    s_mov_b32 s11, 0x20000
    s_mov_b32 s40, s36
    s_mov_b32 s41, s37
    s_mov_b32 s42, 663552
    s_mov_b32 s43, 0x20000
    s_mov_b32 s44, s38
    s_mov_b32 s45, s39
    s_mov_b32 s46, 1152
    s_mov_b32 s47, 0x20000
    """)
    X = R.get(48, 4); G = R.get(48, 4)
    a(f"""
    v_mul_u32_u24 v{t0}, 192, v0
    s_mul_i32 s22, s21, 147456
    s_mov_b32 s23, 10923
    v_mul_lo_u32 v{t1}, v0, s23
    v_lshrrev_b32 v{t1}, 16, v{t1}
    v_mul_u32_u24 v{t1}, 6, v{t1}
    v_sub_u32 v{t1}, v0, v{t1}
    v_mul_u32_u24 v{t1}, 192, v{t1}
    """)
    for i in range(12):
        a(f"buffer_load_dwordx4 v[{X+4*i}:{X+4*i+3}], v{t0}, s[8:11], s22 offen offset:{16*i}")
    for i in range(12):
        a(f"buffer_load_dwordx4 v[{G+4*i}:{G+4*i+3}], v{t1}, s[44:47], 0 offen offset:{16*i}")
    n = R.get(); kq = R.get(); vM = R.get(); vL = R.get(); vA = R.get(); l16 = R.get()
    a(f"""
    v_and_b32 v{n}, 15, v{lane}
    v_lshrrev_b32 v{kq}, 4, v{lane}
    v_mul_u32_u24 v{vM}, 4608, v{kq}
    v_lshl_add_u32 v{vM}, v{n}, 1, v{vM}
    v_lshrrev_b32 v{t2}, 1, v{kq}
    v_mul_u32_u24 v{t2}, {18*1152}, v{t2}
    v_and_b32 v{t3}, 1, v{kq}
    v_mul_u32_u24 v{t3}, 1152, v{t3}
    v_add_u32 v{vL}, v{t2}, v{t3}
    v_lshl_add_u32 v{vL}, v{n}, 1, v{vL}
    v_lshlrev_b32 v{l16}, 4, v{lane}
    s_mul_i32 s24, s21, 12
    s_add_u32 s24, s24, s20
    """)
    H = [R.get(8) for _ in range(4)]
    O = [R.get(4, 4) for _ in range(2)]
    for it in range(4):
        a(f"""
        s_add_u32 s25, s24, {192*it}
        s_min_u32 s26, s25, 647
        s_mul_hi_u32 s27, s26, 238609295
        s_mul_i32 s28, s27, 18
        s_sub_u32 s28, s26, s28
        s_lshl_b32 s29, s27, 5
        s_mul_i32 s30, s28, {36*1152}
        s_sub_u32 s31, s28, 16
        s_mul_i32 s31, s31, {288*1152}
        s_add_u32 s31, s31, {16*1152}
        s_cmp_ge_u32 s28, 16
        s_cselect_b32 s30, s31, s30
        s_cselect_b64 vcc, -1, 0
        s_add_u32 s30, s30, s29
        v_cndmask_b32 v{vA}, v{vM}, v{vL}, vcc
        """)
        a(f"""
        s_mov_b32 s32, 1152
        s_cmp_ge_u32 s28, 16
        s_cselect_b32 s32, {36*1152}, s32
        s_mov_b32 s33, {15*1152}
        s_cselect_b32 s33, {36*1152}, s33
        """)
        for i in range(8):
            a(f"buffer_load_ushort v{H[it]+i}, v{vA}, s[40:43], s30 offen")
            if i < 7: a(f"s_add_u32 s30, s30, {'s33' if i == 3 else 's32'}")
    acc = R.get(2)
    a(f"v_mov_b32 v{acc}, 0"); a(f"v_mov_b32 v{acc+1}, 0")
    for i in range(48):
        a(f"v_dot2c_f32_bf16 v{acc+(i&1)}, v{X+i}, v{G+i}")
    a("s_nop 3")
    a(f"""
    v_add_f32 v{acc}, v{acc}, v{acc+1}
    v_lshlrev_b32 v{t0}, 2, v0
    ds_write_b32 v{t0}, v{acc}
    """)
    for it in range(4):
        o = O[it & 1]
        for j in range(4):
            a(f"v_lshl_or_b32 v{o+j}, v{H[it]+2*j+1}, 16, v{H[it]+2*j}")
        a(f"""
        s_add_u32 s25, s24, {192*it}
        s_lshl_b32 s26, s25, 10
        s_add_u32 s26, s26, {WS_WOF}
        s_cmp_ge_u32 s25, 648
        s_cselect_b32 s26, 0x7f000000, s26
        buffer_store_dwordx4 v[{o}:{o+3}], v{l16}, s[12:15], s26 offen
        """)
    a.wait(lg=0)
    a("s_barrier")
    a("s_cmp_ge_u32 s20, 2")
    a("s_cbranch_scc1 AUX_end")
    P = R.get(6, 2)
    a(f"""
    v_mul_u32_u24 v{t0}, 24, v0
    ds_read_b64 v[{P}:{P+1}], v{t0}
    ds_read_b64 v[{P+2}:{P+3}], v{t0} offset:8
    ds_read_b64 v[{P+4}:{P+5}], v{t0} offset:16
    v_add_f32 v{P}, v{P}, v{P+1}
    v_add_f32 v{P+2}, v{P+2}, v{P+3}
    v_add_f32 v{P+4}, v{P+4}, v{P+5}
    v_add_f32 v{P}, v{P}, v{P+2}
    v_add_f32 v{P}, v{P}, v{P+4}
    v_cvt_pk_bf16_f32 v{P}, v{P}, v{P}
    v_lshlrev_b32 v{P}, 16, v{P}
    v_mul_f32 v{P}, {LOG2E}, v{P}
    v_exp_f32 v{P}, -v{P}
    v_add_f32 v{P}, 1.0, v{P}
    v_rcp_f32 v{P}, v{P}
    v_cvt_pk_bf16_f32 v{P}, v{P}, v{P}
    v_lshlrev_b32 v{P}, 16, v{P}
    v_lshlrev_b32 v{t0}, 2, v0
    s_lshl_b32 s22, s21, 9
    s_add_u32 s22, s22, {WS_G}
    buffer_store_dword v{P}, v{t0}, s[12:15], s22 offen
    """)
    a.label("AUX_end", flush=False)
    a.raw("s_endpgm")
```

```python
from asmlib import *
from layout import *
import struct
def fbits(x): return struct.unpack('<I', struct.pack('<f', x))[0]
LOG2E = fbits(1.4426950408889634)
import numpy as np
_c = 1.0/(2*np.pi); C_HI = np.float32(_c); C_LO = np.float32(_c - float(C_HI))
INV2PI_HI = fbits(float(C_HI)); INV2PI_LO = fbits(float(C_LO))

NCH = 6
U_STRIDE = 4608
C_U = 0
C_BOX = 27648
C_MAX = C_BOX + 2048
C_SCR = C_MAX + 64
BUF = 4352
C_LDS = C_SCR + 12 * 2 * BUF
L0 = 639; KR_COPY = 1344
GH_COPY = 928

def cmul(a, d, x, y, t):
    a(f"v_pk_mul_f32 v[{t}:{t+1}], v[{x}:{x+1}], v[{y}:{y+1}] op_sel:[0,0] op_sel_hi:[0,1]")
    a(f"v_pk_fma_f32 v[{d}:{d+1}], v[{x}:{x+1}], v[{y}:{y+1}], v[{t}:{t+1}] op_sel:[1,1,0] op_sel_hi:[1,0,1] neg_lo:[1,0,0]")

def gen_conv(a, R):
    lane = R.get(); t0 = R.get(); t1 = R.get(); t2 = R.get(); t3 = R.get()
    col = R.get(); rq = R.get()
    stamp(a, 0)
    a(f"""
    s_load_dwordx16 s[36:51], s[0:1], 32
    s_load_dwordx2 s[4:5], s[0:1], 0
    s_load_dwordx2 s[6:7], s[0:1], 120
    v_and_b32 v{lane}, 63, v0
    v_and_b32 v{col}, 15, v0
    v_lshrrev_b32 v{rq}, 4, v{lane}
    s_lshr_b32 s22, s20, 1
    s_and_b32 s23, s20, 1
    s_mul_i32 s24, s21, 6
    s_add_u32 s24, s24, s22
    """)
    par = R.get(10)
    a(f"""
    s_lshl_b32 s25, s24, 8
    s_lshl_b32 s26, s23, 7
    s_add_u32 s27, s25, s26
    s_xor_b32 s26, s26, 128
    s_add_u32 s28, s25, s26
    v_lshlrev_b32 v{t0}, 1, v{lane}
    v_add_u32 v{t1}, s28, v{t0}
    v_add_u32 v{t0}, s27, v{t0}
    """)
    for i in range(6):
        a(f"global_load_ushort v{par+i}, v{t0}, s[{36+2*i}:{37+2*i}]")
    for i in range(4):
        a(f"global_load_ushort v{par+6+i}, v{t1}, s[{40+2*i}:{41+2*i}]")
    a(f"""
    s_lshr_b32 s25, s24, 1
    s_lshl_b32 s25, s25, 2
    s_load_dword s29, s[48:49], s25
    s_load_dword s30, s[50:51], s25
    """)
    xr = R.get(12, 4)
    xrow = [R.get(4, 4) for _ in range(4)]
    R.put(xr, 12)
    a(f"""
    s_mov_b32 s8, s4
    s_mov_b32 s9, s5
    s_mov_b32 s10, 2359296
    s_mov_b32 s11, 0x20000
    s_mov_b32 s12, s6
    s_mov_b32 s13, s7
    s_mov_b32 s14, {WS_SIZE}
    s_mov_b32 s15, 0x20000
    s_mul_i32 s31, s21, 12
    v_mul_u32_u24 v{t2}, 4608, v0
    """)
    a("s_cmp_ge_u32 s20, 8")
    snap = a.branch("s_cbranch_scc1 CV_nox")
    for i in range(4):
        a.raw(f"buffer_load_dwordx3 v[{xrow[i]}:{xrow[i]+2}], v{t2}, s[8:11], s31 offen offset:{i*1152}")
    a.merge("CV_nox", snap)
    a(f"""
    v_lshrrev_b32 v{t0}, 6, v0
    v_lshrrev_b32 v{t1}, 1, v{t0}
    v_add_u32 v{t1}, 1, v{t1}
    v_and_b32 v{t0}, 1, v{t0}
    v_lshlrev_b32 v{t2}, 1, v{lane}
    v_sub_u32 v{t2}, v{t2}, v{t0}
    v_subrev_u32 v{t2}, 64, v{t2}
    v_add_u32 v{t3}, v{t2}, v{t1}
    v_lshlrev_b32 v{t1}, 1, v{t1}
    v_cmp_ge_u32 vcc, v{t1}, v{t3}
    v_mov_b32 v{t0}, 0x3c00
    v_cndmask_b32 v{t2}, 0, v{t0}, vcc
    v_add_u32 v{t3}, 1, v{t3}
    v_cmp_ge_u32 vcc, v{t1}, v{t3}
    v_mov_b32 v{t0}, 0x3c000000
    v_cndmask_b32 v{t3}, 0, v{t0}, vcc
    v_or_b32 v{t2}, v{t2}, v{t3}
    v_lshlrev_b32 v{t0}, 2, v0
    v_cmp_gt_u32 vcc, 512, v0
    s_and_saveexec_b64 s[32:33], vcc
    ds_write_b32 v{t0}, v{t2} offset:{C_BOX}
    s_mov_b64 exec, s[32:33]
    """)
    a(f"""
    v_lshrrev_b32 v{t0}, 7, v0
    v_mul_u32_u24 v{t0}, {U_STRIDE}, v{t0}
    v_and_b32 v{t1}, 127, v0
    v_lshl_add_u32 v{t0}, v{t1}, 2, v{t0}
    v_mov_b32 v{t1}, 0
    ds_write_b32 v{t0}, v{t1} offset:{C_U}
    v_and_b32 v{t0}, 7, v0
    v_lshlrev_b32 v{t0}, 2, v{t0}
    ds_write_b32 v{t0}, v{t1} offset:{C_MAX}
    """)
    a.wait(lg=0)
    a("s_barrier")
    dt = R.get()
    a(f"""
    s_and_b32 s25, s24, 1
    s_lshl_b32 s25, s25, 4
    s_lshr_b32 s29, s29, s25
    s_lshl_b32 s29, s29, 16
    s_lshr_b32 s30, s30, s25
    s_lshl_b32 s30, s30, 16
    v_mov_b32 v{dt}, s29
    v_mul_f32 v{dt}, {LOG2E}, v{dt}
    v_exp_f32 v{dt}, v{dt}
    v_cvt_pk_bf16_f32 v{dt}, v{dt}, v{dt}
    v_lshlrev_b32 v{dt}, 16, v{dt}
    """)
    a.raw("s_cmp_ge_u32 s20, 8")
    a.raw("s_cbranch_scc1 CV_w0")
    a.raw("s_waitcnt vmcnt(4)")
    a.raw("s_branch CV_w1")
    a.raw("CV_w0:")
    a.raw("s_waitcnt vmcnt(0)")
    a.raw("CV_w1:")
    a.vmq = []
    stamp(a, 1)
    for i in range(10): a(f"v_lshlrev_b32 v{par+i}, 16, v{par+i}")
    are = R.get(); aim = R.get()
    W = R.get(2); W2 = R.get(2); Bc = R.get(2); Cc = R.get(2); tp = R.get(2)
    a(f"""
    v_mul_f32 v{are}, v{dt}, v{par}
    v_mul_f32 v{aim}, v{dt}, v{par+1}
    v_mul_f32 v{are}, {LOG2E}, v{are}
    v_mul_f32 v{Bc}, v{dt}, v{par+2}
    v_mul_f32 v{Bc+1}, v{dt}, v{par+3}
    v_mov_b32 v{Cc}, v{par+4}
    v_mov_b32 v{Cc+1}, v{par+5}
    """)
    cmul(a, W, Cc, Bc, tp)
    a(f"""
    v_mul_f32 v{Bc}, v{dt}, v{par+6}
    v_mul_f32 v{Bc+1}, v{dt}, v{par+7}
    v_mov_b32 v{Cc}, v{par+8}
    v_mov_b32 v{Cc+1}, v{par+9}
    """)
    cmul(a, W2, Cc, Bc, tp)
    a(f"""
    v_max_f32 v{t0}, |v{W}|, |v{W+1}|
    v_max3_f32 v{t0}, |v{W2}|, |v{W2+1}|, v{t0}
    v_max_u32_dpp v{t0}, v{t0}, v{t0} row_ror:1 row_mask:0xf bank_mask:0xf
    v_max_u32_dpp v{t0}, v{t0}, v{t0} row_ror:2 row_mask:0xf bank_mask:0xf
    v_max_u32_dpp v{t0}, v{t0}, v{t0} row_ror:4 row_mask:0xf bank_mask:0xf
    v_max_u32_dpp v{t0}, v{t0}, v{t0} row_ror:8 row_mask:0xf bank_mask:0xf
    v_readlane_b32 s52, v{t0}, 0
    v_readlane_b32 s53, v{t0}, 16
    v_readlane_b32 s54, v{t0}, 32
    v_readlane_b32 s55, v{t0}, 48
    s_max_u32 s52, s52, s53
    s_max_u32 s54, s54, s55
    s_max_u32 s52, s52, s54
    s_lshr_b32 s52, s52, 23
    s_max_u32 s52, s52, 8
    s_min_u32 s52, s52, 254
    s_sub_u32 s53, 260, s52
    s_lshl_b32 s53, s53, 23
    s_sub_u32 s54, s52, 6
    s_lshl_b32 s54, s54, 23
    """)
    R.put(par, 10); R.put(W2, 2); R.put(Bc, 2); R.put(Cc, 2)
    a(f"""
    v_mul_f32 v{W}, s53, v{W}
    v_mul_f32 v{W+1}, s53, v{W+1}
    """)
    E = {}
    for p in (1, 16, 256):
        e = R.get(2); E[p] = e
        pf = fbits(float(p))
        a(f"""
        v_mul_f32 v{t0}, {pf}, v{are}
        v_mul_f32 v{t1}, {pf}, v{aim}
        v_exp_f32 v{t0}, v{t0}
        v_mul_f32 v{t2}, {INV2PI_HI}, v{t1}
        s_mov_b32 s55, {INV2PI_HI}
        v_fma_f32 v{t3}, v{t1}, s55, -v{t2}
        s_mov_b32 s55, {INV2PI_LO}
        v_fma_f32 v{t3}, v{t1}, s55, v{t3}
        v_fract_f32 v{t2}, v{t2}
        v_add_f32 v{t2}, v{t2}, v{t3}
        v_cos_f32 v{e}, v{t2}
        v_sin_f32 v{e+1}, v{t2}
        v_mul_f32 v{e}, v{e}, v{t0}
        v_mul_f32 v{e+1}, v{e+1}, v{t0}
        """)
    R.put(are); R.put(aim); R.put(dt)
    wr = R.get(); rd = R.get()
    a(f"""
    s_mul_i32 s56, s20, {2*BUF}
    s_add_u32 s56, s56, {C_SCR}
    v_lshlrev_b32 v{wr}, 2, v{lane}
    v_add_u32 v{wr}, s56, v{wr}
    v_mul_u32_u24 v{rd}, 272, v{col}
    v_lshl_add_u32 v{rd}, v{rq}, 4, v{rd}
    v_add_u32 v{rd}, s56, v{rd}
    """)
    pk = [R.get() for _ in range(4)]; pki = [0]
    def put_row(buf, row, x, neg):
        p = pk[pki[0] % 4]; pki[0] += 1
        a(f"v_cvt_pk_f16_f32 v{p}, v{x}, {'-' if neg else ''}v{x+1}")
        a(f"ds_write_b32 v{wr}, v{p} offset:{buf*BUF + row*272}")
    def get_frags(buf, dst):
        for ks in range(4):
            a(f"ds_read_b128 v[{dst+4*ks}:{dst+4*ks+3}], v{rd} offset:{buf*BUF + ks*64}")
    Z = [R.get(2), R.get(2)]
    Yk = {h: R.get(2) for h in (0, 2, 4, 6, 8, 10, 12, 14, 16)}
    Yo = R.get(2)
    P = {1: E[256]}
    for i in range(2, 8): P[i] = R.get(2)
    tq = R.get(2)
    a(f"v_mov_b32 v{pk[3]}, 0x3c00")
    a(f"ds_write_b32 v{wr}, v{pk[3]} offset:0")
    put_row(0, 1, E[16], False)
    a(f"v_mov_b32 v{Yk[0]}, v{W}"); a(f"v_mov_b32 v{Yk[0]+1}, v{W+1}")
    R.put(W, 2)
    put_row(1, 0, Yk[0], True)
    zprev = E[16]; yprev = Yk[0]
    for h in range(1, 17):
        yd = Yk[h] if h % 2 == 0 else Yo
        cmul(a, yd, yprev, E[1], tp)
        if h + 1 <= 15:
            zd = Z[h % 2]
            cmul(a, zd, zprev, E[16], tq)
        if 1 <= h <= 6:
            cmul(a, P[h+1], P[h], E[256], P[h+1])
        if h <= 15: put_row(1, h, yd, True)
        if h + 1 <= 15:
            put_row(0, h + 1, zd, False); zprev = zd
        yprev = yd
    R.put(Z[0], 2); R.put(Z[1], 2); R.put(E[1], 2); R.put(E[16], 2)
    ZF = R.get(16, 4); AF = R.get(16, 4)
    D = R.get(12, 4)
    get_frags(0, ZF)
    get_frags(1, AF)
    X = [Yo, R.get(2), R.get(2)]
    xi = [0]
    def prod_row(buf, row, y, p):
        x = X[xi[0] % 3]; xi[0] += 1
        cmul(a, x, y, p, x)
        put_row(buf, row, x, True)
    for h in range(8): prod_row(0, h, Yk[2*h], P[1])
    prod_row(0, 8, Yk[0], P[2]); prod_row(0, 9, Yk[0], P[4])
    for ks in range(4):
        a(f"v_mfma_f32_16x16x32_f16 v[{D}:{D+3}], v[{AF+4*ks}:{AF+4*ks+3}], v[{ZF+4*ks}:{ZF+4*ks+3}], {f'v[{D}:{D+3}]' if ks else 0}")
    get_frags(0, AF)
    for i in range(2):
        for mu in range(1, 5): prod_row(1, 4*i + mu - 1, Yk[4*mu], P[2+i])
    for ks in range(4):
        a(f"v_mfma_f32_16x16x32_f16 v[{D+4}:{D+7}], v[{AF+4*ks}:{AF+4*ks+3}], v[{ZF+4*ks}:{ZF+4*ks+3}], {f'v[{D+4}:{D+7}]' if ks else 0}")
    for i in range(4):
        for mu in (1, 2): prod_row(1, 8 + 2*i + mu - 1, Yk[8*mu], P[4+i])
    get_frags(1, AF)
    for ks in range(4):
        a(f"v_mfma_f32_16x16x32_f16 v[{D+8}:{D+11}], v[{ZF+4*ks}:{ZF+4*ks+3}], v[{AF+4*ks}:{AF+4*ks+3}], {f'v[{D+8}:{D+11}]' if ks else 0}")
    for x in X: R.put(x, 2)
    for h in Yk.values(): R.put(h, 2)
    for i in P.values(): R.put(i, 2)
    R.put(tq, 2); R.put(ZF, 16)
    l16 = R.get()
    a(f"""
    v_lshlrev_b32 v{l16}, 4, v{lane}
    v_add_u32 v{t0}, s56, v{l16}
    v_mov_b32 v{AF}, 0
    v_mov_b32 v{AF+1}, 0
    v_mov_b32 v{AF+2}, 0
    v_mov_b32 v{AF+3}, 0
    """)
    for i in range(4):
        a(f"ds_write_b128 v{t0}, v[{AF}:{AF+3}] offset:{BUF + i*1024}")
    a(f"ds_write_b32 v{wr}, v{AF} offset:{BUF + 4096}")
    R.put(AF, 16)
    for T in range(3):
        a(f"ds_write_b128 v{t0}, v[{D+4*T}:{D+4*T+3}] offset:{T*1024}")
    stamp(a, 2)
    a("s_cmp_ge_u32 s20, 8")
    snap = a.branch("s_cbranch_scc1 CV_nomax")
    a.raw("s_waitcnt vmcnt(0)")
    stamp(a, 3)
    mx = R.get(3); m2 = R.get()
    a("s_mov_b32 s57, 0x7fff7fff")
    for p in range(3):
        a(f"v_and_b32 v{mx+p}, s57, v{xrow[0]+p}")
        for i in range(1, 4):
            a(f"v_and_b32 v{m2}, s57, v{xrow[i]+p}")
            a(f"v_pk_max_u16 v{mx+p}, v{mx+p}, v{m2}")
    for sh in (1, 2, 4, 8):
        for p in range(3):
            a(f"v_mov_b32_dpp v{[t1,t2,t3][p]}, v{mx+p} row_ror:{sh} row_mask:0xf bank_mask:0xf")
        for p in range(3):
            a(f"v_pk_max_u16 v{mx+p}, v{mx+p}, v{[t1,t2,t3][p]}")
    a(f"""
    v_cmp_gt_u32 vcc, 2, v{col}
    v_cndmask_b32 v{m2}, v{mx+1}, v{mx}, vcc
    v_cmp_gt_u32 vcc, 4, v{col}
    v_cndmask_b32 v{m2}, v{mx+2}, v{m2}, vcc
    v_and_b32 v{t1}, 1, v{col}
    v_lshlrev_b32 v{t1}, 4, v{t1}
    v_lshrrev_b32 v{m2}, v{t1}, v{m2}
    v_and_b32 v{m2}, 0xffff, v{m2}
    v_lshlrev_b32 v{t1}, 2, v{col}
    v_cmp_gt_u32 vcc, 6, v{col}
    s_and_saveexec_b64 s[32:33], vcc
    ds_max_u32 v{t1}, v{m2} offset:{C_MAX}
    s_mov_b64 exec, s[32:33]
    """)
    R.put(mx, 3); R.put(m2)
    a.merge("CV_nomax", snap)
    a.wait(lg=0)
    a("s_barrier")
    stamp(a, 4)
    mxs = R.get(8, 4)
    PD = R.get(8, 4)
    a(f"""
    v_mov_b32 v{t1}, 0
    ds_read_b128 v[{mxs}:{mxs+3}], v{t1} offset:{C_MAX}
    ds_read_b64 v[{mxs+4}:{mxs+5}], v{t1} offset:{C_MAX+16}
    s_xor_b32 s57, s20, 1
    s_mul_i32 s57, s57, {2*BUF}
    s_add_u32 s57, s57, {C_SCR}
    v_add_u32 v{t2}, s57, v{l16}
    s_lshl_b32 s58, s23, 10
    v_add_u32 v{t2}, s58, v{t2}
    ds_read_b128 v[{PD}:{PD+3}], v{t2}
    ds_read_b128 v[{PD+4}:{PD+7}], v{t2} offset:1024
    """)
    for c in range(6):
        a(f"""
        v_lshrrev_b32 v{mxs+c}, 7, v{mxs+c}
        v_max_u32 v{mxs+c}, 11, v{mxs+c}
        v_min_u32 v{mxs+c}, 254, v{mxs+c}
        """)
    a(f"v_mov_b32 v{t1}, v{mxs}")
    for c in range(1, 6):
        a(f"s_cmp_eq_u32 s22, {c}")
        a(f"s_cselect_b64 vcc, -1, 0")
        a(f"v_cndmask_b32 v{t1}, v{t1}, v{mxs+c}, vcc")
    a(f"""
    v_readfirstlane_b32 s59, v{t1}
    s_sub_u32 s59, s59, 10
    s_lshl_b32 s59, s59, 23
    """)
    a("s_cmp_ge_u32 s20, 8")
    snap = a.branch("s_cbranch_scc1 CV_nocvt")
    for c in range(6):
        a(f"v_sub_u32 v{mxs+c}, 264, v{mxs+c}")
        a(f"v_lshlrev_b32 v{mxs+c}, 23, v{mxs+c}")
    f = R.get(4); o2 = R.get(2)
    a(f"v_lshlrev_b32 v{t1}, 3, v0")
    for c in range(6):
        p = c >> 1
        for i in range(4):
            if c & 1: a(f"v_and_b32 v{f+i}, 0xffff0000, v{xrow[i]+p}")
            else: a(f"v_lshlrev_b32 v{f+i}, 16, v{xrow[i]+p}")
            a(f"v_mul_f32 v{f+i}, v{f+i}, v{mxs+c}")
        a(f"v_cvt_pk_f16_f32 v{o2}, v{f}, v{f+1}")
        a(f"v_cvt_pk_f16_f32 v{o2+1}, v{f+2}, v{f+3}")
        a(f"ds_write_b64 v{t1}, v[{o2}:{o2+1}] offset:{C_U + c*U_STRIDE + 512}")
    R.put(f, 4); R.put(o2, 2)
    a.merge("CV_nocvt", snap)
    for x in xrow: R.put(x, 4)
    R.put(mxs, 8)
    a(f"""
    s_and_b32 s60, s20, 14
    s_mul_i32 s60, s60, {2*BUF}
    s_add_u32 s60, s60, {C_SCR + BUF}
    s_add_u32 s61, s60, {2*BUF}
    """)
    q = R.get(8, 4)
    a("s_cmp_eq_u32 s23, 1")
    snapK = a.branch("s_cbranch_scc1 CV_kfin1")
    for j in range(4): a(f"v_add_f32 v{D+j}, v{D+j}, v{PD+j}")
    a(f"""
    v_lshlrev_b32 v{t1}, 5, v{col}
    v_lshl_add_u32 v{t1}, v{rq}, 3, v{t1}
    v_sub_u32 v{t1}, s60, v{t1}
    v_cvt_pk_f16_f32 v{q}, v{D+3}, v{D+2}
    v_cvt_pk_f16_f32 v{q+1}, v{D+1}, v{D}
    v_cvt_pk_f16_f32 v{q+2}, v{D+2}, v{D+1}
    ds_write_b64 v{t1}, v[{q}:{q+1}] offset:{2*(L0-3)}
    ds_write_b16 v{t1}, v{q} offset:{KR_COPY + 2*(L0-3) + 2}
    ds_write_b32 v{t1}, v{q+2} offset:{KR_COPY + 2*(L0-3) + 4}
    ds_write_b16_d16_hi v{t1}, v{q+1} offset:{KR_COPY + 2*(L0-3) + 8}
    """)
    a.wait(lg=0)
    a.nopflush()
    a.raw("s_branch CV_kfin_done")
    a.restore("CV_kfin1", snapK)
    for j in range(8): a(f"v_add_f32 v{D+4+j}, v{D+4+j}, v{PD+j}")
    c0, c2, c4, c6 = D+4, D+5, D+6, D+7
    c8 = PD
    a(f"""
    v_add_u32 v{t1}, 1, v{col}
    v_cmp_eq_u32 vcc, 15, v{col}
    v_cndmask_b32 v{t1}, v{t1}, 32, vcc
    v_add_u32 v{t2}, 16, v{lane}
    v_cmp_eq_u32 vcc, 0, v{rq}
    v_cndmask_b32 v{t1}, v{t1}, v{t2}, vcc
    v_lshlrev_b32 v{t1}, 2, v{t1}
    ds_bpermute_b32 v{c8}, v{t1}, v{c0}
    v_cvt_pk_f16_f32 v{q+7}, v{c2}, v{c2}
    v_cmp_eq_u32 vcc, 32, v{lane}
    v_cndmask_b32 v{c2}, v{c2}, v{c0}, vcc
    v_cndmask_b32 v{c4}, v{c4}, 0, vcc
    v_cndmask_b32 v{c6}, v{c6}, 0, vcc
    v_cndmask_b32 v{c8}, v{c8}, 0, vcc
    v_lshl_add_u32 v{t1}, v{col}, 1, v{rq}
    v_cndmask_b32 v{t1}, v{t1}, 32, vcc
    v_lshlrev_b32 v{t1}, 4, v{t1}
    v_sub_u32 v{t1}, s60, v{t1}
    v_cvt_pk_f16_f32 v{q}, v{c8}, v{c6}
    v_cvt_pk_f16_f32 v{q+1}, v{c4}, v{c4}
    v_cvt_pk_f16_f32 v{q+2}, v{c4}, v{c2}
    v_cvt_pk_f16_f32 v{q+3}, v{c0}, v{c0}
    v_cvt_pk_f16_f32 v{q+4}, v{c4}, v{c4}
    v_cvt_pk_f16_f32 v{q+5}, v{c2}, v{c0}
    v_cvt_pk_f16_f32 v{q+6}, v{c6}, v{c4}
    s_mov_b32 exec_lo, -1
    s_mov_b32 exec_hi, 1
    ds_write_b128 v{t1}, v[{q}:{q+3}] offset:{2*(L0-256-7)}
    ds_write_b16 v{t1}, v{q} offset:{KR_COPY + 2*(L0-256-7) + 2}
    ds_write_b32 v{t1}, v{q+6} offset:{KR_COPY + 2*(L0-256-7) + 4}
    ds_write_b64 v{t1}, v[{q+4}:{q+5}] offset:{KR_COPY + 2*(L0-256-7) + 8}
    ds_write_b16 v{t1}, v{q+3} offset:{KR_COPY + 2*(L0-256-7) + 16}
    s_mov_b32 exec_lo, 0
    v_mov_b32 v{t2}, s60
    ds_write_b16 v{t2}, v{q+7} offset:{2*(L0-580)}
    ds_write_b16 v{t2}, v{q+7} offset:{2*(L0-579)}
    ds_write_b16 v{t2}, v{q+7} offset:{KR_COPY + 2*(L0-580) + 2}
    ds_write_b16 v{t2}, v{q+7} offset:{KR_COPY + 2*(L0-579) + 2}
    s_mov_b64 exec, -1
    """)
    T2 = D + 8
    a(f"""
    v_and_b32 v{t1}, 3, v{col}
    v_mul_u32_u24 v{t1}, 144, v{t1}
    v_lshrrev_b32 v{t2}, 2, v{col}
    v_lshlrev_b32 v{t2}, 5, v{t2}
    v_sub_u32 v{t1}, v{t1}, v{t2}
    v_add_u32 v{t1}, 88, v{t1}
    v_and_b32 v{t2}, 1, v{col}
    v_mul_u32_u24 v{t2}, 176, v{t2}
    v_lshrrev_b32 v{t3}, 1, v{col}
    v_lshlrev_b32 v{t3}, 5, v{t3}
    v_sub_u32 v{t2}, v{t2}, v{t3}
    v_add_u32 v{t2}, {576 + 120 + 128}, v{t2}
    v_cmp_gt_u32 vcc, 8, v{col}
    v_cndmask_b32 v{t1}, v{t2}, v{t1}, vcc
    v_lshlrev_b32 v{t2}, 3, v{rq}
    v_sub_u32 v{t1}, v{t1}, v{t2}
    v_add_u32 v{t1}, s61, v{t1}
    v_cvt_pk_f16_f32 v{q}, v{T2+3}, v{T2+2}
    v_cvt_pk_f16_f32 v{q+1}, v{T2+1}, v{T2}
    v_cvt_pk_f16_f32 v{q+2}, v{T2+2}, v{T2+1}
    ds_write_b64 v{t1}, v[{q}:{q+1}]
    ds_write_b16 v{t1}, v{q} offset:{GH_COPY + 2}
    ds_write_b32 v{t1}, v{q+2} offset:{GH_COPY + 4}
    ds_write_b16_d16_hi v{t1}, v{q+1} offset:{GH_COPY + 8}
    ds_write_b32 v{t1}, v{q} offset:{2*GH_COPY + 4}
    ds_write_b32 v{t1}, v{q+1} offset:{2*GH_COPY + 8}
    ds_write_b16 v{t1}, v{q} offset:{3*GH_COPY + 6}
    ds_write_b32 v{t1}, v{q+2} offset:{3*GH_COPY + 8}
    ds_write_b16_d16_hi v{t1}, v{q+1} offset:{3*GH_COPY + 12}
    """)
    a.wait(lg=0)
    a.label("CV_kfin_done")
    R.put(q, 8); R.put(D, 12); R.put(PD, 8)
    for p in pk: R.put(p)
    R.put(wr); R.put(rd); R.put(tp, 2)
    a("s_barrier")
    stamp(a, 5)
    TK = R.get(40, 4); BX = R.get(12, 4); KF = R.get(12, 4); HF = R.get(10, 2)
    aT = R.get(); aU = R.get(); aS = R.get()
    a(f"""
    v_lshrrev_b32 v{t1}, 1, v{rq}
    v_lshlrev_b32 v{t1}, 5, v{t1}
    v_and_b32 v{t2}, 1, v{rq}
    v_lshlrev_b32 v{t2}, 4, v{t2}
    v_sub_u32 v{t3}, v{t2}, v{t1}
    v_lshlrev_b32 v{t1}, 1, v{col}
    v_sub_u32 v{aT}, v{t3}, v{t1}
    v_and_b32 v{t2}, 1, v{col}
    v_cmp_eq_u32 vcc, 0, v{t2}
    v_mov_b32 v{t2}, {KR_COPY + 2}
    v_cndmask_b32 v{t0}, 0, v{t2}, vcc
    v_add_u32 v{aT}, v{aT}, v{t0}
    s_lshl_b32 s62, s23, 6
    s_sub_u32 s63, s60, s62
    s_add_u32 s63, s63, {2*L0 - 9*128}
    v_add_u32 v{aT}, s63, v{aT}
    """)
    for sg in range(10):
        o = (9 - sg) * 32
        pass
    aT2 = R.get()
    a(f"v_add_u32 v{aT2}, 640, v{aT}")
    for sg in range(10):
        o = (9 - sg) * 32
        base = aT
        if o >= 160: base = aT2; o -= 160
        a(f"ds_read2_b32 v[{TK+4*sg}:{TK+4*sg+1}], v{base} offset0:{o} offset1:{o+1}")
        a(f"ds_read2_b32 v[{TK+4*sg+2}:{TK+4*sg+3}], v{base} offset0:{o+2} offset1:{o+3}")
    R.put(aT2)
    a(f"""
    s_mul_i32 s64, s22, {U_STRIDE}
    s_add_u32 s64, s64, {C_U + 512}
    v_lshl_add_u32 v{aU}, v{col}, 5, v{t3}
    s_sub_u32 s65, s64, s62
    s_sub_u32 s65, s65, 384
    v_add_u32 v{aU}, s65, v{aU}
    v_lshlrev_b32 v{aS}, 5, v{col}
    v_lshl_add_u32 v{aS}, v{rq}, 4, v{aS}
    s_lshl_b32 s65, s23, 4
    s_sub_u32 s65, s64, s65
    s_sub_u32 s65, s65, 32
    v_add_u32 v{aS}, s65, v{aS}
    """)
    a(f"""
    v_lshlrev_b32 v{t1}, 4, v{rq}
    v_lshlrev_b32 v{t2}, 1, v{col}
    v_sub_u32 v{t1}, v{t1}, v{t2}
    v_and_b32 v{t2}, 1, v{col}
    v_mul_u32_u24 v{t2}, 258, v{t2}
    v_add_u32 v{t1}, v{t1}, v{t2}
    v_add_u32 v{t1}, {C_BOX + 128}, v{t1}
    s_lshl_b32 s65, s23, 9
    v_add_u32 v{t2}, s65, v{t1}
    """)
    def rd16(dst, base, byteoff):
        o = byteoff // 4
        a(f"ds_read2_b32 v[{dst}:{dst+1}], v{base} offset0:{o} offset1:{o+1}")
        a(f"ds_read2_b32 v[{dst+2}:{dst+3}], v{base} offset0:{o+2} offset1:{o+3}")
    a(f"v_subrev_u32 v{t1}, 24, v{t1}")
    rd16(BX, t1, 0)
    rd16(BX+4, t1, 512 + 8)
    a(f"v_add_u32 v{t2}, {1024 - 16}, v{t2}")
    rd16(BX+8, t2, 0)
    a(f"""
    v_add_u32 v{t1}, 1, v{col}
    v_and_b32 v{t1}, 3, v{t1}
    v_mul_u32_u24 v{t1}, {GH_COPY + 2}, v{t1}
    v_lshlrev_b32 v{t2}, 1, v{col}
    v_sub_u32 v{t1}, v{t1}, v{t2}
    v_lshl_add_u32 v{t1}, v{rq}, 3, v{t1}
    s_mul_i32 s65, s23, 288
    s_add_u32 s65, s65, s61
    v_add_u32 v{t2}, s65, v{t1}
    s_mul_i32 s65, s23, 176
    s_add_u32 s65, s65, s61
    v_add_u32 v{t1}, s65, v{t1}
    """)
    for ai, aa in enumerate((2, 3, 4)):
        a(f"ds_read_b64 v[{KF+4*ai}:{KF+4*ai+1}], v{t2} offset:{2*(79 - 16*aa)}")
        a(f"ds_read_b64 v[{KF+4*ai+2}:{KF+4*ai+3}], v{t2} offset:{144 + 2*(79 - 16*aa)}")
    for aa in (7, 6, 5, 4):
        a(f"ds_read_b64 v[{HF+2*(7-aa)}:{HF+2*(7-aa)+1}], v{t1} offset:{576 + 2*(127 - 16*aa)}")
    a(f"v_mov_b32 v{HF+8}, 0"); a(f"v_mov_b32 v{HF+9}, 0")
    acc = R.get(32, 4)
    NU = 4
    UF = [R.get(4, 4) for _ in range(NU)]
    US = R.get(4, 4)
    S1 = R.get(12, 4)
    W2f = R.get(4, 4); W3f = R.get(4, 4)
    inited = set()
    def mm(J, A, B):
        c = f"v[{acc+4*J}:{acc+4*J+3}]"
        a(f"v_mfma_f32_16x16x32_f16 {c}, v[{A}:{A+3}], v[{B}:{B+3}], {c if J in inited else 0}")
        inited.add(J)
    gam = list(range(-3, 29))
    def ldU(i):
        if i < len(gam):
            a(f"ds_read_b128 v[{UF[i%NU]}:{UF[i%NU]+3}], v{aU} offset:{(gam[i]+3)*128}")
    def direct(i):
        g = gam[i]
        ldU(i + NU - 1)
        for J in range(8):
            sg = 4*J - g
            if 0 <= sg <= 8: mm(J, TK + 4*sg, UF[i % NU])
            if sg == 16: mm(J, TK + 36, UF[i % NU])
    for i in range(NU - 1): ldU(i)
    a(f"ds_read_b128 v[{US}:{US+3}], v{aS}")
    di = 0
    for b in range(6):
        a(f"v_mfma_f32_16x16x32_f16 v[{S1}:{S1+3}], v[{US}:{US+3}], v[{BX}:{BX+3}], 0")
        a(f"v_mfma_f32_16x16x32_f16 v[{S1+4}:{S1+7}], v[{US}:{US+3}], v[{BX+4}:{BX+7}], 0")
        if b < 4:
            a(f"v_mfma_f32_16x16x32_f16 v[{S1+8}:{S1+11}], v[{US}:{US+3}], v[{BX+8}:{BX+11}], 0")
        if b < 5: a(f"ds_read_b128 v[{US}:{US+3}], v{aS} offset:{512*(b+1)}")
        for _ in range(3): direct(di); di += 1
        a(f"""
        v_cvt_pk_f16_f32 v{W2f}, v{S1}, v{S1+1}
        v_cvt_pk_f16_f32 v{W2f+1}, v{S1+2}, v{S1+3}
        v_cvt_pk_f16_f32 v{W2f+2}, v{S1+4}, v{S1+5}
        v_cvt_pk_f16_f32 v{W2f+3}, v{S1+6}, v{S1+7}
        """)
        if b < 4:
            a(f"v_cvt_pk_f16_f32 v{W3f+2*(b&1)}, v{S1+8}, v{S1+9}")
            a(f"v_cvt_pk_f16_f32 v{W3f+2*(b&1)+1}, v{S1+10}, v{S1+11}")
        for _ in range(2): direct(di); di += 1
        for ai, aa in enumerate((2, 3, 4)):
            if b + aa <= 7: mm(b + aa, W2f, KF + 4*ai)
        if b in (1, 3):
            Bq = b >> 1
            for aa in (4, 5, 6, 7):
                if aa + 2*Bq <= 7: mm(aa + 2*Bq, W3f, HF + 2*(7-aa))
    while di < len(gam): direct(di); di += 1
    assert len(inited) == 8
    for x in UF: R.put(x, 4)
    R.put(US, 4); R.put(S1, 12); R.put(W2f, 4); R.put(W3f, 4); R.put(TK, 40); R.put(BX, 12); R.put(KF, 12); R.put(HF, 10)
    stamp(a, 6)
    a(f"""
    v_add_u32 v{t0}, s56, v{l16}
    v_add_u32 v{t1}, s57, v{l16}
    v_lshlrev_b32 v{t2}, 5, v{col}
    v_lshl_add_u32 v{t2}, v{rq}, 3, v{t2}
    s_lshl_b32 s65, s23, 11
    s_add_u32 s66, s64, s65
    v_add_u32 v{t3}, s66, v{t2}
    s_lshl_b32 s66, s24, 12
    s_add_u32 s66, s66, s65
    s_add_u32 s66, s66, {WS_BT}
    v_mov_b32 v{aT}, s59
    v_mul_f32 v{aT}, s30, v{aT}
    """)
    PA = R.get(16, 4); UU = R.get(8, 2); tb = R.get(4); ob = R.get(8, 2)
    def tail(w):
        keep = acc + 16*w; send = acc + 16*(1-w)
        for j in range(4):
            a(f"ds_write_b128 v{t0}, v[{send+4*j}:{send+4*j+3}] offset:{j*1024}")
        for j in range(4):
            a(f"ds_read_b64 v[{UU+2*j}:{UU+2*j+1}], v{t3} offset:{512*j}")
        a.wait(lg=0)
        a("s_barrier")
        stamp(a, 7)
        for j in range(4):
            a(f"ds_read_b128 v[{PA+4*j}:{PA+4*j+3}], v{t1} offset:{j*1024}")
        for j in range(4):
            k = keep + 4*j
            for e in range(4):
                a(f"v_add_f32 v{k+e}, v{k+e}, v{PA+4*j+e}")
                a(f"v_mul_f32 v{k+e}, s54, v{k+e}")
                a(f"v_mul_f32 v{k+e}, s59, v{k+e}")
            for e in range(4):
                a(f"v_fma_mix_f32 v{tb+e}, v{UU+2*j+(e>>1)}, v{aT}, 0 op_sel:[{e&1},0,0] op_sel_hi:[1,0,0]")
            a(f"""
            v_cvt_pk_bf16_f32 v{k}, v{k}, v{k+1}
            v_cvt_pk_bf16_f32 v{k+2}, v{k+2}, v{k+3}
            v_cvt_pk_bf16_f32 v{tb}, v{tb}, v{tb+1}
            v_cvt_pk_bf16_f32 v{tb+2}, v{tb+2}, v{tb+3}
            v_and_b32 v{k+1}, 0xffff0000, v{k}
            v_lshlrev_b32 v{k}, 16, v{k}
            v_and_b32 v{k+3}, 0xffff0000, v{k+2}
            v_lshlrev_b32 v{k+2}, 16, v{k+2}
            v_and_b32 v{tb+1}, 0xffff0000, v{tb}
            v_lshlrev_b32 v{tb}, 16, v{tb}
            v_and_b32 v{tb+3}, 0xffff0000, v{tb+2}
            v_lshlrev_b32 v{tb+2}, 16, v{tb+2}
            v_add_f32 v{k}, v{k}, v{tb}
            v_add_f32 v{k+1}, v{k+1}, v{tb+1}
            v_add_f32 v{k+2}, v{k+2}, v{tb+2}
            v_add_f32 v{k+3}, v{k+3}, v{tb+3}
            v_cvt_pk_bf16_f32 v{ob+2*j}, v{k}, v{k+1}
            v_cvt_pk_bf16_f32 v{ob+2*j+1}, v{k+2}, v{k+3}
            buffer_store_dwordx2 v[{ob+2*j}:{ob+2*j+1}], v{t2}, s[12:15], s66 offen offset:{512*j}
            """)
        stamp(a, 8)
        stamp_dump(a, 9, 12, 20, t0, t1)
        a.raw("s_endpgm")
    a("s_cmp_eq_u32 s23, 1")
    snapE = a.branch("s_cbranch_scc1 CV_tail1")
    tail(0)
    a.restore("CV_tail1", snapE)
    tail(1)
```

```python
from asmlib import *
from layout import *
from k1_conv import LOG2E

SLOT = 40960
G_KVI = 3 * SLOT
G_LDS = G_KVI + 5632
EPS = 0x358637bd

def lanemask(f):
    m = 0
    for l in range(64):
        if f(l & 15, l >> 4): m |= 1 << l
    return m
def set_exec(a, m):
    a(f"s_mov_b32 exec_lo, {m & 0xffffffff:#x}")
    a(f"s_mov_b32 exec_hi, {m >> 32:#x}")

def gen_gemm(a, R):
    a("s_cmp_ge_u32 s20, 8")
    a("s_cbranch_scc1 GM_exit")
    lane = R.get(); t0 = R.get(); t1 = R.get(); t2 = R.get(); t3 = R.get()
    stamp(a, 0)
    a(f"""
    s_load_dwordx4 s[4:7], s[0:1], 0
    s_load_dwordx4 s[36:39], s[0:1], 112
    v_and_b32 v{lane}, 63, v0
    s_sub_u32 s21, s17, 12
    s_and_b32 s22, s16, 3
    s_lshl_b32 s22, s22, 2
    s_lshr_b32 s23, s16, 2
    s_and_b32 s24, s21, 3
    s_lshr_b32 s25, s21, 2
    s_lshl_b32 s26, s23, 1
    s_add_u32 s26, s26, s24
    s_mul_i32 s27, s23, 5
    s_add_u32 s27, s27, s25
    s_cmp_ge_u32 s21, 16
    s_cselect_b32 s24, s26, s24
    s_cselect_b32 s27, 4, s27
    s_add_u32 s28, s22, s24
    s_add_u32 s29, s24, s25
    s_lshl_b32 s29, s29, 1
    s_cmp_ge_u32 s29, 9
    s_cselect_b32 s30, 9, 0
    s_sub_u32 s29, s29, s30
    """)
    a(f"""
    s_mov_b32 s8, s4
    s_mov_b32 s9, s5
    s_mov_b32 s10, 2359296
    s_mov_b32 s11, 0x20000
    s_mov_b32 s12, s6
    s_mov_b32 s13, s7
    s_mov_b32 s14, 1990656
    s_mov_b32 s15, 0x20000
    s_mov_b32 s40, s38
    s_mov_b32 s41, s39
    s_mov_b32 s42, {WS_SIZE}
    s_mov_b32 s43, 0x20000
    s_mov_b32 s44, s36
    s_mov_b32 s45, s37
    s_mov_b32 s46, 256
    s_mov_b32 s47, 0x20000
    """)
    a("s_cmp_lt_u32 s20, 4")
    snapC = a.branch("s_cbranch_scc1 GM_cons")
    vA = R.get(2); vB = R.get(6)
    a(f"""
    s_sub_u32 s48, s20, 4
    v_lshrrev_b32 v{t0}, 3, v{lane}
    v_mul_u32_u24 v{t0}, 1152, v{t0}
    v_and_b32 v{t1}, 7, v{lane}
    v_lshrrev_b32 v{t2}, 4, v{lane}
    v_xor_b32 v{t1}, v{t1}, v{t2}
    v_lshl_add_u32 v{vA}, v{t1}, 4, v{t0}
    v_xor_b32 v{vA+1}, 64, v{vA}
    s_lshl_b32 s49, s28, 7
    s_lshl_b32 s50, s48, 5
    s_add_u32 s49, s49, s50
    s_mul_i32 s49, s49, 1152
    s_lshl_b32 s50, s48, 12
    s_mul_i32 s51, s48, {16*3456}
    s_mul_i32 s52, s48, {16*384}
    s_add_u32 s52, s52, 16384
    """)
    a(f"""
    s_mul_i32 s53, s27, 144
    s_add_u32 s54, s53, {2304 - 144}
    s_add_u32 s53, s53, 1152
    s_mul_i32 s55, s27, 96
    s_sub_u32 s55, s55, 288
    s_cmp_eq_u32 s27, 8
    s_cselect_b32 s53, 768, s53
    s_cselect_b32 s54, 768, s54
    s_cselect_b32 s55, 768, s55
    """)
    def stage_st(s):
        a(f"""
        s_add_u32 s56, s29, {s}
        s_cmp_ge_u32 s56, 9
        s_cselect_b32 s57, 9, 0
        s_sub_u32 s56, s56, s57
        s_lshl_b32 s57, s56, 7
        s_add_u32 s57, s57, s49
        s_mul_i32 s58, s56, {64*3456}
        s_add_u32 s58, s58, s51
        """)
    def issueA(s):
        for i in range(4):
            a(f"""
            s_add_u32 s59, s57, {8*i*1152}
            s_add_u32 m0, s50, {(s % 3)*SLOT + i*1024}
            buffer_load_dwordx4 v{vA + (i & 1)}, s[8:11], s59 offen lds
            """)
    def issueB(s, i):
        a(f"""
        s_add_u32 m0, s52, {(s % 3)*SLOT + i*1024}
        buffer_load_dwordx4 v{vB + i}, s[12:15], s58 offen lds
        """)
    stage_st(0)
    issueA(0)
    a("s_mov_b32 s60, 2731")
    for i in range(6):
        a(f"""
        v_add_u32 v{t0}, {64*i}, v{lane}
        v_mul_lo_u32 v{t1}, v{t0}, s60
        v_lshrrev_b32 v{t1}, 16, v{t1}
        v_mul_u32_u24 v{t2}, 24, v{t1}
        v_sub_u32 v{t0}, v{t0}, v{t2}
        v_and_b32 v{t2}, 2, v{t1}
        v_lshrrev_b32 v{t3}, 1, v{t1}
        v_and_b32 v{t3}, 4, v{t3}
        v_or_b32 v{t2}, v{t2}, v{t3}
        v_xor_b32 v{t0}, v{t0}, v{t2}
        v_mov_b32 v{t2}, s53
        v_mov_b32 v{t3}, s54
        v_cmp_lt_u32 vcc, 8, v{t0}
        v_cndmask_b32 v{t2}, v{t2}, v{t3}, vcc
        v_mov_b32 v{t3}, s55
        v_cmp_lt_u32 vcc, 17, v{t0}
        v_cndmask_b32 v{t2}, v{t2}, v{t3}, vcc
        v_lshl_add_u32 v{t2}, v{t0}, 4, v{t2}
        v_mul_u32_u24 v{t1}, 3456, v{t1}
        v_add_u32 v{vB+i}, v{t1}, v{t2}
        """)
        issueB(0, i)
    for s in (1, 2):
        stage_st(s); issueA(s)
        for i in range(6): issueB(s, i)
    a.wait(vm=20)
    a("s_barrier")
    for s in range(8):
        a.wait(vm=10 if s + 2 <= 8 else 0)
        a("s_barrier")
        if s + 3 <= 8:
            stage_st(s + 3); issueA(s + 3)
            for i in range(6): issueB(s + 3, i)
    a.raw("s_endpgm")
    R.put(vA, 2); R.put(vB, 6)
    a.restore("GM_cons", snapC)
    col = R.get(); rq = R.get()
    acc = R.get(96, 4)
    AF = [R.get(16, 4), R.get(16, 4)]
    BF = R.get(24, 4)
    aA = R.get(2); aB = R.get(6)
    ac = lambda mt, T: acc + 4 * (mt * 6 + T)
    tk = AF[1]
    a(f"""
    s_mov_b32 s61, 1
    s_lshl_b32 s31, s27, 2
    v_mov_b32 v{tk}, 1
    v_mov_b32 v{tk+1}, 0
    s_cmp_eq_u32 s27, 8
    s_cselect_b32 s62, 1, s20
    s_cmp_lg_u32 s62, 0
    """)
    snapT = a.branch("s_cbranch_scc1 GM_notick")
    a.raw("s_mov_b64 exec, 1")
    a.raw(f"buffer_atomic_add v{tk}, v{tk+1}, s[44:47], s31 offen sc0")
    a.raw("s_mov_b64 exec, -1")
    a.merge("GM_notick", snapT)
    a(f"""
    v_lshlrev_b32 v{t0}, 2, v0
    v_add_u32 v{t0}, {G_KVI}, v{t0}
    """)
    for i in range(6): a(f"ds_write_b32 v{t0}, v{tk+1} offset:{1024*i}")
    a(f"""
    s_and_b32 s48, s20, 1
    s_lshr_b32 s49, s20, 1
    v_and_b32 v{col}, 15, v{lane}
    v_lshrrev_b32 v{rq}, 4, v{lane}
    v_lshrrev_b32 v{t0}, 1, v{col}
    v_xor_b32 v{t0}, v{t0}, v{rq}
    v_lshlrev_b32 v{t0}, 4, v{t0}
    v_lshl_add_u32 v{t0}, v{col}, 7, v{t0}
    s_lshl_b32 s50, s48, 13
    v_add_u32 v{aA}, s50, v{t0}
    v_xor_b32 v{aA+1}, 64, v{aA}
    """)
    rr = BF; cc = BF + 1; gg = BF + 2
    a(f"""
    v_lshrrev_b32 v{rr}, 2, v{lane}
    v_and_b32 v{rr}, 3, v{rr}
    v_and_b32 v{cc}, 3, v{lane}
    v_and_b32 v{gg}, 2, v{rr}
    v_and_b32 v{t0}, 1, v{rq}
    v_lshl_or_b32 v{gg}, v{t0}, 2, v{gg}
    v_lshl_add_u32 v{rr}, v{rq}, 3, v{rr}
    v_mul_u32_u24 v{rr}, 384, v{rr}
    v_add_u32 v{rr}, 16384, v{rr}
    s_mul_i32 s51, s49, 9
    s_mul_i32 s52, s49, 6
    s_mul_i32 s53, s49, 24
    s_cmp_eq_u32 s27, 8
    s_cselect_b64 s[54:55], -1, 0
    """)
    for T in range(6):
        if T < 4:
            a(f"v_add_u32 v{t0}, s51, v{cc}")
            k = [0, 5, 18, 23][T]
            if k: a(f"v_add_u32 v{t0}, {k}, v{t0}")
        elif T == 5:
            a(f"v_add_u32 v{t0}, s52, v{cc}"); a(f"v_add_u32 v{t0}, 38, v{t0}")
        else:
            a(f"""
            v_mul_u32_u24 v{t0}, 18, v{cc}
            v_add_u32 v{t0}, s51, v{t0}
            v_add_u32 v{t0}, 4, v{t0}
            v_add_u32 v{t1}, s52, v{cc}
            v_add_u32 v{t1}, 34, v{t1}
            v_cmp_lt_u32 vcc, 1, v{cc}
            v_cndmask_b32 v{t0}, v{t0}, v{t1}, vcc
            """)
        a(f"""
        v_add_u32 v{t1}, s53, v{cc}
        v_add_u32 v{t1}, {4*T}, v{t1}
        v_cndmask_b32 v{t0}, v{t0}, v{t1}, s[54:55]
        v_lshrrev_b32 v{t1}, 1, v{t0}
        v_xor_b32 v{t1}, v{t1}, v{gg}
        v_and_b32 v{t0}, 1, v{t0}
        v_lshlrev_b32 v{t0}, 3, v{t0}
        v_lshl_add_u32 v{t0}, v{t1}, 4, v{t0}
        v_add_u32 v{aB+T}, v{rr}, v{t0}
        """)
    a(f"""
    v_mov_b32 v{t2}, {EPS:#x}
    v_cndmask_b32 v{t0}, 0, v{t2}, s[54:55]
    v_lshrrev_b32 v{t3}, 2, v{col}
    v_cmp_eq_u32 vcc, 1, v{t3}
    v_cndmask_b32 v{t1}, v{t2}, v{t0}, vcc
    """)
    for mt in range(4):
        for T in range(6):
            src = t0 if T in (2, 3) else (t1 if T == 4 else t2)
            for j in range(4): a(f"v_mov_b32 v{ac(mt,T)+j}, v{src}")
    a.raw("s_waitcnt vmcnt(0)")
    a(f"v_readfirstlane_b32 s61, v{tk}")
    a("s_cmp_lg_u32 s61, 0")
    snapZ = a.branch("s_cbranch_scc1 GM_nozero")
    Z4 = BF
    for j in range(4): a(f"v_mov_b32 v{Z4+j}, 0")
    a(f"""
    v_lshlrev_b32 v{Z4+4}, 4, v{lane}
    s_mul_i32 s33, s27, 5184
    s_add_u32 s33, s33, {WS_KVS}
    """)
    for i in range(5):
        a.raw(f"buffer_store_dwordx4 v[{Z4}:{Z4+3}], v{Z4+4}, s[40:43], s33 offen sc1")
        a.raw("s_add_u32 s33, s33, 1024")
    a.raw("s_mov_b64 exec, 15")
    a.raw(f"buffer_store_dwordx4 v[{Z4}:{Z4+3}], v{Z4+4}, s[40:43], s33 offen sc1")
    a.raw("s_mul_i32 s33, s27, 288")
    a.raw(f"s_add_u32 s33, s33, {WS_KVS + 576*72}")
    a.raw("s_mov_b64 exec, 0x3ffff")
    a.raw(f"buffer_store_dwordx4 v[{Z4}:{Z4+3}], v{Z4+4}, s[40:43], s33 offen sc1")
    a.raw("s_mov_b64 exec, -1")
    a.raw("s_nop 2")
    a.merge("GM_nozero", snapZ)
    def setflag():
        a("s_cmp_lg_u32 s61, 0")
        sn = a.branch("s_cbranch_scc1 GM_noflag")
        a.raw("s_waitcnt vmcnt(0)")
        a.raw("s_mov_b64 exec, 1")
        a.raw(f"v_mov_b32 v{t0}, 1")
        a.raw(f"v_mov_b32 v{t1}, 0")
        a.raw(f"buffer_atomic_add v{t0}, v{t1}, s[44:47], s31 offen offset:64")
        a.raw("s_mov_b64 exec, -1")
        a.merge("GM_noflag", sn)
    def ldA(t):
        f = AF[t & 1]
        for mt in range(4):
            a(f"ds_read_b128 v[{f+4*mt}:{f+4*mt+3}], v{aA + (t & 1)} offset:{mt*2048}")
    def ldB(t, T):
        o = (t & 1) * 32 * 384
        a(f"ds_read_b64_tr_b16 v[{BF+4*T}:{BF+4*T+1}], v{aB+T} offset:{o}")
        a(f"ds_read_b64_tr_b16 v[{BF+4*T+2}:{BF+4*T+3}], v{aB+T} offset:{o + 4*384}")
    def bump(s_next):
        d = SLOT if s_next % 3 else -2 * SLOT
        for r in [aA, aA + 1] + [aB + T for T in range(6)]:
            if d > 0: a(f"v_add_u32 v{r}, {d}, v{r}")
            else: a(f"v_subrev_u32 v{r}, {-d}, v{r}")
    a.wait(lg=0)
    a("s_barrier")
    stamp(a, 1)
    ldA(0)
    for T in range(6): ldB(0, T)
    for t in range(18):
        f = AF[t & 1]
        pend = []
        for T in range(6):
            for mt in range(4):
                c = f"v[{ac(mt,T)}:{ac(mt,T)+3}]"
                a(f"v_mfma_f32_16x16x32_bf16 {c}, v[{f+4*mt}:{f+4*mt+3}], v[{BF+4*T}:{BF+4*T+3}], {c}")
            if t == 17: continue
            if t & 1 == 0:
                if T == 0: ldA(t + 1)
                ldB(t + 1, T)
            else:
                if T == 0:
                    a.wait(lg=0)
                    a("s_barrier")
                    if t == 3: setflag()
                    bump((t + 1) >> 1)
                    ldA(t + 1)
                ldB(t + 1, T)
    stamp(a, 2)
    R.put(AF[0], 16); R.put(AF[1], 16); R.put(BF, 24); R.put(aA, 2); R.put(aB, 6)
    tm = R.get(4, 2); L2 = R.get(2)
    a(f"v_mov_b32 v{L2}, {LOG2E:#x}"); a(f"v_mov_b32 v{L2+1}, {LOG2E:#x}")
    a(f"s_mov_b32 s56, {EPS:#x}")
    def phi(r, keepmask=None):
        a(f"v_pk_mul_f32 v[{tm}:{tm+1}], v[{r}:{r+1}], v[{L2}:{L2+1}]")
        a(f"v_pk_mul_f32 v[{tm+2}:{tm+3}], v[{r+2}:{r+3}], v[{L2}:{L2+1}]")
        for j in range(4): a(f"v_exp_f32_e64 v{tm+j}, v{tm+j} clamp")
        if keepmask is None:
            for j in range(4): a(f"v_max_f32 v{r+j}, s56, v{r+j}")
            a(f"v_pk_add_f32 v[{r}:{r+1}], v[{r}:{r+1}], v[{tm}:{tm+1}]")
            a(f"v_pk_add_f32 v[{r+2}:{r+3}], v[{r+2}:{r+3}], v[{tm+2}:{tm+3}]")
        else:
            set_exec(a, keepmask)
            for j in range(4): a(f"v_max_f32 v{r+j}, s56, v{r+j}")
            a(f"v_pk_add_f32 v[{r}:{r+1}], v[{r}:{r+1}], v[{tm}:{tm+1}]")
            a(f"v_pk_add_f32 v[{r+2}:{r+3}], v[{r+2}:{r+3}], v[{tm+2}:{tm+3}]")
            a("s_mov_b64 exec, -1")
    vq = R.get()
    a(f"""
    v_lshlrev_b32 v{vq}, 12, v{col}
    v_lshl_add_u32 v{vq}, v{rq}, 3, v{vq}
    s_lshl_b32 s57, s28, 8
    s_lshl_b32 s58, s48, 7
    s_add_u32 s57, s57, s58
    """)
    a("s_cmp_eq_u32 s27, 8")
    snapQ = a.branch("s_cbranch_scc1 GM_epi_q")
    F = {(T, p): R.get(4, 4) for T in range(5) for p in range(2)}
    AL = [R.get(4, 4) for p in range(2)]
    m_nv = lanemask(lambda c, r: (c >> 2) != 1)
    a(f"""
    s_mul_i32 s58, s27, 48
    s_mul_i32 s59, s49, 24
    s_add_u32 s58, s58, s59
    s_lshl_b32 s58, s58, 12
    s_add_u32 s58, s58, s57
    s_add_u32 s59, s58, {8*4096}
    s_sub_u32 s58, s58, {8*4096}
    """)
    for mt in range(4):
        for T in (0, 1, 4, 5, 2, 3):
            r = ac(mt, T)
            if T in (0, 1, 5): phi(r)
            if T == 4: phi(r, m_nv)
            if T == 5:
                a(f"v_cvt_pk_bf16_f32 v{r}, v{r}, v{r+1}")
                a(f"v_cvt_pk_bf16_f32 v{r+1}, v{r+2}, v{r+3}")
                a(f"buffer_store_dwordx2 v[{r}:{r+1}], v{vq}, s[40:43], s59 offen offset:{32*mt}")
            else:
                d = F[(T, mt >> 1)] + 2 * (mt & 1)
                a(f"v_cvt_pk_bf16_f32 v{d}, v{r}, v{r+1}")
                a(f"v_cvt_pk_bf16_f32 v{d+1}, v{r+2}, v{r+3}")
    a(f"v_add_u32 v{t0}, s58, v{vq}")
    set_exec(a, lanemask(lambda c, r: c >= 8))
    for mt in range(4):
        d = F[(4, mt >> 1)] + 2 * (mt & 1)
        a(f"buffer_store_dwordx2 v[{d}:{d+1}], v{t0}, s[40:43], 0 offen offset:{32*mt}")
    a("s_mov_b64 exec, -1")
    a(f"v_cmp_eq_u32 vcc, 1, v{t3}")
    a(f"v_mov_b32 v{t1}, 0x3f803f80")
    for p in range(2):
        for j in range(4): a(f"v_cndmask_b32 v{AL[p]+j}, v{t1}, v{F[(4,p)]+j}, vcc")
    KV = acc
    prods = [(('F', 2), 0), (('F', 3), 1), (('L', 0), 0), (('L', 0), 1), (('F', 2), 4), (('F', 3), 4), (('L', 0), 4)]
    for p in range(2):
        for i, (A_, B_) in enumerate(prods):
            Ar = F[(A_[1], p)] if A_[0] == 'F' else AL[p]
            Br = F[(B_, p)]
            c = f"v[{KV+4*i}:{KV+4*i+3}]"
            a(f"v_mfma_f32_16x16x32_bf16 {c}, v[{Ar}:{Ar+3}], v[{Br}:{Br+3}], {c if p else 0}")
    b1 = R.get(); b2 = R.get(); b3 = R.get()
    a(f"""
    s_mul_i32 s60, s49, {2*324*4}
    s_add_u32 s60, s60, {G_KVI}
    v_mul_u32_u24 v{b1}, {4*18*4}, v{rq}
    v_lshl_add_u32 v{b1}, v{col}, 2, v{b1}
    v_add_u32 v{b1}, s60, v{b1}
    v_lshlrev_b32 v{b2}, 2, v{col}
    v_add_u32 v{b2}, s60, v{b2}
    s_mul_i32 s60, s49, {2*18*4}
    s_add_u32 s60, s60, {G_KVI + 1296*4}
    v_lshlrev_b32 v{b3}, 2, v{col}
    v_add_u32 v{b3}, s60, v{b3}
    """)
    def add(base, reg, off): a(f"ds_add_f32 v{base}, v{reg} offset:{4*off}")
    for j in range(4): add(b1, KV + j, j * 18)
    for j in range(4): add(b1, KV + 4 + j, 324 + (2 + j) * 18 + 2)
    set_exec(a, lanemask(lambda c, r: r == 1))
    add(b2, KV + 8, 16 * 18); add(b2, KV + 9, 17 * 18)
    add(b2, KV + 12 + 2, 324 + 2); add(b2, KV + 12 + 3, 324 + 18 + 2)
    set_exec(a, lanemask(lambda c, r: r == 2))
    add(b3, KV + 8, 0); add(b3, KV + 12, 18 + 2)
    set_exec(a, lanemask(lambda c, r: c < 2))
    for j in range(4): add(b1, KV + 16 + j, j * 18 + 16)
    set_exec(a, lanemask(lambda c, r: c in (2, 3)))
    for j in range(4): add(b1, KV + 20 + j, 324 + (2 + j) * 18 - 2)
    set_exec(a, lanemask(lambda c, r: r == 1 and c < 2))
    add(b2, KV + 24, 16 * 18 + 16); add(b2, KV + 25, 17 * 18 + 16)
    set_exec(a, lanemask(lambda c, r: r == 1 and c in (2, 3)))
    add(b2, KV + 26, 324 - 2); add(b2, KV + 27, 324 + 18 - 2)
    set_exec(a, lanemask(lambda c, r: r == 2 and c < 4))
    add(b3, KV + 24, 16)
    a("s_mov_b64 exec, -1")
    a.wait(lg=0)
    a("s_barrier")
    V6 = R.get(6)
    a(f"""
    v_lshlrev_b32 v{t0}, 2, v0
    v_add_u32 v{t1}, {G_KVI}, v{t0}
    """)
    for i in range(6): a(f"ds_read_b32 v{V6+i}, v{t1} offset:{1024*i}")
    a(f"""
    s_lshl_b32 s31, s27, 2
    v_mov_b32 v{t2}, 0
    """)
    a.label("GM_poll")
    a(f"""
    buffer_load_dword v{t3}, v{t2}, s[44:47], s31 offen offset:64 sc1
    v_readfirstlane_b32 s32, v{t3}
    s_cmp_eq_u32 s32, 0
    s_cbranch_scc1 GM_poll
    s_mul_i32 s33, s27, 5184
    s_add_u32 s33, s33, {WS_KVS}
    """)
    for i in range(4):
        a(f"buffer_atomic_add_f32 v{V6+i}, v{t0}, s[40:43], s33 offen offset:{1024*i}")
    a(f"""
    s_add_u32 s33, s33, 4096
    buffer_atomic_add_f32 v{V6+4}, v{t0}, s[40:43], s33 offen
    s_add_u32 s33, s33, 1024
    s_mul_i32 s34, s27, 288
    s_add_u32 s34, s34, {WS_KVS + 576*72 - 64}
    v_add_u32 v{t1}, s33, v{t0}
    v_add_u32 v{t2}, s34, v{t0}
    v_cmp_gt_u32 vcc, 16, v0
    v_cndmask_b32 v{t1}, v{t2}, v{t1}, vcc
    v_mov_b32 v{t2}, 0x7f000000
    v_cmp_gt_u32 vcc, 88, v0
    v_cndmask_b32 v{t1}, v{t2}, v{t1}, vcc
    buffer_atomic_add_f32 v{V6+5}, v{t1}, s[40:43], 0 offen
    """)
    stamp(a, 3)
    stamp_dump(a, 4, 40, 20, t0, t1)
    a.raw("s_endpgm")
    a.restore("GM_epi_q", snapQ)
    a(f"""
    s_mul_i32 s58, s49, 96
    s_add_u32 s58, s58, 384
    s_lshl_b32 s58, s58, 12
    s_add_u32 s58, s58, s57
    """)
    for T in range(6):
        for mt in range(4):
            r = ac(mt, T)
            phi(r)
            a(f"v_cvt_pk_bf16_f32 v{r}, v{r}, v{r+1}")
            a(f"v_cvt_pk_bf16_f32 v{r+1}, v{r+2}, v{r+3}")
            a(f"buffer_store_dwordx2 v[{r}:{r+1}], v{vq}, s[40:43], s58 offen offset:{32*mt}")
        a(f"s_add_u32 s58, s58, {16*4096}")
    stamp(a, 3)
    stamp_dump(a, 4, 40, 20, t0, t1)
    a.label("GM_exit", flush=False)
    a.raw("s_endpgm")
```

```python
from asmlib import *
from layout import *

K2_PQ = 0
K2_KV = 36864
K2_OF = 36864 + 30720
K2_LDS = K2_OF + 36864

def gen_k2():
    a = Asm()
    R = VAlloc(1, 168)
    a("""
    s_cmp_ge_u32 s2, 256
    s_cbranch_scc1 K2_end
    s_load_dwordx2 s[4:5], s[0:1], 104
    s_load_dwordx2 s[6:7], s[0:1], 120
    """)
    lane = R.get(); t0 = R.get(); t1 = R.get(); t2 = R.get(); t3 = R.get()
    a(f"""
    v_lshrrev_b32 v{t0}, 6, v0
    v_and_b32 v{lane}, 63, v0
    v_readfirstlane_b32 s20, v{t0}
    s_and_b32 s21, s2, 7
    s_lshr_b32 s22, s2, 3
    s_lshl_b32 s21, s21, 3
    s_lshr_b32 s23, s22, 2
    s_add_u32 s21, s21, s23
    s_and_b32 s22, s22, 3
    """)
    a(f"""
    s_mov_b32 s8, s6
    s_mov_b32 s9, s7
    s_mov_b32 s10, {WS_SIZE}
    s_mov_b32 s11, 0x20000
    s_mov_b32 s12, s4
    s_mov_b32 s13, s5
    s_mov_b32 s14, 2359296
    s_mov_b32 s15, 0x20000
    """)
    kv = R.get(20, 4)
    a(f"""
    v_mul_u32_u24 v{t0}, 72, v0
    s_mov_b32 s24, {WS_KVS}
    buffer_load_dwordx4 v[{kv}:{kv+3}], v{t0}, s[8:11], s24 offen
    buffer_load_dwordx4 v[{kv+4}:{kv+7}], v{t0}, s[8:11], s24 offen offset:16
    buffer_load_dwordx4 v[{kv+8}:{kv+11}], v{t0}, s[8:11], s24 offen offset:32
    buffer_load_dwordx4 v[{kv+12}:{kv+15}], v{t0}, s[8:11], s24 offen offset:48
    buffer_load_dwordx2 v[{kv+16}:{kv+17}], v{t0}, s[8:11], s24 offen offset:64
    """)
    a(f"""
    v_lshrrev_b32 v{t1}, 2, v{lane}
    v_lshlrev_b32 v{t1}, 12, v{t1}
    v_and_b32 v{t2}, 3, v{lane}
    v_lshlrev_b32 v{t2}, 4, v{t2}
    v_add_u32 v{t1}, v{t1}, v{t2}
    s_lshl_b32 s25, s20, 18
    s_lshl_b32 s26, s21, 6
    s_add_u32 s25, s25, s26
    s_lshl_b32 s27, s20, 12
    """)
    for i in range(4):
        a(f"""
        s_add_u32 s26, s25, {WS_PQT + i*65536}
        s_add_u32 m0, s27, {K2_PQ + i*1024}
        buffer_load_dwordx4 v{t1}, s[8:11], s26 offen lds
        """)
    kz = R.get(20, 4)
    a("s_cmp_lg_u32 s20, 8")
    snap = a.branch("s_cbranch_scc1 K2_noz")
    a(f"""
    v_mul_u32_u24 v{t0}, 72, v{lane}
    v_cmp_gt_u32 vcc, 32, v{lane}
    v_mov_b32 v{t2}, 0x7f000000
    v_cndmask_b32 v{t0}, v{t2}, v{t0}, vcc
    s_mov_b32 s24, {WS_KVS + 576*72}
    buffer_load_dwordx4 v[{kz}:{kz+3}], v{t0}, s[8:11], s24 offen
    buffer_load_dwordx4 v[{kz+4}:{kz+7}], v{t0}, s[8:11], s24 offen offset:16
    buffer_load_dwordx4 v[{kz+8}:{kz+11}], v{t0}, s[8:11], s24 offen offset:32
    buffer_load_dwordx4 v[{kz+12}:{kz+15}], v{t0}, s[8:11], s24 offen offset:48
    buffer_load_dwordx2 v[{kz+16}:{kz+17}], v{t0}, s[8:11], s24 offen offset:64
    v_and_b32 v{t0}, 31, v{lane}
    v_mul_u32_u24 v{t0}, 960, v{t0}
    v_lshrrev_b32 v{t2}, 5, v{lane}
    v_mul_u32_u24 v{t2}, 48, v{t2}
    v_add_u32 v{t0}, v{t0}, v{t2}
    """)
    for i in range(9):
        a(f"v_cvt_pk_bf16_f32 v{kz+i}, v{kz+2*i}, v{kz+2*i+1}")
    for i in range(9, 12): a(f"v_mov_b32 v{kz+i}, 0")
    for i in range(3):
        a(f"ds_write_b128 v{t0}, v[{kz+4*i}:{kz+4*i+3}] offset:{K2_KV + 18*48 + 16*i}")
    a.merge("K2_noz", snap)
    R.put(kz, 20)
    wof = R.get(72, 4)
    a(f"""
    v_lshlrev_b32 v{t1}, 4, v{lane}
    s_mul_i32 s26, s22, 9
    s_add_u32 s26, s26, s20
    s_mul_i32 s28, s26, 18432
    s_add_u32 s28, s28, {WS_WOF}
    """)
    for ks in range(18):
        if ks % 4 == 0 and ks: a(f"s_add_u32 s28, s28, 4096")
        a(f"buffer_load_dwordx4 v[{wof+4*ks}:{wof+4*ks+3}], v{t1}, s[8:11], s28 offen offset:{(ks%4)*1024}")
    bt = R.get(4, 2); g = R.get(8, 4)
    col = R.get(); rq = R.get()
    a(f"""
    v_and_b32 v{col}, 15, v{lane}
    v_lshrrev_b32 v{rq}, 4, v{lane}
    v_lshlrev_b32 v{t2}, 12, v{col}
    v_lshlrev_b32 v{t3}, 3, v{rq}
    v_add_u32 v{t2}, v{t2}, v{t3}
    s_lshl_b32 s29, s26, 16
    s_lshl_b32 s30, s21, 6
    s_add_u32 s29, s29, s30
    s_add_u32 s29, s29, {WS_BT}
    buffer_load_dwordx2 v[{bt}:{bt+1}], v{t2}, s[8:11], s29 offen
    buffer_load_dwordx2 v[{bt+2}:{bt+3}], v{t2}, s[8:11], s29 offen offset:32
    v_lshlrev_b32 v{t3}, 4, v{rq}
    s_lshl_b32 s30, s21, 7
    s_add_u32 s30, s30, {WS_G}
    buffer_load_dwordx4 v[{g}:{g+3}], v{t3}, s[8:11], s30 offen
    buffer_load_dwordx4 v[{g+4}:{g+7}], v{t3}, s[8:11], s30 offen offset:64
    """)
    a(f"""
    s_mov_b32 s31, 3641
    v_mul_lo_u32 v{t0}, v0, s31
    v_lshrrev_b32 v{t0}, 16, v{t0}
    v_mul_u32_u24 v{t0}, 96, v{t0}
    v_mul_u32_u24 v{t2}, 48, v0
    v_add_u32 v{t0}, v{t0}, v{t2}
    """)
    for i in range(9):
        a(f"v_cvt_pk_bf16_f32 v{kv+i}, v{kv+2*i}, v{kv+2*i+1}")
    for i in range(9, 12): a(f"v_mov_b32 v{kv+i}, 0")
    for i in range(3):
        a(f"ds_write_b128 v{t0}, v[{kv+4*i}:{kv+4*i+3}] offset:{K2_KV + 16*i}")
    R.put(kv, 20)
    aB = R.get(); aM = R.get(); aX0 = R.get(); aX1 = R.get(); aO = R.get()
    a(f"""
    s_and_b32 s32, s20, 1
    s_lshr_b32 s33, s20, 1
    v_lshrrev_b32 v{t0}, 2, v{lane}
    v_and_b32 v{t0}, 3, v{t0}
    v_lshl_add_u32 v{t0}, v{rq}, 3, v{t0}
    v_lshlrev_b32 v{t0}, 6, v{t0}
    v_and_b32 v{t2}, 3, v{lane}
    v_lshl_add_u32 v{t0}, v{t2}, 3, v{t0}
    s_mul_i32 s34, s33, 9216
    s_lshl_b32 s35, s32, 5
    s_add_u32 s34, s34, s35
    v_add_u32 v{aB}, s34, v{t0}
    """)
    a(f"""
    v_mul_u32_u24 v{t0}, 48, v{col}
    v_lshl_add_u32 v{t0}, v{rq}, 4, v{t0}
    v_mov_b32 v{t2}, {19*48}
    v_cmp_gt_u32 vcc, 3, v{rq}
    v_cndmask_b32 v{t0}, v{t2}, v{t0}, vcc
    s_mul_i32 s34, s33, 7680
    s_add_u32 s34, s34, {K2_KV}
    v_add_u32 v{aM}, s34, v{t0}
    """)
    jq = R.get(); rr = R.get()
    a(f"""
    v_and_b32 v{jq}, 3, v{col}
    v_lshrrev_b32 v{rr}, 2, v{col}
    """)
    for p, aX in ((0, aX0), (1, aX1)):
        a(f"""
        v_mov_b32 v{t0}, 19
        v_cmp_eq_u32 vcc, {p}, v{jq}
        v_cndmask_b32 v{t0}, v{t0}, 18, vcc
        v_and_b32 v{t2}, 1, v{rr}
        v_add_u32 v{t2}, 16, v{t2}
        v_lshrrev_b32 v{t3}, 1, v{rr}
        v_lshlrev_b32 v{t3}, 2, v{t3}
        v_add_u32 v{t3}, v{t3}, v{jq}
        v_cmp_eq_u32 vcc, {4*p+2}, v{t3}
        v_cndmask_b32 v{t0}, v{t0}, v{t2}, vcc
        v_cmp_gt_u32 vcc, 3, v{rq}
        v_cndmask_b32 v{t0}, 19, v{t0}, vcc
        v_mul_u32_u24 v{t0}, 48, v{t0}
        v_min_u32 v{t2}, 2, v{rq}
        v_lshl_add_u32 v{t0}, v{t2}, 4, v{t0}
        v_add_u32 v{aX}, s34, v{t0}
        """)
    R.put(jq); R.put(rr)
    a(f"""
    v_lshlrev_b32 v{aO}, 4, v{lane}
    v_cmp_lt_u32 s[36:37], 1, v{rq}
    """)
    a.wait(vm=22, lg=0)
    a("s_barrier")
    a("s_cmp_eq_u32 s20, 8")
    snap = a.branch("s_cbranch_scc1 K2_phaseB")
    lo = R.get(4, 2)
    a(f"""
    s_mul_i32 s38, s32, 18432
    s_lshl_b32 s39, s33, 12
    s_add_u32 s38, s38, s39
    s_add_u32 s38, s38, {K2_OF}
    v_add_u32 v{t3}, s38, v{aO}
    """)
    fr = [R.get(12, 4) for _ in range(3)]
    def loads(h):
        if h >= 8: return
        b = fr[h % 3]
        a(f"ds_read_b64_tr_b16 v[{b}:{b+1}], v{aB} offset:{K2_PQ + h*1152}")
        a(f"ds_read_b64_tr_b16 v[{b+2}:{b+3}], v{aB} offset:{K2_PQ + h*1152 + 256}")
        a(f"ds_read_b128 v[{b+4}:{b+7}], v{aM} offset:{h*960}")
        a(f"ds_read_b128 v[{b+8}:{b+11}], v{aX0 if h % 2 == 0 else aX1} offset:{h*960}")
    M = R.get(12, 4); of = R.get(4, 4); r0 = R.get(); r1 = R.get()
    loads(0); loads(1); loads(2)
    for p in range(4):
        f = fr[(2*p) % 3]; f2 = fr[(2*p+1) % 3]
        a(f"""
        v_mfma_f32_16x16x32_bf16 v[{M+8}:{M+11}], v[{f+8}:{f+11}], v[{f}:{f+3}], 0
        v_mfma_f32_16x16x32_bf16 v[{M}:{M+3}], v[{f+4}:{f+7}], v[{f}:{f+3}], 0
        """)
        loads(2*p+3)
        a(f"""
        v_mfma_f32_16x16x32_bf16 v[{M+8}:{M+11}], v[{f2+8}:{f2+11}], v[{f2}:{f2+3}], v[{M+8}:{M+11}]
        v_mfma_f32_16x16x32_bf16 v[{M+4}:{M+7}], v[{f2+4}:{f2+7}], v[{f2}:{f2+3}], 0
        """)
        loads(2*p+4)
        a(f"""
        v_add_f32 v{r0}, 0x358637bd, v{M+8}
        v_add_f32 v{r1}, 0x358637bd, v{M+9}
        v_rcp_f32 v{r0}, v{r0}
        v_rcp_f32 v{r1}, v{r1}
        v_mul_f32 v{M}, v{M}, v{r0}
        v_mul_f32 v{M+1}, v{M+1}, v{r0}
        v_mul_f32 v{M+2}, v{M+2}, v{r0}
        v_mul_f32 v{M+3}, v{M+3}, v{r0}
        v_mul_f32 v{M+4}, v{M+4}, v{r1}
        v_mul_f32 v{M+5}, v{M+5}, v{r1}
        v_mul_f32 v{M+6}, v{M+6}, v{r1}
        v_mul_f32 v{M+7}, v{M+7}, v{r1}
        v_cndmask_b32 v{r0}, v{r0}, v{r1}, s[36:37]
        v_mul_f32 v{lo+p}, v{M+10}, v{r0}
        v_cvt_pk_bf16_f32 v{of}, v{M}, v{M+1}
        v_cvt_pk_bf16_f32 v{of+1}, v{M+2}, v{M+3}
        v_cvt_pk_bf16_f32 v{of+2}, v{M+4}, v{M+5}
        v_cvt_pk_bf16_f32 v{of+3}, v{M+6}, v{M+7}
        ds_write_b128 v{t3}, v[{of}:{of+3}] offset:{p*1024}
        """)
    a(f"""
    v_cvt_pk_bf16_f32 v{lo}, v{lo}, v{lo+1}
    v_cvt_pk_bf16_f32 v{lo+1}, v{lo+2}, v{lo+3}
    s_mul_i32 s38, s32, 18432
    s_lshr_b32 s39, s33, 1
    s_lshl_b32 s39, s39, 10
    s_add_u32 s38, s38, s39
    s_and_b32 s39, s33, 1
    s_lshl_b32 s39, s39, 3
    s_add_u32 s38, s38, s39
    s_add_u32 s38, s38, {K2_OF + 16*1024}
    v_add_u32 v{t3}, s38, v{aO}
    ds_write_b64 v{t3}, v[{lo}:{lo+1}]
    """)
    a.merge("K2_phaseB", snap)
    a("s_barrier")
    for f in fr: R.put(f, 12)
    R.put(M, 12); R.put(of, 4)
    acc = R.get(8, 4)
    NB = 6
    fa = [R.get(4, 4) for _ in range(NB)]
    a(f"v_add_u32 v{t3}, {K2_OF}, v{aO}")
    seq = [(ks, mt) for ks in range(18) for mt in range(2)]
    def ld(i):
        ks, mt = seq[i]
        a(f"ds_read_b128 v[{fa[i%NB]}:{fa[i%NB]+3}], v{t3} offset:{(mt*18+ks)*1024}")
    for i in range(NB-1): ld(i)
    for i, (ks, mt) in enumerate(seq):
        if i + NB - 1 < len(seq): ld(i + NB - 1)
        c = f"v[{acc+4*mt}:{acc+4*mt+3}]"
        a(f"v_mfma_f32_16x16x32_bf16 {c}, v[{fa[i%NB]}:{fa[i%NB]+3}], v[{wof+4*ks}:{wof+4*ks+3}], {c if ks else 0}")
    bf = R.get(4); o16 = R.get(2)
    a(f"""
    v_lshlrev_b32 v{t0}, 2, v{rq}
    v_mul_u32_u24 v{t0}, 1152, v{t0}
    v_lshl_add_u32 v{t0}, v{col}, 1, v{t0}
    s_mul_i32 s40, s21, {32*1152}
    s_lshl_b32 s41, s26, 5
    s_add_u32 s40, s40, s41
    """)
    for mt in range(2):
        a(f"""
        v_lshlrev_b32 v{bf}, 16, v{bt+2*mt}
        v_and_b32 v{bf+1}, 0xffff0000, v{bt+2*mt}
        v_lshlrev_b32 v{bf+2}, 16, v{bt+2*mt+1}
        v_and_b32 v{bf+3}, 0xffff0000, v{bt+2*mt+1}
        """)
        for j in range(4):
            A = acc + 4*mt + j
            a(f"""
            v_sub_f32 v{A}, v{A}, v{bf+j}
            v_fma_f32 v{A}, v{g+4*mt+j}, v{A}, v{bf+j}
            """)
        a(f"""
        v_cvt_pk_bf16_f32 v{o16}, v{acc+4*mt}, v{acc+4*mt+1}
        v_cvt_pk_bf16_f32 v{o16+1}, v{acc+4*mt+2}, v{acc+4*mt+3}
        buffer_store_short v{o16}, v{t0}, s[12:15], s40 offen
        buffer_store_short_d16_hi v{o16}, v{t0}, s[12:15], s40 offen offset:1152
        buffer_store_short v{o16+1}, v{t0}, s[12:15], s40 offen offset:2304
        buffer_store_short_d16_hi v{o16+1}, v{t0}, s[12:15], s40 offen offset:3456
        """)
        if mt == 0:
            a(f"s_add_u32 s40, s40, {16*1152}")
            o16 = R.get(2)
    a.label("K2_end", flush=False)
    return a, R.high
```

```python
import sys
from build import *
import k1, k2, k1_conv
a1, hi1 = k1.gen_k1()
a2, hi2 = k2.gen_k2()
print("k1 vgpr", hi1, "ninst", a1.ninst, "k2 vgpr", hi2, "ninst", a2.ninst)
out = sys.argv[1] if len(sys.argv) > 1 else "gated_mix__linear_attn_block__ssm_conv_s4__prompt.s"
build([("k1_kernel", a1.text(), hi1, 256, 768, K1_LDS), ("k2_kernel", a2.text(), hi2, 256, 576, k2.K2_LDS)], out)
```

```python
from asmlib import *
from layout import *

def gen_aux(a, R):
    lane = R.get(); t0 = R.get(); t1 = R.get(); t2 = R.get(); l16 = R.get(); aT = R.get(); aL = R.get()
    a(f"""
    s_load_dwordx2 s[6:7], s[0:1], 120
    s_load_dwordx2 s[36:37], s[0:1], 16
    v_and_b32 v{lane}, 63, v0
    s_lshl_b32 s21, s16, 1
    s_add_u32 s21, s21, s17
    s_sub_u32 s21, s21, 30
    v_lshlrev_b32 v{l16}, 4, v{lane}
    s_mul_i32 s22, s21, 41472
    s_lshl_b32 s23, s20, 10
    s_add_u32 s22, s22, s23
    v_lshrrev_b32 v{t0}, 2, v{lane}
    v_mul_u32_u24 v{t0}, 1152, v{t0}
    v_and_b32 v{t1}, 3, v{lane}
    v_lshl_add_u32 v{aT}, v{t1}, 3, v{t0}
    s_mul_i32 s24, s20, 96
    v_add_u32 v{aT}, s24, v{aT}
    v_lshrrev_b32 v{t0}, 5, v{lane}
    v_mul_u32_u24 v{t0}, {18*1152}, v{t0}
    v_bfe_u32 v{t1}, v{lane}, 4, 1
    v_mul_u32_u24 v{t1}, 1152, v{t1}
    v_add_u32 v{t0}, v{t0}, v{t1}
    v_and_b32 v{t1}, 15, v{lane}
    v_lshl_add_u32 v{aL}, v{t1}, 1, v{t0}
    v_add_u32 v{aL}, s24, v{aL}
    s_mov_b32 s12, s6
    s_mov_b32 s13, s7
    s_mov_b32 s14, {WS_SIZE}
    s_mov_b32 s15, 0x20000
    s_mov_b32 s40, s36
    s_mov_b32 s41, s37
    s_mov_b32 s42, 663552
    s_mov_b32 s43, 0x20000
    """)
    for i in range(4):
        a(f"""
        s_add_u32 m0, s23, {i*12288}
        s_add_u32 s25, s22, {i*12288}
        buffer_load_dwordx4 v{l16}, s[40:43], s25 offen lds
        """)
    a.wait(vm=0)
    a("s_barrier")
    F = [R.get(4, 4) for _ in range(3)]; H = R.get(3)
    for j in range(3):
        a(f"ds_read_b64_tr_b16 v[{F[j]}:{F[j]+1}], v{aT} offset:{32*j}")
        a(f"ds_read_b64_tr_b16 v[{F[j]+2}:{F[j]+3}], v{aT} offset:{18*1152 + 32*j}")
        a(f"ds_read_u16 v{H+j}, v{aL} offset:{16*1152 + 32*j}")
    a(f"""
    s_mul_i32 s26, s20, {3*18432}
    s_lshl_b32 s27, s21, 10
    s_add_u32 s27, s27, s26
    s_add_u32 s27, s27, {WS_WOF}
    s_lshr_b32 s28, s21, 3
    s_lshl_b32 s28, s28, 10
    s_and_b32 s29, s21, 7
    s_lshl_b32 s29, s29, 1
    s_add_u32 s28, s28, s29
    s_add_u32 s28, s28, s26
    s_add_u32 s28, s28, {WS_WOF + 16*1024}
    """)
    for j in range(3):
        a(f"buffer_store_dwordx4 v[{F[j]}:{F[j]+3}], v{l16}, s[12:15], s27 offen")
        a(f"buffer_store_short v{H+j}, v{l16}, s[12:15], s28 offen")
        if j < 2:
            a("s_add_u32 s27, s27, 18432"); a("s_add_u32 s28, s28, 18432")
    a.raw("s_endpgm")
```

```python
from asmlib import *
from layout import *
import struct
def fbits(x): return struct.unpack('<I', struct.pack('<f', x))[0]
LOG2E = fbits(1.4426950408889634)
import numpy as np
_c = 1.0/(2*np.pi); C_HI = np.float32(_c); C_LO = np.float32(_c - float(C_HI))
INV2PI_HI = fbits(float(C_HI)); INV2PI_LO = fbits(float(C_LO))

BUF = 4352
import os
GATHER_AT = int(os.environ.get('GATHER_AT', 6))
SCR0 = 0
SCR1 = 12 * BUF
U_STRIDE = 4608
C_U = 24 * BUF
C_BOX = C_U + 6 * U_STRIDE
C_MAX = C_BOX + 2048
C_LDS = C_MAX + 64
L0 = 639; KR_COPY = 1344
GH_COPY = 928

def cmul(a, d, x, y, t):
    a(f"v_pk_mul_f32 v[{t}:{t+1}], v[{x}:{x+1}], v[{y}:{y+1}] op_sel:[0,0] op_sel_hi:[0,1]")
    a(f"v_pk_fma_f32 v[{d}:{d+1}], v[{x}:{x+1}], v[{y}:{y+1}], v[{t}:{t+1}] op_sel:[1,1,0] op_sel_hi:[1,0,1] neg_lo:[1,0,0]")

def gen_conv(a, R):
    lane = R.get(); t0 = R.get(); t1 = R.get(); t2 = R.get(); t3 = R.get()
    col = R.get(); rq = R.get(); p0 = R.get(); p1 = R.get(); p2 = R.get()
    stamp(a, 0)
    a(f"""
    s_load_dwordx16 s[36:51], s[0:1], 32
    s_load_dwordx2 s[4:5], s[0:1], 0
    s_load_dwordx2 s[6:7], s[0:1], 120
    v_and_b32 v{lane}, 63, v0
    v_and_b32 v{col}, 15, v0
    v_lshrrev_b32 v{rq}, 4, v{lane}
    s_lshr_b32 s22, s20, 1
    s_and_b32 s23, s20, 1
    s_mul_i32 s24, s21, 6
    s_add_u32 s24, s24, s22
    s_lshl_b32 s25, s24, 8
    s_lshl_b32 s26, s23, 7
    s_add_u32 s27, s25, s26
    s_xor_b32 s26, s26, 128
    s_add_u32 s28, s25, s26
    v_lshlrev_b32 v{p0}, 1, v{lane}
    v_add_u32 v{p1}, s28, v{p0}
    v_add_u32 v{p0}, s27, v{p0}
    v_lshrrev_b32 v{p2}, 4, v0
    v_mul_u32_u24 v{p2}, 1152, v{p2}
    v_lshl_add_u32 v{p2}, v{col}, 4, v{p2}
    s_mul_i32 s31, s16, 144
    s_and_b32 s31, s31, 0xffffff80
    s_mul_i32 s32, s17, {192*1152}
    s_add_u32 s31, s31, s32
    s_lshr_b32 s25, s24, 1
    s_lshl_b32 s25, s25, 2
    """)
    rd = R.get(); own = R.get(); prt = R.get()
    aT = R.get(); aT2 = R.get(); aU = R.get(); aS = R.get(); aKF = R.get(); aHF = R.get()
    kA = R.get(); kB = R.get(); kC = R.get(); oadr = R.get(); aB1 = R.get(); aB2 = R.get()
    a(f"""
    s_mul_i32 s56, s20, {BUF}
    s_mov_b32 m0, s56
    s_xor_b32 s57, s20, 1
    s_mul_i32 s57, s57, {BUF}
    s_and_b32 s60, s20, 14
    s_mul_i32 s60, s60, {BUF}
    s_add_u32 s60, s60, {SCR1}
    s_add_u32 s61, s60, {BUF}
    s_lshl_b32 s62, s23, 6
    s_mul_i32 s64, s22, {U_STRIDE}
    s_add_u32 s64, s64, {C_U + 512}
    v_mul_u32_u24 v{rd}, 272, v{col}
    v_lshl_add_u32 v{rd}, v{rq}, 4, v{rd}
    v_add_u32 v{rd}, s56, v{rd}
    v_lshlrev_b32 v{t0}, 4, v{lane}
    v_add_u32 v{own}, s56, v{t0}
    v_add_u32 v{prt}, s57, v{t0}
    v_lshrrev_b32 v{t1}, 1, v{rq}
    v_lshlrev_b32 v{t1}, 5, v{t1}
    v_and_b32 v{t2}, 1, v{rq}
    v_lshlrev_b32 v{t2}, 4, v{t2}
    v_sub_u32 v{t3}, v{t2}, v{t1}
    v_lshlrev_b32 v{t1}, 1, v{col}
    v_sub_u32 v{aT}, v{t3}, v{t1}
    v_and_b32 v{t2}, 1, v{col}
    v_cmp_eq_u32 vcc, 0, v{t2}
    v_mov_b32 v{t0}, {KR_COPY + 2}
    v_cndmask_b32 v{t0}, 0, v{t0}, vcc
    v_add_u32 v{aT}, v{aT}, v{t0}
    s_sub_u32 s63, s60, s62
    s_add_u32 s63, s63, {2*L0 - 9*128}
    v_add_u32 v{aT}, s63, v{aT}
    v_add_u32 v{aT2}, 640, v{aT}
    v_lshl_add_u32 v{aU}, v{col}, 5, v{t3}
    s_sub_u32 s65, s64, s62
    s_sub_u32 s65, s65, 384
    v_add_u32 v{aU}, s65, v{aU}
    v_lshlrev_b32 v{aS}, 5, v{col}
    v_lshl_add_u32 v{aS}, v{rq}, 4, v{aS}
    s_lshl_b32 s65, s23, 4
    s_sub_u32 s65, s64, s65
    s_sub_u32 s65, s65, 32
    v_add_u32 v{aS}, s65, v{aS}
    v_lshlrev_b32 v{aB1}, 4, v{rq}
    v_sub_u32 v{aB1}, v{aB1}, v{t1}
    v_mul_u32_u24 v{t2}, 258, v{t2}
    v_add_u32 v{aB1}, v{aB1}, v{t2}
    v_add_u32 v{aB1}, {C_BOX + 128 - 24}, v{aB1}
    s_lshl_b32 s65, s23, 9
    s_add_u32 s65, s65, {1024 + 8}
    v_add_u32 v{aB2}, s65, v{aB1}
    v_add_u32 v{t0}, 1, v{col}
    v_and_b32 v{t0}, 3, v{t0}
    v_mul_u32_u24 v{t0}, {GH_COPY + 2}, v{t0}
    v_sub_u32 v{t0}, v{t0}, v{t1}
    v_lshl_add_u32 v{t0}, v{rq}, 3, v{t0}
    s_mul_i32 s65, s23, 288
    s_add_u32 s65, s65, s61
    v_add_u32 v{aKF}, s65, v{t0}
    s_mul_i32 s65, s23, 176
    s_add_u32 s65, s65, s61
    v_add_u32 v{aHF}, s65, v{t0}
    v_lshlrev_b32 v{oadr}, 5, v{col}
    v_lshl_add_u32 v{oadr}, v{rq}, 3, v{oadr}
    """)
    par = R.get(10)
    for i in range(6):
        a(f"global_load_ushort v{par+i}, v{p0}, s[{36+2*i}:{37+2*i}]")
    for i in range(4):
        a(f"global_load_ushort v{par+6+i}, v{p1}, s[{40+2*i}:{41+2*i}]")
    xrow = [R.get(4, 4) for _ in range(4)]
    a(f"""
    s_load_dword s29, s[48:49], s25
    s_load_dword s30, s[50:51], s25
    s_mov_b32 s8, s4
    s_mov_b32 s9, s5
    s_mov_b32 s10, 2359296
    s_mov_b32 s11, 0x20000
    s_mov_b32 s12, s6
    s_mov_b32 s13, s7
    s_mov_b32 s14, {WS_SIZE}
    s_mov_b32 s15, 0x20000
    """)
    for i in range(4):
        a(f"buffer_load_dwordx4 v[{xrow[i]}:{xrow[i]+3}], v{p2}, s[8:11], s31 offen")
        if i < 3: a(f"s_add_u32 s31, s31, {48*1152}")
    R.put(p0); R.put(p1); R.put(p2)
    a(f"""
    v_lshrrev_b32 v{t0}, 6, v0
    v_lshrrev_b32 v{t1}, 1, v{t0}
    v_add_u32 v{t1}, 1, v{t1}
    v_and_b32 v{t0}, 1, v{t0}
    v_lshlrev_b32 v{t2}, 1, v{lane}
    v_sub_u32 v{t2}, v{t2}, v{t0}
    v_subrev_u32 v{t2}, 64, v{t2}
    v_add_u32 v{t3}, v{t2}, v{t1}
    v_lshlrev_b32 v{t1}, 1, v{t1}
    v_cmp_ge_u32 vcc, v{t1}, v{t3}
    v_mov_b32 v{t0}, 0x3c00
    v_cndmask_b32 v{t2}, 0, v{t0}, vcc
    v_add_u32 v{t3}, 1, v{t3}
    v_cmp_ge_u32 vcc, v{t1}, v{t3}
    v_mov_b32 v{t0}, 0x3c000000
    v_cndmask_b32 v{t3}, 0, v{t0}, vcc
    v_or_b32 v{t2}, v{t2}, v{t3}
    v_lshlrev_b32 v{t0}, 2, v0
    v_add_u32 v{t0}, {C_BOX}, v{t0}
    v_cmp_gt_u32 vcc, 512, v0
    v_cndmask_b32 v{t2}, 0, v{t2}, vcc
    v_cmp_gt_u32 vcc, 528, v0
    s_and_saveexec_b64 s[32:33], vcc
    ds_write_b32 v{t0}, v{t2}
    s_mov_b64 exec, s[32:33]
    v_lshrrev_b32 v{t0}, 7, v0
    v_mul_u32_u24 v{t0}, {U_STRIDE}, v{t0}
    v_and_b32 v{t1}, 127, v0
    v_lshl_add_u32 v{t0}, v{t1}, 2, v{t0}
    v_add_u32 v{t0}, {C_U}, v{t0}
    v_mov_b32 v{t1}, 0
    ds_write_b32 v{t0}, v{t1}
    """)
    a(f"""
    v_add_u32 v{t1}, 1, v{col}
    v_cmp_eq_u32 vcc, 15, v{col}
    v_cndmask_b32 v{t1}, v{t1}, 32, vcc
    v_add_u32 v{t2}, 16, v{lane}
    v_cmp_eq_u32 vcc, 0, v{rq}
    v_cndmask_b32 v{t1}, v{t1}, v{t2}, vcc
    v_lshlrev_b32 v{kA}, 2, v{t1}
    v_sub_u32 v{t0}, s60, v{oadr}
    s_cmp_eq_u32 s23, 0
    s_cselect_b64 vcc, -1, 0
    v_cndmask_b32 v{kA}, v{kA}, v{t0}, vcc
    v_cmp_eq_u32 s[66:67], 32, v{lane}
    v_lshl_add_u32 v{t1}, v{col}, 1, v{rq}
    v_cndmask_b32 v{t1}, v{t1}, 32, s[66:67]
    v_lshlrev_b32 v{t1}, 4, v{t1}
    v_sub_u32 v{kB}, s60, v{t1}
    v_and_b32 v{t1}, 3, v{col}
    v_mul_u32_u24 v{t1}, 144, v{t1}
    v_lshrrev_b32 v{t2}, 2, v{col}
    v_lshlrev_b32 v{t2}, 5, v{t2}
    v_sub_u32 v{t1}, v{t1}, v{t2}
    v_add_u32 v{t1}, 88, v{t1}
    v_and_b32 v{t2}, 1, v{col}
    v_mul_u32_u24 v{t2}, 176, v{t2}
    v_lshrrev_b32 v{t3}, 1, v{col}
    v_lshlrev_b32 v{t3}, 5, v{t3}
    v_sub_u32 v{t2}, v{t2}, v{t3}
    v_add_u32 v{t2}, {576 + 120 + 128}, v{t2}
    v_cmp_gt_u32 vcc, 8, v{col}
    v_cndmask_b32 v{t1}, v{t2}, v{t1}, vcc
    v_lshlrev_b32 v{t2}, 3, v{rq}
    v_sub_u32 v{t1}, v{t1}, v{t2}
    v_add_u32 v{kC}, s61, v{t1}
    """)
    a.wait(lg=0)
    a("s_barrier")
    BX = R.get(12, 4)
    def rd16(dst, base, byteoff):
        o = byteoff // 4
        a(f"ds_read2_b32 v[{dst}:{dst+1}], v{base} offset0:{o} offset1:{o+1}")
        a(f"ds_read2_b32 v[{dst+2}:{dst+3}], v{base} offset0:{o+2} offset1:{o+3}")
    rd16(BX, aB1, 0); rd16(BX+4, aB1, 520); rd16(BX+8, aB2, 0)
    R.put(aB1); R.put(aB2)
    dt = R.get()
    a(f"""
    s_and_b32 s25, s24, 1
    s_lshl_b32 s25, s25, 4
    s_lshr_b32 s29, s29, s25
    s_lshl_b32 s29, s29, 16
    s_lshr_b32 s30, s30, s25
    s_lshl_b32 s30, s30, 16
    v_mov_b32 v{dt}, s29
    v_mul_f32 v{dt}, {LOG2E}, v{dt}
    v_exp_f32 v{dt}, v{dt}
    v_cvt_pk_bf16_f32 v{dt}, v{dt}, v{dt}
    v_lshlrev_b32 v{dt}, 16, v{dt}
    s_mul_i32 s31, s21, 12
    v_mul_u32_u24 v{t3}, 4608, v0
    """)
    pp = R.get(8, 2)
    for i in range(4): a(f"v_lshlrev_b32 v{pp+i}, 16, v{par+2+i}")
    stamp(a, 1)
    for i in range(4): a(f"v_lshlrev_b32 v{pp+4+i}, 16, v{par+6+i}")
    are = R.get(); aim = R.get()
    W = R.get(2); W2 = R.get(2); tp = R.get(2)
    a(f"""
    v_lshlrev_b32 v{are}, 16, v{par}
    v_lshlrev_b32 v{aim}, 16, v{par+1}
    v_mul_f32 v{are}, v{dt}, v{are}
    v_mul_f32 v{aim}, v{dt}, v{aim}
    v_mul_f32 v{are}, {LOG2E}, v{are}
    """)
    cmul(a, W, pp+2, pp, tp)
    cmul(a, W2, pp+6, pp+4, tp)
    a(f"""
    v_max_f32 v{t0}, |v{W}|, |v{W+1}|
    v_max3_f32 v{t0}, |v{W2}|, |v{W2+1}|, v{t0}
    v_mul_f32 v{t0}, v{dt}, v{t0}
    v_mul_f32 v{W}, v{dt}, v{W}
    v_mul_f32 v{W+1}, v{dt}, v{W+1}
    v_max_u32_dpp v{t0}, v{t0}, v{t0} row_ror:1 row_mask:0xf bank_mask:0xf
    v_max_u32_dpp v{t0}, v{t0}, v{t0} row_ror:2 row_mask:0xf bank_mask:0xf
    v_max_u32_dpp v{t0}, v{t0}, v{t0} row_ror:4 row_mask:0xf bank_mask:0xf
    v_max_u32_dpp v{t0}, v{t0}, v{t0} row_ror:8 row_mask:0xf bank_mask:0xf
    v_readlane_b32 s52, v{t0}, 0
    v_readlane_b32 s53, v{t0}, 16
    v_readlane_b32 s54, v{t0}, 32
    v_readlane_b32 s55, v{t0}, 48
    s_max_u32 s52, s52, s53
    s_max_u32 s54, s54, s55
    s_max_u32 s52, s52, s54
    s_lshr_b32 s52, s52, 23
    s_add_u32 s52, s52, 8
    s_bfe_u32 s53, s30, 0x80017
    s_max_u32 s52, s52, s53
    s_max_u32 s52, s52, 14
    s_min_u32 s52, s52, 262
    s_sub_u32 s53, 267, s52
    s_lshl_b32 s53, s53, 23
    """)
    R.put(par, 10); R.put(W2, 2); R.put(pp, 8)
    Yk = {h: R.get(2) for h in (0, 2, 4, 6, 8, 10, 12, 14, 16)}
    a(f"""
    v_mul_f32 v{Yk[0]}, s53, v{W}
    v_mul_f32 v{Yk[0]+1}, s53, v{W+1}
    s_mov_b32 s54, {INV2PI_HI}
    s_mov_b32 s55, {INV2PI_LO}
    """)
    R.put(W, 2)
    E = {}
    e3 = R.get(3)
    for p in (1, 16, 256):
        e = R.get(2); E[p] = e
        if p == 1:
            a(f"v_exp_f32 v{t0}, v{are}"); th = aim
        else:
            a(f"v_mul_f32 v{t0}, {fbits(float(p))}, v{are}")
            a(f"v_mul_f32 v{t1}, {fbits(float(p))}, v{aim}")
            a(f"v_exp_f32 v{t0}, v{t0}"); th = t1
        a(f"""
        v_mul_f32 v{t2}, s54, v{th}
        v_fma_f32 v{e3}, v{th}, s54, -v{t2}
        v_fma_f32 v{e3}, v{th}, s55, v{e3}
        v_fract_f32 v{t2}, v{t2}
        v_add_f32 v{t2}, v{t2}, v{e3}
        v_cos_f32 v{e}, v{t2}
        v_sin_f32 v{e+1}, v{t2}
        v_mul_f32 v{e}, v{e}, v{t0}
        v_mul_f32 v{e+1}, v{e+1}, v{t0}
        """)
    R.put(are); R.put(aim); R.put(dt); R.put(e3, 3)
    def gathers():
        a.wait(vm=0)
        a("s_cmp_ge_u32 s20, 8")
        snap = a.branch("s_cbranch_scc1 CV_nox")
        for i in range(4):
            a.raw(f"buffer_load_dwordx3 v[{xrow[i]}:{xrow[i]+2}], v{t3}, s[8:11], s31 offen offset:{i*1152}")
        a.merge("CV_nox", snap)
    pk = [R.get() for _ in range(4)]; pki = [0]
    def put_row(buf, row, x, neg):
        p = pk[pki[0] % 4]; pki[0] += 1
        a(f"v_cvt_pk_f16_f32 v{p}, v{x}, {'-' if neg else ''}v{x+1}")
        a(f"ds_write_addtid_b32 v{p} offset:{buf*SCR1 + row*272}")
    def get_frags(buf, dst):
        for ks in range(4):
            a(f"ds_read_b128 v[{dst+4*ks}:{dst+4*ks+3}], v{rd} offset:{buf*SCR1 + ks*64}")
    Z = [R.get(2), R.get(2)]
    Yo = R.get(2)
    P = {1: E[256]}
    for i in range(2, 8): P[i] = R.get(2)
    tq = R.get(2)
    a(f"v_mov_b32 v{pk[3]}, 0x3c00")
    a(f"ds_write_addtid_b32 v{pk[3]} offset:0")
    put_row(0, 1, E[16], False)
    put_row(1, 0, Yk[0], True)
    zprev = E[16]; yprev = Yk[0]
    for h in range(1, 17):
        yd = Yk[h] if h % 2 == 0 else Yo
        cmul(a, yd, yprev, E[1], tp)
        if h + 1 <= 15:
            zd = Z[h % 2]
            cmul(a, zd, zprev, E[16], tq)
        if 1 <= h <= 6:
            cmul(a, P[h+1], P[h], E[256], P[h+1])
        if h <= 15: put_row(1, h, yd, True)
        if h + 1 <= 15:
            put_row(0, h + 1, zd, False); zprev = zd
        yprev = yd
        if h == GATHER_AT: gathers()
    R.put(Z[0], 2); R.put(Z[1], 2); R.put(E[1], 2); R.put(E[16], 2)
    ZF = R.get(16, 4); AF = R.get(16, 4)
    D = R.get(12, 4)
    get_frags(0, ZF)
    get_frags(1, AF)
    X = [Yo, R.get(2), R.get(2)]
    xi = [0]
    def prod_row(buf, row, y, p):
        x = X[xi[0] % 3]; xi[0] += 1
        cmul(a, x, y, p, x)
        put_row(buf, row, x, True)
    for h in range(8): prod_row(0, h, Yk[2*h], P[1])
    prod_row(0, 8, Yk[0], P[2]); prod_row(0, 9, Yk[0], P[4])
    for ks in range(4):
        a(f"v_mfma_f32_16x16x32_f16 v[{D}:{D+3}], v[{AF+4*ks}:{AF+4*ks+3}], v[{ZF+4*ks}:{ZF+4*ks+3}], {f'v[{D}:{D+3}]' if ks else 0}")
    get_frags(0, AF)
    for i in range(2):
        for mu in range(1, 5): prod_row(1, 4*i + mu - 1, Yk[4*mu], P[2+i])
    for ks in range(4):
        a(f"v_mfma_f32_16x16x32_f16 v[{D+4}:{D+7}], v[{AF+4*ks}:{AF+4*ks+3}], v[{ZF+4*ks}:{ZF+4*ks+3}], {f'v[{D+4}:{D+7}]' if ks else 0}")
    for i in range(4):
        for mu in (1, 2): prod_row(1, 8 + 2*i + mu - 1, Yk[8*mu], P[4+i])
    get_frags(1, AF)
    for x in X: R.put(x, 2)
    for h in Yk.values(): R.put(h, 2)
    for i in P.values(): R.put(i, 2)
    R.put(tq, 2)
    Z4 = R.get(4, 4)
    for j in range(4): a(f"v_mov_b32 v{Z4+j}, 0")
    for i in range(4):
        a(f"ds_write_b128 v{own}, v[{Z4}:{Z4+3}] offset:{SCR1 + i*1024}")
    a(f"ds_write_addtid_b32 v{Z4} offset:{SCR1 + 4096}")
    a(f"ds_write_b128 v{own}, v[{D}:{D+3}]")
    a(f"ds_write_b128 v{own}, v[{D+4}:{D+7}] offset:1024")
    for ks in range(4):
        a(f"v_mfma_f32_16x16x32_f16 v[{D+8}:{D+11}], v[{ZF+4*ks}:{ZF+4*ks+3}], v[{AF+4*ks}:{AF+4*ks+3}], {f'v[{D+8}:{D+11}]' if ks else 0}")
    R.put(ZF, 16); R.put(AF, 16); R.put(Z4, 4)
    stamp(a, 2)
    a("s_cmp_ge_u32 s20, 8")
    snap = a.branch("s_cbranch_scc1 CV_nomax")
    a.raw("s_waitcnt vmcnt(0)")
    stamp(a, 3)
    m = R.get(4)
    a("s_mov_b32 s58, 0x7fff7fff")
    regs = [xrow[i] + p for i in range(4) for p in range(3)]
    for i in range(3): a(f"v_and_b32 v{m+i}, s58, v{regs[i]}")
    for i in range(3, 12):
        a(f"v_and_b32 v{m+3}, s58, v{regs[i]}")
        a(f"v_pk_max_u16 v{m+i%3}, v{m+i%3}, v{m+3}")
    a(f"""
    v_pk_max_u16 v{m}, v{m}, v{m+1}
    v_pk_max_u16 v{m}, v{m}, v{m+2}
    v_lshlrev_b32 v{m+1}, 16, v{m}
    v_max_u32 v{m}, v{m}, v{m+1}
    v_max_u32_dpp v{m}, v{m}, v{m} row_ror:1 row_mask:0xf bank_mask:0xf
    v_max_u32_dpp v{m}, v{m}, v{m} row_ror:2 row_mask:0xf bank_mask:0xf
    v_max_u32_dpp v{m}, v{m}, v{m} row_ror:4 row_mask:0xf bank_mask:0xf
    v_max_u32_dpp v{m}, v{m}, v{m} row_ror:8 row_mask:0xf bank_mask:0xf
    v_mov_b32 v{m+1}, {C_MAX}
    s_mov_b32 exec_lo, 0x10001
    s_mov_b32 exec_hi, 0x10001
    ds_max_u32 v{m+1}, v{m}
    s_mov_b64 exec, -1
    """)
    R.put(m, 4)
    a.merge("CV_nomax", snap)
    a(f"ds_write_b128 v{own}, v[{D+8}:{D+11}] offset:2048")
    a.wait(lg=0)
    a("s_barrier")
    stamp(a, 4)
    PD = R.get(8, 4)
    a(f"""
    v_mov_b32 v{t1}, {C_MAX}
    ds_read_b32 v{t0}, v{t1}
    s_lshl_b32 s58, s23, 10
    v_add_u32 v{t2}, s58, v{prt}
    ds_read_b128 v[{PD}:{PD+3}], v{t2}
    ds_read_b128 v[{PD+4}:{PD+7}], v{t2} offset:1024
    v_readfirstlane_b32 s59, v{t0}
    s_lshr_b32 s59, s59, 23
    s_max_u32 s59, s59, 11
    s_min_u32 s59, s59, 254
    s_sub_u32 s58, 264, s59
    s_lshl_b32 s58, s58, 23
    s_add_u32 s59, s59, s52
    s_sub_u32 s59, s59, 277
    """)
    a("s_cmp_ge_u32 s20, 8")
    snap = a.branch("s_cbranch_scc1 CV_nocvt")
    f = R.get(4); o2 = R.get(4, 2)
    a(f"v_lshlrev_b32 v{t1}, 3, v0")
    a(f"v_add_u32 v{t1}, {C_U + 512}, v{t1}")
    for c in range(6):
        p = c >> 1; o = o2 + 2 * (c & 1)
        for i in range(4):
            if c & 1: a(f"v_and_b32 v{f+i}, 0xffff0000, v{xrow[i]+p}")
            else: a(f"v_lshlrev_b32 v{f+i}, 16, v{xrow[i]+p}")
        a(f"v_fma_mixlo_f16 v{o}, v{f}, s58, 0")
        a(f"v_fma_mixlo_f16 v{o+1}, v{f+2}, s58, 0")
        a(f"v_fma_mixhi_f16 v{o}, v{f+1}, s58, 0")
        a(f"v_fma_mixhi_f16 v{o+1}, v{f+3}, s58, 0")
        a(f"ds_write_b64 v{t1}, v[{o}:{o+1}] offset:{c*U_STRIDE}")
    R.put(f, 4); R.put(o2, 4)
    a.merge("CV_nocvt", snap)
    for x in xrow: R.put(x, 4)
    q = R.get(8, 4)
    a("s_cmp_eq_u32 s23, 1")
    snapK = a.branch("s_cbranch_scc1 CV_kfin1")
    a(f"""
    v_mov_b32 v{t1}, s30
    v_mul_f32 v{t1}, s53, v{t1}
    v_cmp_eq_u32 vcc, 0, v{lane}
    v_cndmask_b32 v{t1}, 0, v{t1}, vcc
    v_add_f32 v{D}, v{D}, v{t1}
    v_pk_add_f32 v[{D}:{D+1}], v[{D}:{D+1}], v[{PD}:{PD+1}]
    v_pk_add_f32 v[{D+2}:{D+3}], v[{D+2}:{D+3}], v[{PD+2}:{PD+3}]
    v_cvt_pk_f16_f32 v{q}, v{D+3}, v{D+2}
    v_cvt_pk_f16_f32 v{q+1}, v{D+1}, v{D}
    v_cvt_pk_f16_f32 v{q+2}, v{D+2}, v{D+1}
    ds_write_b64 v{kA}, v[{q}:{q+1}] offset:{2*(L0-3)}
    ds_write_b16 v{kA}, v{q} offset:{KR_COPY + 2*(L0-3) + 2}
    ds_write_b32 v{kA}, v{q+2} offset:{KR_COPY + 2*(L0-3) + 4}
    ds_write_b16_d16_hi v{kA}, v{q+1} offset:{KR_COPY + 2*(L0-3) + 8}
    """)
    a.wait(lg=0)
    a.nopflush()
    a.raw("s_branch CV_kfin_done")
    a.restore("CV_kfin1", snapK)
    for j in range(0, 8, 2): a(f"v_pk_add_f32 v[{D+4+j}:{D+5+j}], v[{D+4+j}:{D+5+j}], v[{PD+j}:{PD+j+1}]")
    c0, c2, c4, c6 = D+4, D+5, D+6, D+7
    c8 = PD
    T2 = D + 8
    a(f"""
    ds_bpermute_b32 v{c8}, v{kA}, v{c0}
    v_cvt_pk_f16_f32 v{q}, v{T2+3}, v{T2+2}
    v_cvt_pk_f16_f32 v{q+1}, v{T2+1}, v{T2}
    v_cvt_pk_f16_f32 v{q+2}, v{T2+2}, v{T2+1}
    ds_write_b64 v{kC}, v[{q}:{q+1}]
    ds_write_b16 v{kC}, v{q} offset:{GH_COPY + 2}
    ds_write_b32 v{kC}, v{q+2} offset:{GH_COPY + 4}
    ds_write_b16_d16_hi v{kC}, v{q+1} offset:{GH_COPY + 8}
    ds_write_b32 v{kC}, v{q} offset:{2*GH_COPY + 4}
    ds_write_b32 v{kC}, v{q+1} offset:{2*GH_COPY + 8}
    ds_write_b16 v{kC}, v{q} offset:{3*GH_COPY + 6}
    ds_write_b32 v{kC}, v{q+2} offset:{3*GH_COPY + 8}
    ds_write_b16_d16_hi v{kC}, v{q+1} offset:{3*GH_COPY + 12}
    v_cvt_pk_f16_f32 v{q+7}, v{c2}, v{c2}
    v_cndmask_b32 v{c2}, v{c2}, v{c0}, s[66:67]
    v_cndmask_b32 v{c4}, v{c4}, 0, s[66:67]
    v_cndmask_b32 v{c6}, v{c6}, 0, s[66:67]
    v_cndmask_b32 v{c8}, v{c8}, 0, s[66:67]
    v_cvt_pk_f16_f32 v{T2}, v{c8}, v{c6}
    v_cvt_pk_f16_f32 v{T2+1}, v{c4}, v{c4}
    v_cvt_pk_f16_f32 v{T2+2}, v{c4}, v{c2}
    v_cvt_pk_f16_f32 v{T2+3}, v{c0}, v{c0}
    v_mov_b32 v{q+4}, v{T2+1}
    v_cvt_pk_f16_f32 v{q+5}, v{c2}, v{c0}
    v_cvt_pk_f16_f32 v{q+6}, v{c6}, v{c4}
    v_mov_b32 v{t2}, s60
    s_mov_b32 exec_hi, 1
    ds_write_b128 v{kB}, v[{T2}:{T2+3}] offset:{2*(L0-256-7)}
    ds_write_b16 v{kB}, v{T2} offset:{KR_COPY + 2*(L0-256-7) + 2}
    ds_write_b32 v{kB}, v{q+6} offset:{KR_COPY + 2*(L0-256-7) + 4}
    ds_write_b64 v{kB}, v[{q+4}:{q+5}] offset:{KR_COPY + 2*(L0-256-7) + 8}
    ds_write_b16 v{kB}, v{T2+3} offset:{KR_COPY + 2*(L0-256-7) + 16}
    s_mov_b32 exec_lo, 0
    ds_write_b16 v{t2}, v{q+7} offset:{2*(L0-580)}
    ds_write_b16 v{t2}, v{q+7} offset:{2*(L0-579)}
    ds_write_b32 v{t2}, v{q+7} offset:{KR_COPY + 2*(L0-580) + 2}
    s_mov_b64 exec, -1
    """)
    a.wait(lg=0)
    a.label("CV_kfin_done")
    R.put(q, 8); R.put(D, 12); R.put(PD, 8)
    for p in pk: R.put(p)
    R.put(rd); R.put(tp, 2); R.put(kA); R.put(kB); R.put(kC)
    a("s_barrier")
    stamp(a, 5)
    TK = R.get(40, 4); KF = R.get(12, 4); HF = R.get(10, 2)
    acc = R.get(32, 4)
    NU = 4
    UF = [R.get(4, 4) for _ in range(NU)]
    US = R.get(4, 4)
    S1 = R.get(12, 4)
    W2f = R.get(4, 4); W3f = R.get(4, 4)
    gam = list(range(-3, 29))
    def ldU(i):
        if i < len(gam):
            a(f"ds_read_b128 v[{UF[i%NU]}:{UF[i%NU]+3}], v{aU} offset:{(gam[i]+3)*128}")
    def ldTK(sg):
        o = (9 - sg) * 32
        base = aT
        if o >= 160: base = aT2; o -= 160
        a(f"ds_read2_b32 v[{TK+4*sg}:{TK+4*sg+1}], v{base} offset0:{o} offset1:{o+1}")
        a(f"ds_read2_b32 v[{TK+4*sg+2}:{TK+4*sg+3}], v{base} offset0:{o+2} offset1:{o+3}")
    a(f"ds_read_b128 v[{US}:{US+3}], v{aS}")
    for i in range(NU - 1): ldU(i)
    for sg in (3, 7, 2, 6, 1, 5, 0, 4, 8, 9): ldTK(sg)
    for ai, aa in enumerate((2, 3, 4)):
        a(f"ds_read_b64 v[{KF+4*ai}:{KF+4*ai+1}], v{aKF} offset:{2*(79 - 16*aa)}")
        a(f"ds_read_b64 v[{KF+4*ai+2}:{KF+4*ai+3}], v{aKF} offset:{144 + 2*(79 - 16*aa)}")
    for aa in (7, 6, 5, 4):
        a(f"ds_read_b64 v[{HF+2*(7-aa)}:{HF+2*(7-aa)+1}], v{aHF} offset:{576 + 2*(127 - 16*aa)}")
    a(f"v_mov_b32 v{HF+8}, 0"); a(f"v_mov_b32 v{HF+9}, 0")
    inited = set()
    def mm(J, A, B):
        c = f"v[{acc+4*J}:{acc+4*J+3}]"
        a(f"v_mfma_f32_16x16x32_f16 {c}, v[{A}:{A+3}], v[{B}:{B+3}], {c if J in inited else 0}")
        inited.add(J)
    def direct(i):
        g = gam[i]
        ldU(i + NU - 1)
        for J in range(8):
            sg = 4*J - g
            if 0 <= sg <= 8: mm(J, TK + 4*sg, UF[i % NU])
            if sg == 16: mm(J, TK + 36, UF[i % NU])
    di = 0
    for b in range(6):
        a(f"v_mfma_f32_16x16x32_f16 v[{S1}:{S1+3}], v[{US}:{US+3}], v[{BX}:{BX+3}], 0")
        a(f"v_mfma_f32_16x16x32_f16 v[{S1+4}:{S1+7}], v[{US}:{US+3}], v[{BX+4}:{BX+7}], 0")
        if b < 4:
            a(f"v_mfma_f32_16x16x32_f16 v[{S1+8}:{S1+11}], v[{US}:{US+3}], v[{BX+8}:{BX+11}], 0")
        if b < 5: a(f"ds_read_b128 v[{US}:{US+3}], v{aS} offset:{512*(b+1)}")
        for _ in range(3): direct(di); di += 1
        a(f"""
        v_cvt_pk_f16_f32 v{W2f}, v{S1}, v{S1+1}
        v_cvt_pk_f16_f32 v{W2f+1}, v{S1+2}, v{S1+3}
        v_cvt_pk_f16_f32 v{W2f+2}, v{S1+4}, v{S1+5}
        v_cvt_pk_f16_f32 v{W2f+3}, v{S1+6}, v{S1+7}
        """)
        if b < 4:
            a(f"v_cvt_pk_f16_f32 v{W3f+2*(b&1)}, v{S1+8}, v{S1+9}")
            a(f"v_cvt_pk_f16_f32 v{W3f+2*(b&1)+1}, v{S1+10}, v{S1+11}")
        for _ in range(2): direct(di); di += 1
        for ai, aa in enumerate((2, 3, 4)):
            if b + aa <= 7: mm(b + aa, W2f, KF + 4*ai)
        if b in (1, 3):
            Bq = b >> 1
            for aa in (4, 5, 6, 7):
                if aa + 2*Bq <= 7: mm(aa + 2*Bq, W3f, HF + 2*(7-aa))
    while di < len(gam): direct(di); di += 1
    assert len(inited) == 8
    for x in UF: R.put(x, 4)
    R.put(US, 4); R.put(S1, 12); R.put(W2f, 4); R.put(W3f, 4); R.put(TK, 40); R.put(BX, 12); R.put(KF, 12); R.put(HF, 10)
    stamp(a, 6)
    a(f"""
    s_lshl_b32 s65, s23, 11
    s_lshl_b32 s66, s24, 12
    s_add_u32 s66, s66, s65
    s_add_u32 s66, s66, {WS_BT}
    """)
    PA = R.get(16, 4)
    def tail(w):
        keep = acc + 16*w; send = acc + 16*(1-w)
        for j in range(4):
            a(f"ds_write_b128 v{own}, v[{send+4*j}:{send+4*j+3}] offset:{j*1024}")
        a.wait(lg=0)
        a("s_barrier")
        stamp(a, 7)
        for j in range(4):
            a(f"ds_read_b128 v[{PA+4*j}:{PA+4*j+3}], v{prt} offset:{j*1024}")
        for j in range(4):
            k = keep + 4*j
            a(f"v_pk_add_f32 v[{k}:{k+1}], v[{k}:{k+1}], v[{PA+4*j}:{PA+4*j+1}]")
            a(f"v_pk_add_f32 v[{k+2}:{k+3}], v[{k+2}:{k+3}], v[{PA+4*j+2}:{PA+4*j+3}]")
            for e in range(4): a(f"v_ldexp_f32 v{k+e}, v{k+e}, s59")
            a(f"""
            v_cvt_pk_bf16_f32 v{k}, v{k}, v{k+1}
            v_cvt_pk_bf16_f32 v{k+1}, v{k+2}, v{k+3}
            buffer_store_dwordx2 v[{k}:{k+1}], v{oadr}, s[12:15], s66 offen offset:{512*j}
            """)
        stamp(a, 8)
        stamp_dump(a, 9, 12, 20, t0, t1)
        a.raw("s_endpgm")
    a("s_cmp_eq_u32 s23, 1")
    snapE = a.branch("s_cbranch_scc1 CV_tail1")
    tail(0)
    a.restore("CV_tail1", snapE)
    tail(1)
```

```python
from asmlib import *
import os
from layout import *
from k1_conv import LOG2E

ASLOT = 16384
BSLOT = 24576
BRING = 3 * ASLOT
G_KVI = BRING + 3 * BSLOT
KVI_H = 5632
G_LDS = G_KVI + 2 * KVI_H + 1024
EPS = 0x358637bd

def lanemask(f):
    m = 0
    for l in range(64):
        if f(l & 15, l >> 4): m |= 1 << l
    return m
def set_exec(a, m):
    a(f"s_mov_b32 exec_lo, {m & 0xffffffff:#x}")
    a(f"s_mov_b32 exec_hi, {m >> 32:#x}")

def gen_gemm(a, R):
    a("s_cmp_ge_u32 s20, 8")
    a("s_cbranch_scc1 GM_exit")
    lane = R.get(); t0 = R.get(); t1 = R.get(); t2 = R.get(); t3 = R.get()
    stamp(a, 0)
    a(f"""
    s_load_dwordx4 s[4:7], s[0:1], 0
    s_load_dwordx4 s[36:39], s[0:1], 112
    v_and_b32 v{lane}, 63, v0
    s_sub_u32 s21, s17, 12
    s_and_b32 s22, s16, 3
    s_lshl_b32 s22, s22, 2
    s_lshr_b32 s23, s16, 2
    s_and_b32 s24, s21, 3
    s_lshr_b32 s25, s21, 2
    s_lshl_b32 s26, s23, 1
    s_add_u32 s26, s26, s24
    s_mul_i32 s27, s23, 5
    s_add_u32 s27, s27, s25
    s_cmp_ge_u32 s21, 16
    s_cselect_b32 s24, s26, s24
    s_cselect_b32 s27, 4, s27
    s_add_u32 s28, s22, s24
    s_add_u32 s29, s24, s25
    s_lshl_b32 s29, s29, 1
    s_cmp_ge_u32 s29, 9
    s_cselect_b32 s30, 9, 0
    s_sub_u32 s29, s29, s30
    """)
    a(f"""
    s_mov_b32 s8, s4
    s_mov_b32 s9, s5
    s_mov_b32 s10, 2359296
    s_mov_b32 s11, 0x20000
    s_mov_b32 s12, s6
    s_mov_b32 s13, s7
    s_mov_b32 s14, 1990656
    s_mov_b32 s15, 0x20000
    s_mov_b32 s40, s38
    s_mov_b32 s41, s39
    s_mov_b32 s42, {WS_SIZE}
    s_mov_b32 s43, 0x20000
    s_mov_b32 s44, s36
    s_mov_b32 s45, s37
    s_mov_b32 s46, 256
    s_mov_b32 s47, 0x20000
    """)
    a("s_cmp_lt_u32 s20, 4")
    snapC = a.branch("s_cbranch_scc1 GM_cons")
    vA = R.get(4); vB = R.get(6)
    a(f"""
    s_sub_u32 s48, s20, 4
    v_lshrrev_b32 v{t0}, 3, v{lane}
    v_mul_u32_u24 v{t0}, 1152, v{t0}
    v_and_b32 v{t1}, 7, v{lane}
    v_bfe_u32 v{t2}, v{lane}, 4, 1
    v_xor_b32 v{t1}, v{t1}, v{t2}
    v_lshl_add_u32 v{vA}, v{t1}, 4, v{t0}
    v_xor_b32 v{vA+1}, 32, v{vA}
    v_xor_b32 v{vA+2}, 64, v{vA}
    v_xor_b32 v{vA+3}, 0x60, v{vA}
    s_lshl_b32 s49, s28, 7
    s_lshl_b32 s50, s48, 5
    s_add_u32 s49, s49, s50
    s_mul_i32 s49, s49, 1152
    s_lshl_b32 s50, s48, 12
    s_mul_i32 s51, s48, {16*3456}
    s_mul_i32 s52, s48, {16*384}
    s_add_u32 s52, s52, {BRING}
    """)
    a(f"""
    s_mul_i32 s53, s27, 144
    s_add_u32 s54, s53, {2304 - 144}
    s_add_u32 s53, s53, 1152
    s_mul_i32 s55, s27, 96
    s_sub_u32 s55, s55, 288
    s_cmp_eq_u32 s27, 8
    s_cselect_b32 s53, 768, s53
    s_cselect_b32 s54, 768, s54
    s_cselect_b32 s55, 768, s55
    """)
    def stage_st(s):
        a(f"""
        s_add_u32 s56, s29, {s}
        s_cmp_ge_u32 s56, 9
        s_cselect_b32 s57, 9, 0
        s_sub_u32 s56, s56, s57
        s_lshl_b32 s57, s56, 7
        s_add_u32 s57, s57, s49
        s_mul_i32 s58, s56, {64*3456}
        s_add_u32 s58, s58, s51
        """)
    def issueA(s):
        for i in range(4):
            a(f"""
            s_add_u32 s59, s57, {8*i*1152}
            s_add_u32 m0, s50, {(s % 3)*ASLOT + i*1024}
            buffer_load_dwordx4 v{vA + i}, s[8:11], s59 offen lds
            """)
    def issueB(s, i):
        a(f"""
        s_add_u32 m0, s52, {(s % 3)*BSLOT + i*1024}
        buffer_load_dwordx4 v{vB + i}, s[12:15], s58 offen lds
        """)
    stage_st(0)
    issueA(0)
    a("s_mov_b32 s60, 2731")
    for i in range(6):
        a(f"""
        v_add_u32 v{t0}, {64*i}, v{lane}
        v_mul_lo_u32 v{t1}, v{t0}, s60
        v_lshrrev_b32 v{t1}, 16, v{t1}
        v_mul_u32_u24 v{t2}, 24, v{t1}
        v_sub_u32 v{t0}, v{t0}, v{t2}
        v_and_b32 v{t2}, 2, v{t1}
        v_lshrrev_b32 v{t3}, 1, v{t1}
        v_and_b32 v{t3}, 4, v{t3}
        v_or_b32 v{t2}, v{t2}, v{t3}
        v_xor_b32 v{t0}, v{t0}, v{t2}
        v_mov_b32 v{t2}, s53
        v_mov_b32 v{t3}, s54
        v_cmp_lt_u32 vcc, 8, v{t0}
        v_cndmask_b32 v{t2}, v{t2}, v{t3}, vcc
        v_mov_b32 v{t3}, s55
        v_cmp_lt_u32 vcc, 17, v{t0}
        v_cndmask_b32 v{t2}, v{t2}, v{t3}, vcc
        v_lshl_add_u32 v{t2}, v{t0}, 4, v{t2}
        v_mul_u32_u24 v{t1}, 3456, v{t1}
        v_add_u32 v{vB+i}, v{t1}, v{t2}
        """)
        issueB(0, i)
    stamp(a, 1)
    a("s_barrier")
    for s in (1,):
        stage_st(s); issueA(s)
        for i in range(6): issueB(s, i)
    gA = R.get(); gacc = R.get(2); gx = R.get(32, 4); ga = R.get(8)
    a(f"""
    s_load_dwordx2 s[62:63], s[0:1], 96
    s_cmp_eq_u32 s27, 8
    s_cselect_b32 s61, s48, 9
    v_bfe_u32 v{t0}, v{lane}, 1, 1
    v_lshrrev_b32 v{t1}, 2, v{lane}
    v_and_b32 v{t1}, 6, v{t1}
    v_or_b32 v{t0}, v{t0}, v{t1}
    v_lshlrev_b32 v{t0}, 4, v{t0}
    v_lshl_add_u32 v{gA}, v{lane}, 7, v{t0}
    s_lshl_b32 s60, s48, 13
    v_add_u32 v{gA}, s60, v{gA}
    v_mov_b32 v{gacc}, 0
    v_mov_b32 v{gacc+1}, 0
    """)
    a.wait(lg=0)
    def gate_ld(s):
        for l in f"""s_add_u32 s56, s29, {s}
        s_cmp_ge_u32 s56, 9
        s_cselect_b32 s60, 9, 0
        s_sub_u32 s56, s56, s60
        s_lshl_b32 s56, s56, 7
        s_load_dwordx16 s[64:79], s[62:63], s56
        s_add_u32 s56, s56, 64
        s_load_dwordx16 s[80:95], s[62:63], s56""".split("\n"): a.raw(l.strip())
    def gate(s):
        a("s_cmp_ge_u32 s61, 2")
        sn = a.branch(f"s_cbranch_scc1 GM_nogate{s}")
        a(f"v_add_u32 v{ga}, {(s % 3)*ASLOT}, v{gA}")
        for c in range(1, 8): a(f"v_xor_b32 v{ga+c}, {16*c}, v{ga}")
        for c in range(8): a(f"ds_read_b128 v[{gx+4*c}:{gx+4*c+3}], v{ga+c}")
        a.wait(lg=0)
        for i in range(32): a(f"v_dot2c_f32_bf16 v{gacc+(i&1)}, s{64+i}, v{gx+i}")
        if s < 8: gate_ld(s + 1)
        a.merge(f"GM_nogate{s}", sn)
    stamp(a, 2)
    a.wait(vm=10)
    stamp(a, 3)
    if STAMPS: stamp_dump(a, 4, 40, 20, t0, t1); a.raw("s_mov_b64 exec, -1")
    gate_ld(0)
    a("s_barrier")
    stage_st(2); issueA(2)
    for i in range(6): issueB(2, i)
    for s in range(8):
        gate(s)
        a.wait(vm=10 if s + 2 <= 8 else 0)
        a("s_barrier")
        if s + 3 <= 8 and not os.environ.get("NOLOAD"):
            stage_st(s + 3); issueA(s + 3)
            for i in range(6): issueB(s + 3, i)
    gate(8)
    a("s_cmp_ge_u32 s61, 2")
    a("s_cbranch_scc1 GM_exit")
    a("s_nop 3")
    a(f"""
    v_add_f32 v{gacc}, v{gacc}, v{gacc+1}
    v_cvt_pk_bf16_f32 v{gacc}, v{gacc}, v{gacc}
    v_lshlrev_b32 v{gacc}, 16, v{gacc}
    v_mul_f32 v{gacc}, {LOG2E}, v{gacc}
    v_exp_f32 v{gacc}, -v{gacc}
    v_add_f32 v{gacc}, 1.0, v{gacc}
    v_rcp_f32 v{gacc}, v{gacc}
    v_cvt_pk_bf16_f32 v{gacc}, v{gacc}, v{gacc}
    v_lshlrev_b32 v{gacc}, 16, v{gacc}
    v_lshlrev_b32 v{t0}, 2, v{lane}
    s_lshl_b32 s56, s28, 9
    s_lshl_b32 s60, s48, 8
    s_add_u32 s56, s56, s60
    s_add_u32 s56, s56, {WS_G}
    buffer_store_dword v{gacc}, v{t0}, s[40:43], s56 offen
    """)
    a.raw("s_endpgm")
    R.put(gA); R.put(gacc, 2); R.put(gx, 32); R.put(ga, 8)
    R.put(vA, 4); R.put(vB, 6)
    a.restore("GM_cons", snapC)
    col = R.get(); rq = R.get()
    acc = R.get(96, 4)
    AF = [R.get(16, 4), R.get(16, 4)]
    BF = R.get(24, 4)
    aA = R.get(2); aB = R.get(6)
    ac = lambda mt, T: acc + 4 * (mt * 6 + T)
    tk = AF[1]
    a(f"""
    s_mov_b32 s61, 1
    s_lshl_b32 s31, s27, 2
    v_mov_b32 v{tk}, 1
    v_mov_b32 v{tk+1}, 0
    s_cmp_eq_u32 s27, 8
    s_cselect_b32 s62, 1, s20
    s_cmp_lg_u32 s62, 0
    """)
    snapT = a.branch("s_cbranch_scc1 GM_notick")
    a.raw("s_mov_b64 exec, 1")
    a.raw(f"buffer_atomic_add v{tk}, v{tk+1}, s[44:47], s31 offen sc0")
    a.raw("s_mov_b64 exec, -1")
    a.merge("GM_notick", snapT)
    a(f"""
    s_and_b32 s48, s20, 1
    s_lshr_b32 s49, s20, 1
    v_and_b32 v{col}, 15, v{lane}
    v_lshrrev_b32 v{rq}, 4, v{lane}
    v_lshrrev_b32 v{t0}, 1, v{col}
    v_xor_b32 v{t0}, v{t0}, v{rq}
    v_lshlrev_b32 v{t0}, 4, v{t0}
    v_and_b32 v{t1}, 12, v{col}
    v_add_u32 v{t1}, v{t1}, v{col}
    v_lshl_add_u32 v{t0}, v{t1}, 7, v{t0}
    s_lshl_b32 s50, s48, 13
    v_add_u32 v{aA}, s50, v{t0}
    v_xor_b32 v{aA+1}, 64, v{aA}
    """)
    rr = BF; cc = BF + 1; gg = BF + 2
    a(f"""
    v_lshrrev_b32 v{rr}, 2, v{lane}
    v_and_b32 v{rr}, 3, v{rr}
    v_and_b32 v{cc}, 3, v{lane}
    v_and_b32 v{gg}, 2, v{rr}
    v_and_b32 v{t0}, 1, v{rq}
    v_lshl_or_b32 v{gg}, v{t0}, 2, v{gg}
    v_lshl_add_u32 v{rr}, v{rq}, 3, v{rr}
    v_mul_u32_u24 v{rr}, 384, v{rr}
    v_add_u32 v{rr}, {BRING}, v{rr}
    s_mul_i32 s51, s49, 9
    s_mul_i32 s52, s49, 6
    s_mul_i32 s53, s49, 24
    s_cmp_eq_u32 s27, 8
    s_cselect_b64 s[54:55], -1, 0
    """)
    for T in range(6):
        if T < 4:
            a(f"v_add_u32 v{t0}, s51, v{cc}")
            k = [0, 5, 18, 23][T]
            if k: a(f"v_add_u32 v{t0}, {k}, v{t0}")
        elif T == 5:
            a(f"v_add_u32 v{t0}, s52, v{cc}"); a(f"v_add_u32 v{t0}, 38, v{t0}")
        else:
            a(f"""
            v_mul_u32_u24 v{t0}, 18, v{cc}
            v_add_u32 v{t0}, s51, v{t0}
            v_add_u32 v{t0}, 4, v{t0}
            v_add_u32 v{t1}, s52, v{cc}
            v_add_u32 v{t1}, 34, v{t1}
            v_cmp_lt_u32 vcc, 1, v{cc}
            v_cndmask_b32 v{t0}, v{t0}, v{t1}, vcc
            """)
        a(f"""
        v_add_u32 v{t1}, s53, v{cc}
        v_add_u32 v{t1}, {4*T}, v{t1}
        v_cndmask_b32 v{t0}, v{t0}, v{t1}, s[54:55]
        v_lshrrev_b32 v{t1}, 1, v{t0}
        v_xor_b32 v{t1}, v{t1}, v{gg}
        v_and_b32 v{t0}, 1, v{t0}
        v_lshlrev_b32 v{t0}, 3, v{t0}
        v_lshl_add_u32 v{t0}, v{t1}, 4, v{t0}
        v_add_u32 v{aB+T}, v{rr}, v{t0}
        """)
    a(f"""
    v_mov_b32 v{t2}, {EPS:#x}
    v_cndmask_b32 v{t0}, 0, v{t2}, s[54:55]
    v_lshrrev_b32 v{t3}, 2, v{col}
    v_cmp_eq_u32 vcc, 1, v{t3}
    v_cndmask_b32 v{t1}, v{t2}, v{t0}, vcc
    """)
    for mt in range(4):
        for T in range(6):
            src = t0 if T in (2, 3) else (t1 if T == 4 else t2)
            for j in range(4): a(f"v_mov_b32 v{ac(mt,T)+j}, v{src}")
    a.raw("s_barrier")
    a.raw("s_waitcnt vmcnt(0)")
    a(f"v_readfirstlane_b32 s61, v{tk}")
    a("s_cmp_lg_u32 s61, 0")
    snapZ = a.branch("s_cbranch_scc1 GM_nozero")
    Z4 = BF
    for j in range(4): a(f"v_mov_b32 v{Z4+j}, 0")
    a(f"""
    v_lshlrev_b32 v{Z4+4}, 4, v{lane}
    s_mul_i32 s33, s27, 5184
    s_add_u32 s33, s33, {WS_KVS}
    """)
    for i in range(5):
        a.raw(f"buffer_store_dwordx4 v[{Z4}:{Z4+3}], v{Z4+4}, s[40:43], s33 offen sc1")
        a.raw("s_add_u32 s33, s33, 1024")
    a.raw("s_mov_b64 exec, 15")
    a.raw(f"buffer_store_dwordx4 v[{Z4}:{Z4+3}], v{Z4+4}, s[40:43], s33 offen sc1")
    a.raw("s_mul_i32 s33, s27, 288")
    a.raw(f"s_add_u32 s33, s33, {WS_KVS + 576*72}")
    a.raw("s_mov_b64 exec, 0x3ffff")
    a.raw(f"buffer_store_dwordx4 v[{Z4}:{Z4+3}], v{Z4+4}, s[40:43], s33 offen sc1")
    a.raw("s_mov_b64 exec, -1")
    a.raw("s_nop 2")
    a.merge("GM_nozero", snapZ)
    def setflag():
        a("s_cmp_lg_u32 s61, 0")
        sn = a.branch("s_cbranch_scc1 GM_noflag")
        a.raw("s_waitcnt vmcnt(0)")
        a.raw("s_mov_b64 exec, 1")
        a.raw(f"v_mov_b32 v{t0}, 1")
        a.raw(f"v_mov_b32 v{t1}, 0")
        a.raw(f"buffer_atomic_add v{t0}, v{t1}, s[44:47], s31 offen offset:64")
        a.raw("s_mov_b64 exec, -1")
        a.merge("GM_noflag", sn)
    def ldA1(t, mt):
        f = AF[t & 1]
        return f"ds_read_b128 v[{f+4*mt}:{f+4*mt+3}], v{aA + (t & 1)} offset:{((t>>1)%3)*ASLOT + (mt>>1)*4096 + (mt&1)*512}"
    def ldB1(t, T, h):
        o = ((t >> 1) % 3) * BSLOT + (t & 1) * 32 * 384 + h * 4 * 384
        return f"ds_read_b64_tr_b16 v[{BF+4*T+2*h}:{BF+4*T+2*h+1}], v{aB+T} offset:{o}"
    a.wait(lg=0)
    a("s_barrier")
    stamp(a, 1)
    for mt in range(4): a(ldA1(0, mt))
    for T in range(6):
        a(ldB1(0, T, 0)); a(ldB1(0, T, 1))
    for t in range(18):
        f = AF[t & 1]
        if t == 4: stamp(a, 6)
        if t == 10: stamp(a, 7)
        fill = {g: [] for g in range(24)}
        if t > 0:
            fill[0].append(ldB1(t, 5, 0)); fill[1].append(ldB1(t, 5, 1))
        if t < 17:
            n = t + 1
            if t & 1 == 0:
                for T in range(5):
                    fill[4*(T+1)].append(ldB1(n, T, 0)); fill[4*(T+1)+1].append(ldB1(n, T, 1))
                for mt in range(4): fill[6 + 4*mt].append(ldA1(n, mt))
            else:
                fill[7].append("BAR")
                seq = [ldB1(n, 0, 0), ldB1(n, 0, 1), ldA1(n, 0), ldA1(n, 1), ldB1(n, 1, 0), ldB1(n, 1, 1), ldA1(n, 2), ldA1(n, 3),
                       ldB1(n, 2, 0), ldB1(n, 2, 1), ldB1(n, 3, 0), ldB1(n, 3, 1), ldB1(n, 4, 0), ldB1(n, 4, 1)]
                for i, x in enumerate(seq): fill[8 + i].append(x)
        for T in range(6):
            for mt in range(4):
                c = f"v[{ac(mt,T)}:{ac(mt,T)+3}]"
                a(f"v_mfma_f32_16x16x32_bf16 {c}, v[{f+4*mt}:{f+4*mt+3}], v[{BF+4*T}:{BF+4*T+3}], {c}")
                for x in fill[4*T + mt]:
                    if x == "BAR":
                        a.wait(lg=0)
                        a("s_barrier")
                        if t == 3: setflag()
                    else: a(x)
    stamp(a, 2)
    R.put(AF[0], 16); R.put(AF[1], 16); R.put(BF, 24); R.put(aA, 2); R.put(aB, 6)
    tm = R.get(4, 2); L2 = R.get(2); fl = R.get(); zr = R.get()
    a(f"""
    v_mov_b32 v{zr}, 0
    buffer_load_dword v{fl}, v{zr}, s[44:47], s31 offen offset:64 sc1
    v_mov_b32 v{L2}, {LOG2E:#x}
    v_mov_b32 v{L2+1}, {LOG2E:#x}
    s_mov_b32 s56, {EPS:#x}
    """)
    def phi(r, keepmask=None):
        a(f"v_pk_mul_f32 v[{tm}:{tm+1}], v[{r}:{r+1}], v[{L2}:{L2+1}]")
        a(f"v_pk_mul_f32 v[{tm+2}:{tm+3}], v[{r+2}:{r+3}], v[{L2}:{L2+1}]")
        for j in range(4): a(f"v_exp_f32_e64 v{tm+j}, v{tm+j} clamp")
        if keepmask is not None: set_exec(a, keepmask)
        for j in range(4): a(f"v_max_f32 v{r+j}, s56, v{r+j}")
        a(f"v_pk_add_f32 v[{r}:{r+1}], v[{r}:{r+1}], v[{tm}:{tm+1}]")
        a(f"v_pk_add_f32 v[{r+2}:{r+3}], v[{r+2}:{r+3}], v[{tm+2}:{tm+3}]")
        if keepmask is not None: a("s_mov_b64 exec, -1")
    def pack(d, r):
        a(f"v_cvt_pk_bf16_f32 v{d}, v{r}, v{r+1}")
        a(f"v_cvt_pk_bf16_f32 v{d+1}, v{r+2}, v{r+3}")
    vq = R.get()
    a(f"""
    v_lshlrev_b32 v{vq}, 12, v{col}
    v_lshl_add_u32 v{vq}, v{rq}, 4, v{vq}
    s_lshl_b32 s57, s28, 8
    s_lshl_b32 s58, s48, 7
    s_add_u32 s57, s57, s58
    """)
    a("s_cmp_eq_u32 s27, 8")
    snapQ = a.branch("s_cbranch_scc1 GM_epi_q")
    F = {(T, p): R.get(4, 4) for T in range(5) for p in range(2)}
    AL = [R.get(4, 4) for p in range(2)]
    m_nv = lanemask(lambda c, r: (c >> 2) != 1)
    KVt = [ac(0, 0), ac(0, 1), ac(0, 2), ac(0, 3), ac(0, 4), ac(1, 0), ac(1, 1)]
    prods = [(('F', 2), 0), (('F', 3), 1), (('L', 0), 0), (('L', 0), 1), (('F', 2), 4), (('F', 3), 4), (('L', 0), 4)]
    a(f"v_cmp_eq_u32 s[64:65], 1, v{t3}")
    a(f"v_mov_b32 v{t1}, 0x3f803f80")
    for p in range(2):
        for mt in (2*p, 2*p+1):
            for T in (0, 1, 4, 2, 3):
                r = ac(mt, T)
                if T in (0, 1): phi(r)
                if T == 4: phi(r, m_nv)
                pack(F[(T, p)] + 2 * (mt & 1), r)
        for j in range(4): a(f"v_cndmask_b32 v{AL[p]+j}, v{t1}, v{F[(4,p)]+j}, s[64:65]")
        for i, (A_, B_) in enumerate(prods):
            Ar = F[(A_[1], p)] if A_[0] == 'F' else AL[p]
            Br = F[(B_, p)]
            c = f"v[{KVt[i]}:{KVt[i]+3}]"
            a(f"v_mfma_f32_16x16x32_bf16 {c}, v[{Ar}:{Ar+3}], v[{Br}:{Br+3}], {c if p else 0}")
    stamp(a, 4)
    b1 = AL[0]; b2 = AL[0] + 1; b3 = AL[0] + 2
    a(f"""
    s_mul_i32 s63, s48, {KVI_H}
    s_mul_i32 s60, s49, {2*324*4}
    s_add_u32 s60, s60, s63
    s_add_u32 s60, s60, {G_KVI}
    v_mul_u32_u24 v{b1}, {4*18*4}, v{rq}
    v_lshl_add_u32 v{b1}, v{col}, 2, v{b1}
    v_add_u32 v{b1}, s60, v{b1}
    v_lshlrev_b32 v{b2}, 2, v{col}
    v_add_u32 v{b2}, s60, v{b2}
    s_mul_i32 s60, s49, {2*18*4}
    s_add_u32 s60, s60, s63
    s_add_u32 s60, s60, {G_KVI + 1296*4}
    v_lshlrev_b32 v{b3}, 2, v{col}
    v_add_u32 v{b3}, s60, v{b3}
    s_mul_i32 s58, s27, 48
    s_mul_i32 s59, s49, 24
    s_add_u32 s58, s58, s59
    s_lshl_b32 s58, s58, 12
    s_add_u32 s58, s58, s57
    s_add_u32 s59, s58, {8*4096}
    s_sub_u32 s58, s58, {8*4096}
    """)
    def add(base, reg, off): a(f"ds_write_b32 v{base}, v{reg} offset:{4*off}")
    K = KVt
    for j in range(4): add(b1, K[0] + j, j * 18)
    for j in range(4): add(b1, K[1] + j, 324 + (2 + j) * 18 + 2)
    set_exec(a, lanemask(lambda c, r: r == 1))
    add(b2, K[2], 16 * 18); add(b2, K[2] + 1, 17 * 18)
    add(b2, K[3] + 2, 324 + 2); add(b2, K[3] + 3, 324 + 18 + 2)
    set_exec(a, lanemask(lambda c, r: r == 2))
    add(b3, K[2], 0); add(b3, K[3], 18 + 2)
    set_exec(a, lanemask(lambda c, r: c < 2))
    for j in range(4): add(b1, K[4] + j, j * 18 + 16)
    set_exec(a, lanemask(lambda c, r: c in (2, 3)))
    for j in range(4): add(b1, K[5] + j, 324 + (2 + j) * 18 - 2)
    set_exec(a, lanemask(lambda c, r: r == 1 and c < 2))
    add(b2, K[6], 16 * 18 + 16); add(b2, K[6] + 1, 17 * 18 + 16)
    set_exec(a, lanemask(lambda c, r: r == 1 and c in (2, 3)))
    add(b2, K[6] + 2, 324 - 2); add(b2, K[6] + 3, 324 + 18 - 2)
    set_exec(a, lanemask(lambda c, r: r == 2 and c < 4))
    add(b3, K[6], 16)
    a("s_mov_b64 exec, -1")
    a(f"v_add_u32 v{t0}, s58, v{vq}")
    set_exec(a, lanemask(lambda c, r: c >= 8))
    for p in range(2):
        d = F[(4, p)]
        a(f"buffer_store_dwordx4 v[{d}:{d+3}], v{t0}, s[40:43], 0 offen offset:{64*p}")
    a("s_mov_b64 exec, -1")
    a.wait(lg=0)
    a("s_barrier")
    stamp(a, 5)
    V6 = ac(2, 0); V7 = ac(3, 0)
    a(f"""
    v_lshlrev_b32 v{t0}, 2, v0
    v_add_u32 v{t1}, {G_KVI}, v{t0}
    """)
    for i in range(6): a(f"ds_read_b32 v{V6+i}, v{t1} offset:{1024*i}")
    for i in range(6): a(f"ds_read_b32 v{V7+i}, v{t1} offset:{KVI_H + 1024*i}")
    a(f"""
    s_mul_i32 s33, s27, 5184
    s_add_u32 s33, s33, {WS_KVS}
    s_add_u32 s35, s33, 5120
    s_mul_i32 s34, s27, 288
    s_add_u32 s34, s34, {WS_KVS + 576*72 - 64}
    v_add_u32 v{t1}, s35, v{t0}
    v_add_u32 v{t2}, s34, v{t0}
    v_cmp_gt_u32 vcc, 16, v0
    v_cndmask_b32 v{t1}, v{t2}, v{t1}, vcc
    v_mov_b32 v{t2}, 0x7f000000
    v_cmp_gt_u32 vcc, 88, v0
    v_cndmask_b32 v{t1}, v{t2}, v{t1}, vcc
    """)
    for i in range(6): a(f"v_add_f32 v{V6+i}, v{V6+i}, v{V7+i}")
    a(f"v_readfirstlane_b32 s32, v{fl}")
    a("s_cmp_lg_u32 s32, 0")
    sn = a.branch("s_cbranch_scc1 GM_flagok")
    a.raw("GM_poll:")
    a.raw(f"buffer_load_dword v{fl}, v{zr}, s[44:47], s31 offen offset:64 sc1")
    a.raw("s_waitcnt vmcnt(0)")
    a.raw(f"v_readfirstlane_b32 s32, v{fl}")
    a.raw("s_nop 1")
    a.raw("s_cmp_eq_u32 s32, 0")
    a.raw("s_cbranch_scc1 GM_poll")
    a.merge("GM_flagok", sn)
    for i in range(4):
        a(f"buffer_atomic_add_f32 v{V6+i}, v{t0}, s[40:43], s33 offen offset:{1024*i}")
    a(f"""
    s_add_u32 s33, s33, 4096
    buffer_atomic_add_f32 v{V6+4}, v{t0}, s[40:43], s33 offen
    buffer_atomic_add_f32 v{V6+5}, v{t1}, s[40:43], 0 offen
    """)
    for p in range(2):
        d = F[(0, p)]
        for mt in (2*p, 2*p+1):
            r = ac(mt, 5); phi(r); pack(d + 2 * (mt & 1), r)
        a(f"buffer_store_dwordx4 v[{d}:{d+3}], v{vq}, s[40:43], s59 offen offset:{64*p}")
    stamp(a, 3)
    stamp_dump(a, 8, 40, 20, t0, t1)
    a.raw("s_endpgm")
    a.restore("GM_epi_q", snapQ)
    a(f"""
    s_mul_i32 s58, s49, 96
    s_add_u32 s58, s58, 384
    s_lshl_b32 s58, s58, 12
    s_add_u32 s58, s58, s57
    """)
    k = 0
    for T in range(6):
        for p in range(2):
            d = list(F.values())[k % 10]; k += 1
            for mt in (2*p, 2*p+1):
                r = ac(mt, T); phi(r); pack(d + 2 * (mt & 1), r)
            a(f"buffer_store_dwordx4 v[{d}:{d+3}], v{vq}, s[40:43], s58 offen offset:{64*p}")
        a(f"s_add_u32 s58, s58, {16*4096}")
    stamp(a, 3)
    stamp_dump(a, 8, 40, 20, t0, t1)
    a.label("GM_exit", flush=False)
    a.raw("s_endpgm")
```

```python
import re

REG_RE = re.compile(r'^(-|\|)?(?:abs\()?([vsa])(\d+|\[(\d+):(\d+)\])\)?\|?$')

def parse_reg(tok):
    t = tok.strip()
    if t in ('vcc', 'exec', 'm0', 'scc'):
        return [(t, 0)]
    if t in ('vcc_lo', 'vcc_hi'): return [('vcc', 0)]
    if t in ('exec_lo', 'exec_hi'): return [('exec', 0)]
    m = REG_RE.match(t)
    if not m: return []
    k = m.group(2)
    if m.group(4) is not None:
        return [(k, i) for i in range(int(m.group(4)), int(m.group(5)) + 1)]
    return [(k, int(m.group(3)))]

TRANS = ('v_exp_f32', 'v_log_f32', 'v_rcp_f32', 'v_rsq_f32', 'v_sqrt_f32', 'v_sin_f32', 'v_cos_f32')
RMW = ('v_fmac_f32', 'v_dot2c_f32_bf16', 'v_fma_mixlo_f16', 'v_fma_mixhi_f16', 'v_writelane_b32', 'v_pk_fmac_f16')

class Ins:
    __slots__ = ('text', 'op', 'kind', 'r', 'w', 'srcc', 'ab', 'dpp', 'wide', 'lds_dma')
    def __init__(self, text):
        self.text = text
        body = text.split(';')[0].strip()
        parts = body.split(None, 1)
        op = parts[0]; self.op = op
        rest = parts[1] if len(parts) > 1 else ''
        ops = []; depth = 0; cur = ''
        for ch in rest:
            if ch in '[(': depth += 1
            if ch in '])': depth -= 1
            if ch == ',' and depth == 0:
                ops.append(cur.strip()); cur = ''
            else: cur += ch
        if cur.strip(): ops.append(cur.strip())
        mods = ''
        if ops:
            sp = ops[-1].split(None, 1)
            ops[-1] = sp[0]
            if len(sp) > 1: mods = sp[1]
        regs = [parse_reg(o) for o in ops]
        self.r = []; self.w = []; self.srcc = []; self.ab = []; self.dpp = False; self.wide = False; self.lds_dma = False
        base = op.replace('_e32', '').replace('_e64', '').replace('_dpp', '').replace('_sdwa', '')
        if op.endswith('_dpp') or 'row_shr' in mods or 'row_ror' in mods or 'quad_perm' in mods or 'row_bcast' in mods or 'row_shl' in mods or 'row_mirror' in mods or 'row_half_mirror' in mods:
            self.dpp = True
        flat = lambda L: [x for l in L for x in l]
        if op.startswith('v_mfma'):
            self.kind = 'mfma'; self.w = regs[0]; self.ab = regs[1] + regs[2]; self.srcc = regs[3]; self.r = self.ab + self.srcc
        elif op.startswith('v_cmp'):
            self.kind = 'valu'; self.w = regs[0]; self.r = flat(regs[1:])
            if op.startswith('v_cmpx'): self.w = self.w + [('exec', 0)]
        elif base in ('v_add_co_u32', 'v_sub_co_u32', 'v_addc_co_u32', 'v_subb_co_u32', 'v_mad_u64_u32'):
            self.kind = 'valu'; self.w = regs[0] + regs[1]; self.r = flat(regs[2:])
        elif base.startswith('v_permlane') and 'swap' in base:
            self.kind = 'permlane'; self.w = regs[0] + regs[1]; self.r = regs[0] + regs[1]
        elif base in ('v_readfirstlane_b32', 'v_readlane_b32'):
            self.kind = 'readlane'; self.w = regs[0]; self.r = flat(regs[1:])
        elif op.startswith('v_'):
            self.kind = 'trans' if base in TRANS else 'valu'
            self.w = regs[0]; self.r = flat(regs[1:])
            if base in RMW or self.dpp or '_sdwa' in op: self.r = self.r + regs[0]
            if base == 'v_cndmask_b32' and len(ops) == 3: self.r.append(('vcc', 0))
            if base == 'v_nop': self.kind = 'nop'
        elif op.startswith('ds_'):
            self.kind = 'ds'
            if op.startswith('ds_read') or op.startswith('ds_bpermute') or op.startswith('ds_permute') or op.startswith('ds_swizzle') or '_rtn' in op:
                self.w = regs[0]; self.r = flat(regs[1:])
                if 'd16' in op: self.r = self.r + regs[0]
            else:
                self.r = flat(regs)
        elif op.startswith('buffer_') or op.startswith('global_'):
            self.kind = 'vmem'
            toks = mods.split()
            if op in ('buffer_inv', 'buffer_wbl2'):
                pass
            elif 'lds' in toks or 'load_lds' in op:
                self.lds_dma = True; self.r = flat(regs) + [('m0', 0)]
            elif '_load' in op:
                self.w = regs[0]; self.r = flat(regs[1:])
                if 'd16' in op: self.r = self.r + regs[0]
            elif 'atomic' in op:
                self.r = flat(regs)
                if 'sc0' in toks: self.w = regs[0]
            else:
                self.r = flat(regs)
                if 'x3' in op or 'x4' in op: self.wide = True
        elif op.startswith('s_load') or op.startswith('s_buffer_load') or op in ('s_memtime', 's_memrealtime') or op.startswith('s_atomic'):
            self.kind = 'smem'; self.w = regs[0]; self.r = flat(regs[1:])
        elif op in ('s_waitcnt', 's_nop', 's_barrier', 's_endpgm', 's_branch', 's_setprio', 's_sleep') or op.startswith('s_cbranch'):
            self.kind = 'ctl'
        elif op.startswith('s_cmp') or op.startswith('s_bitcmp'):
            self.kind = 'salu'; self.r = flat(regs)
        elif op.startswith('s_'):
            self.kind = 'salu'; self.w = regs[0]; self.r = flat(regs[1:])
            if 'saveexec' in op: self.w = self.w + [('exec', 0)]
        else:
            raise ValueError('unknown op ' + text)

class Asm:
    def __init__(self):
        self.out = []
        self.pos = 0
        self.last = {}
        self.vmq = []
        self.lgq = []
        self.ninst = 0
    def raw(self, text):
        self.out.append(text)
    def comment(self, t): self.out.append('; ' + t)
    def _nop(self, n):
        while n > 0:
            k = min(n, 16)
            self.out.append(f's_nop {k-1}'); self.pos += k; n -= k; self.ninst += 1
    def _need(self, tag, regs, ws):
        need = 0
        for rg in regs:
            p = self.last.get((tag, rg))
            if p is not None:
                d = self.pos - p - 1
                need = max(need, ws - d)
        return need
    def _waits(self, ins):
        touched = set(ins.r) | set(ins.w)
        vm = None
        for i, d in enumerate(self.vmq):
            if d & touched: vm = len(self.vmq) - 1 - i
        lg = None
        for i, (d, sm) in enumerate(self.lgq):
            if d & touched: lg = len(self.lgq) - 1 - i
        if lg is not None and any(sm for d, sm in self.lgq): lg = 0
        s = []
        if vm is not None:
            vm = min(vm, 63); s.append(f'vmcnt({vm})'); self.vmq = self.vmq[len(self.vmq) - vm:] if vm else []
        if lg is not None:
            lg = min(lg, 15); s.append(f'lgkmcnt({lg})'); self.lgq = self.lgq[len(self.lgq) - lg:] if lg else []
        if s:
            self.out.append('s_waitcnt ' + ' '.join(s)); self.pos += 1; self.ninst += 1
    def wait(self, vm=None, lg=None):
        s = []
        if vm is not None:
            s.append(f'vmcnt({vm})'); self.vmq = self.vmq[len(self.vmq) - vm:] if vm and vm < len(self.vmq) else ([] if not vm else self.vmq)
        if lg is not None:
            s.append(f'lgkmcnt({lg})'); self.lgq = self.lgq[len(self.lgq) - lg:] if lg and lg < len(self.lgq) else ([] if not lg else self.lgq)
        self.out.append('s_waitcnt ' + ' '.join(s)); self.pos += 1; self.ninst += 1
    def flush(self):
        if self.vmq or self.lgq: self.wait(vm=0 if self.vmq else None, lg=0 if self.lgq else None)
        need = 0
        for (tag, rg), p in self.last.items():
            ws = {'mfma_w': 8, 'valu_w': 2, 'valu_ws': 5, 'trans_w': 1, 'mfma_c': 3, 'm0_w': 1, 'st_data': 2, 'exec_vw': 5, 'opsel_w': 1}.get(tag, 0)
            if ws: need = max(need, ws - (self.pos - p - 1))
        if need > 0: self._nop(need)
        self.last = {}
    def nopflush(self):
        need = 0
        for (tag, rg), p in self.last.items():
            ws = {'mfma_w': 8, 'valu_w': 2, 'valu_ws': 5, 'trans_w': 1, 'mfma_c': 3, 'm0_w': 1, 'st_data': 2, 'exec_vw': 5, 'opsel_w': 1}.get(tag, 0)
            if ws: need = max(need, ws - (self.pos - p - 1))
        if need > 0: self._nop(need)
        self.last = {}
    def branch(self, text, rawblock=False):
        if not rawblock: self.nopflush()
        self.out.append(text); self.pos += 1; self.ninst += 1
        return ([set(x) for x in self.vmq], [(set(d), sm) for d, sm in self.lgq])
    def merge(self, name, snap, rawblock=False):
        vm0, lg0 = snap
        vm_new = len(self.vmq) > 0 and not (len(self.vmq) <= len(vm0) and self.vmq == vm0[len(vm0)-len(self.vmq):])
        lg_new = len(self.lgq) > 0 and not (len(self.lgq) <= len(lg0) and self.lgq == lg0[len(lg0)-len(self.lgq):])
        if vm_new or lg_new: self.wait(vm=0 if vm_new else None, lg=0 if lg_new else None)
        if not rawblock: self.nopflush()
        self.out.append(name + ':')
        self.vmq = [set(x) for x in vm0]; self.lgq = [(set(d), sm) for d, sm in lg0]
    def restore(self, name, snap):
        self.out.append(name + ':')
        self.last = {}
        vm0, lg0 = snap
        self.vmq = [set(x) for x in vm0]; self.lgq = [(set(d), sm) for d, sm in lg0]
    def label(self, name, flush=True):
        if flush: self.flush()
        self.out.append(name + ':')
    def __call__(self, text):
        for line in text.strip().split('\n'):
            line = line.strip()
            if not line or line.startswith(';'):
                continue
            self.emit(line)
    def emit(self, text):
        ins = Ins(text)
        k = ins.kind
        if ins.op == 's_nop':
            n = int(text.split()[1]) + 1
            self.out.append(text); self.pos += n; self.ninst += 1; return
        if ins.op in ('s_branch',) or ins.op.startswith('s_cbranch'):
            self.flush()
        self._waits(ins)
        need = 0
        vr = [x for x in ins.r if x[0] == 'v']; vw = [x for x in ins.w if x[0] == 'v']
        sr = [x for x in ins.r if x[0] in ('s', 'vcc')]
        isvalu = k in ('valu', 'trans', 'permlane', 'readlane')
        if k == 'mfma':
            need = max(need, self._need('valu_w', vr, 2))
            need = max(need, self._need('mfma_w', ins.ab, 8))
            for rg in ins.srcc:
                p = self.last.get(('mfma_w', rg))
                if p is not None and self.last.get(('mfma_wt', rg)) != tuple(ins.srcc):
                    need = max(need, 6 - (self.pos - p - 1))
            if tuple(ins.w) != tuple(ins.srcc):
                need = max(need, self._need('mfma_w', ins.w, 8))
            need = max(need, self._need('exec_vw', [('exec', 0)], 4))
        if isvalu:
            need = max(need, self._need('mfma_w', vr + vw, 8))
            need = max(need, self._need('mfma_c', vw, 3))
            need = max(need, self._need('valu_ws', sr, 2))
            need = max(need, self._need('st_data', vw, 2))
            if k != 'trans': need = max(need, self._need('trans_w', vr, 1))
            if k == 'permlane' or ins.dpp: need = max(need, self._need('valu_w', vr, 2))
            if k == 'readlane':
                need = max(need, self._need('valu_w', vr, 1))
                need = max(need, self._need('valu_ws', sr, 4))
            need = max(need, self._need('opsel_w', vr + vw, 1))
        if k in ('ds', 'vmem'):
            need = max(need, self._need('mfma_w', vr + vw, 8))
            need = max(need, self._need('trans_w', vr, 1))
            need = max(need, self._need('st_data', vw, 1))
        if k == 'ds' and 'addtid' in ins.op:
            need = max(need, self._need('m0_w', [('m0', 0)], 1))
        if k == 'vmem':
            need = max(need, self._need('valu_ws', sr, 5))
            if ins.lds_dma: need = max(need, self._need('m0_w', [('m0', 0)], 1))
        if k in ('salu', 'smem'):
            need = max(need, self._need('valu_ws', sr, 1))
        if need > 0: self._nop(need)
        p = self.pos
        self.out.append(text); self.pos += 1; self.ninst += 1
        if k == 'mfma':
            for rg in ins.w:
                self.last[('mfma_w', rg)] = p; self.last[('mfma_wt', rg)] = tuple(ins.w)
            for rg in ins.srcc: self.last[('mfma_c', rg)] = p
        if isvalu:
            for rg in vw:
                self.last[('valu_w', rg)] = p
                self.last.pop(('mfma_w', rg), None)
                if k == 'trans': self.last[('trans_w', rg)] = p
                if 'mix' in ins.op or '_sdwa' in ins.op: self.last[('opsel_w', rg)] = p
            for rg in ins.w:
                if rg[0] in ('s', 'vcc'): self.last[('valu_ws', rg)] = p
                if rg[0] == 'exec': self.last[('exec_vw', rg)] = p
        if k == 'salu':
            for rg in ins.w:
                if rg[0] == 'm0': self.last[('m0_w', rg)] = p
                self.last.pop(('valu_ws', rg), None)
        if k == 'vmem':
            self.vmq.append(set(ins.w))
            if ins.wide:
                for rg in vr: self.last[('st_data', rg)] = p
        if k == 'ds': self.lgq.append((set(ins.w), False))
        if k == 'smem': self.lgq.append((set(ins.w), True))
    def text(self):
        return '\n'.join(self.out)

class VAlloc:
    def __init__(self, start, limit):
        self.free = [True] * limit
        for i in range(start): self.free[i] = False
        self.limit = limit; self.high = start
    def get(self, n=1, align=None):
        if align is None: align = 2 if n > 1 else 1
        align = min(align, 2)
        i = 0
        while i + n <= self.limit:
            if i % align == 0 and all(self.free[i:i + n]):
                for j in range(i, i + n): self.free[j] = False
                self.high = max(self.high, i + n)
                return i
            i += 1
        raise RuntimeError('out of registers')
    def put(self, i, n=1):
        for j in range(i, i + n):
            assert not self.free[j]; self.free[j] = True

def v(i, n=1): return f'v{i}' if n == 1 else f'v[{i}:{i+n-1}]'
def s(i, n=1): return f's{i}' if n == 1 else f's[{i}:{i+n-1}]'

import os
STAMPS = bool(os.environ.get("STAMPS"))
def stamp(a, idx):
    if STAMPS:
        a.raw(f"{'s_memtime' if os.environ.get('STAMPS') == 'cyc' else 's_memrealtime'} s[{72+2*idx}:{73+2*idx}]")
def stamp_dump(a, n, srd, wave_sgpr, vt0, vt1, nw=12):
    if not STAMPS: return
    a.raw("s_waitcnt lgkmcnt(0)")
    a.raw("s_mov_b64 exec, 1")
    a.raw(f"s_mul_i32 s70, s2, {nw}")
    a.raw(f"s_add_u32 s70, s70, s{wave_sgpr}")
    a.raw("s_lshl_b32 s70, s70, 6")
    a.raw("s_add_u32 s70, s70, 0x800000")
    a.raw(f"s_mov_b32 s{srd+2}, 0x1000000")
    a.raw(f"v_mov_b32 v{vt1}, 0")
    for i in range(n):
        a.raw(f"v_mov_b32 v{vt0}, s{72+2*i}")
        a.raw(f"buffer_store_dword v{vt0}, v{vt1}, s[{srd}:{srd+3}], s70 offen offset:{4*i}")
        a.raw("s_nop 1")
```

```python
from asmlib import *
from layout import *
from touch import *
import os

def gen_aux(a, R):
    lane = R.get(); t0 = R.get(); t1 = R.get(); t2 = R.get(); l16 = R.get(); aT = R.get(); aL = R.get()
    a(f"""
    s_load_dwordx2 s[6:7], s[0:1], 120
    s_load_dwordx2 s[36:37], s[0:1], 16
    s_load_dwordx4 s[92:95], s[0:1], 0
    v_and_b32 v{lane}, 63, v0
    s_lshl_b32 s21, s16, 1
    s_add_u32 s21, s21, s17
    s_sub_u32 s21, s21, 30
    v_lshlrev_b32 v{l16}, 4, v{lane}
    s_mul_i32 s22, s21, 41472
    s_lshl_b32 s23, s20, 10
    s_add_u32 s22, s22, s23
    v_lshrrev_b32 v{t0}, 2, v{lane}
    v_mul_u32_u24 v{t0}, 1152, v{t0}
    v_and_b32 v{t1}, 3, v{lane}
    v_lshl_add_u32 v{aT}, v{t1}, 3, v{t0}
    s_mul_i32 s24, s20, 96
    v_add_u32 v{aT}, s24, v{aT}
    v_lshrrev_b32 v{t0}, 5, v{lane}
    v_mul_u32_u24 v{t0}, {18*1152}, v{t0}
    v_bfe_u32 v{t1}, v{lane}, 4, 1
    v_mul_u32_u24 v{t1}, 1152, v{t1}
    v_add_u32 v{t0}, v{t0}, v{t1}
    v_and_b32 v{t1}, 15, v{lane}
    v_lshl_add_u32 v{aL}, v{t1}, 1, v{t0}
    v_add_u32 v{aL}, s24, v{aL}
    s_mov_b32 s12, s6
    s_mov_b32 s13, s7
    s_mov_b32 s14, {WS_SIZE}
    s_mov_b32 s15, 0x20000
    s_mov_b32 s40, s36
    s_mov_b32 s41, s37
    s_mov_b32 s42, 663552
    s_mov_b32 s43, 0x20000
    """)
    for i in range(4):
        a(f"""
        s_add_u32 m0, s23, {i*12288}
        s_add_u32 s25, s22, {i*12288}
        buffer_load_dwordx4 v{l16}, s[40:43], s25 offen lds
        """)
    if os.environ.get("TOUCH", "0") == "1":
        vx = R.get(); vw = R.get(); dd = R.get(3)
        a("""
        s_mov_b32 s8, s92
        s_mov_b32 s9, s93
        s_mov_b32 s10, 2359296
        s_mov_b32 s11, 0x20000
        s_mov_b32 s96, s94
        s_mov_b32 s97, s95
        s_mov_b32 s98, 1990656
        s_mov_b32 s99, 0x20000
        s_lshl_b32 s33, s20, 1
        s_add_u32 s33, s33, s17
        s_add_u32 s33, s33, 18
        """)
        touch_setup(a, lane, vx, vw, t0, t1)
        touch_issue(a, 33, vx, vw, dd, 8, 96, "AX_t0")
        a.wait(vm=1)
    else:
        a.wait(vm=0)
    a("s_barrier")
    F = [R.get(4, 4) for _ in range(3)]; H = R.get(3)
    for j in range(3):
        a(f"ds_read_b64_tr_b16 v[{F[j]}:{F[j]+1}], v{aT} offset:{32*j}")
        a(f"ds_read_b64_tr_b16 v[{F[j]+2}:{F[j]+3}], v{aT} offset:{18*1152 + 32*j}")
        a(f"ds_read_u16 v{H+j}, v{aL} offset:{16*1152 + 32*j}")
    a(f"""
    s_mul_i32 s26, s20, {3*18432}
    s_lshl_b32 s27, s21, 10
    s_add_u32 s27, s27, s26
    s_add_u32 s27, s27, {WS_WOF}
    s_lshr_b32 s28, s21, 3
    s_lshl_b32 s28, s28, 10
    s_and_b32 s29, s21, 7
    s_lshl_b32 s29, s29, 1
    s_add_u32 s28, s28, s29
    s_add_u32 s28, s28, s26
    s_add_u32 s28, s28, {WS_WOF + 16*1024}
    """)
    for j in range(3):
        a(f"buffer_store_dwordx4 v[{F[j]}:{F[j]+3}], v{l16}, s[12:15], s27 offen")
        a(f"buffer_store_short v{H+j}, v{l16}, s[12:15], s28 offen")
        if j < 2:
            a("s_add_u32 s27, s27, 18432"); a("s_add_u32 s28, s28, 18432")
    if os.environ.get("TOUCH", "0") == "1":
        for i in ():
            a("s_add_u32 s33, s33, 24")
            touch_issue(a, 33, vx, vw, dd + i, 8, 96, f"AX_t{i}")
    a.raw("s_endpgm")
```

```python
from asmlib import *
from layout import *
from touch import *
import struct
def fbits(x): return struct.unpack('<I', struct.pack('<f', x))[0]
LOG2E = fbits(1.4426950408889634)
import numpy as np
_c = 1.0/(2*np.pi); C_HI = np.float32(_c); C_LO = np.float32(_c - float(C_HI))
INV2PI_HI = fbits(float(C_HI)); INV2PI_LO = fbits(float(C_LO))

BUF = 4352
import os
GATHER_AT = int(os.environ.get('GATHER_AT', 8))
SCR0 = 0
SCR1 = 12 * BUF
U_STRIDE = 4608
C_U = 24 * BUF
C_BOX = C_U + 6 * U_STRIDE
C_MAX = C_BOX + 2048
C_LDS = C_MAX + 64
L0 = 639; KR_COPY = 1344
GH_COPY = 928

def cmul(a, d, x, y, t):
    a(f"v_pk_mul_f32 v[{t}:{t+1}], v[{x}:{x+1}], v[{y}:{y+1}] op_sel:[0,0] op_sel_hi:[0,1]")
    a(f"v_pk_fma_f32 v[{d}:{d+1}], v[{x}:{x+1}], v[{y}:{y+1}], v[{t}:{t+1}] op_sel:[1,1,0] op_sel_hi:[1,0,1] neg_lo:[1,0,0]")

def gen_conv(a, R):
    lane = R.get(); t0 = R.get(); t1 = R.get(); t2 = R.get(); t3 = R.get()
    col = R.get(); rq = R.get()
    own = R.get(); prt = R.get(); aT = R.get(); aT2 = R.get(); aU = R.get(); aS = R.get(); aKF = R.get(); aHF = R.get(); oadr = R.get(); rd = R.get()
    BX = R.get(12, 2)
    p0 = R.get(); p1 = R.get(); p2 = R.get(); p3 = R.get(); dt = R.get(); dsk = R.get()
    stamp(a, 0)
    a(f"""
    s_setprio 3
    s_load_dwordx16 s[36:51], s[0:1], 32
    s_load_dwordx4 s[92:95], s[0:1], 0
    s_load_dwordx2 s[6:7], s[0:1], 120
    v_and_b32 v{lane}, 63, v0
    v_and_b32 v{col}, 15, v0
    v_lshrrev_b32 v{rq}, 4, v{lane}
    s_lshr_b32 s22, s20, 1
    s_and_b32 s23, s20, 1
    s_mul_i32 s24, s21, 6
    s_add_u32 s24, s24, s22
    s_lshl_b32 s25, s24, 8
    s_lshl_b32 s26, s23, 7
    s_add_u32 s27, s25, s26
    s_xor_b32 s26, s26, 128
    s_add_u32 s28, s25, s26
    v_lshlrev_b32 v{p0}, 1, v{lane}
    v_add_u32 v{p1}, s28, v{p0}
    v_add_u32 v{p0}, s27, v{p0}
    v_lshrrev_b32 v{p2}, 1, v0
    v_mul_u32_u24 v{p2}, 1152, v{p2}
    v_and_b32 v{p3}, 1, v0
    v_lshl_add_u32 v{p2}, v{p3}, 7, v{p2}
    s_mul_i32 s31, s16, 144
    s_and_b32 s31, s31, 0xffffff80
    s_mul_i32 s32, s17, {192*1152}
    s_add_u32 s31, s31, s32
    s_cmp_ge_u32 s20, 6
    s_cselect_b32 s31, 0x7f000000, s31
    s_lshl_b32 s25, s24, 1
    v_mov_b32 v{p3}, s25
    """)
    par = R.get(10)
    if os.environ.get("ST2"): stamp(a, 9); a.wait(lg=0); stamp(a, 10)
    a(f"global_load_ushort v{dt}, v{p3}, s[48:49]")
    a(f"global_load_ushort v{dsk}, v{p3}, s[50:51]")
    for i in range(6):
        a(f"global_load_ushort v{par+i}, v{p0}, s[{36+2*i}:{37+2*i}]")
    for i in range(4):
        a(f"global_load_ushort v{par+6+i}, v{p1}, s[{40+2*i}:{41+2*i}]")
    xrow = [R.get(4, 4) for _ in range(8)]
    a(f"""
    s_mov_b32 s8, s92
    s_mov_b32 s9, s93
    s_mov_b32 s10, 2359296
    s_mov_b32 s11, 0x20000
    s_mov_b32 s96, s94
    s_mov_b32 s97, s95
    s_mov_b32 s98, 1990656
    s_mov_b32 s99, 0x20000
    s_mov_b32 s12, s6
    s_mov_b32 s13, s7
    s_mov_b32 s14, {WS_SIZE}
    s_mov_b32 s15, 0x20000
    """)
    if os.environ.get("TOUCH", "0") == "1":
        touch_setup(a, lane, p0, p1, t0, t1)
        NTW = int(os.environ.get("NTW", 4))
        a("s_sub_u32 s33, s20, 6")
        a(f"s_cmp_ge_u32 s33, {NTW}")
        a.raw("s_cbranch_scc1 CV_own")
        a("s_mul_i32 s33, s33, 12")
        a("s_add_u32 s33, s33, s17")
        touch_issue(a, 33, p0, p1, xrow[0], 8, 96, "CV_tch")
        a.raw("s_branch CV_own_d")
        a.raw("CV_own:")
        a.raw(f"buffer_load_dword v{xrow[0]}, v{p2}, s[8:11], s31 offen")
        a.raw("CV_own_d:")
    else:
        a(f"buffer_load_dword v{xrow[1]}, v{p2}, s[8:11], s31 offen")
    R.put(p0); R.put(p1); R.put(p2); R.put(p3)
    a("s_setprio 0")
    kA = R.get(); kB = R.get(); kC = R.get(); aB1 = R.get(); aB2 = R.get()
    a(f"""
    s_mul_i32 s56, s20, {BUF}
    s_mov_b32 m0, s56
    s_xor_b32 s57, s20, 1
    s_mul_i32 s57, s57, {BUF}
    s_and_b32 s60, s20, 14
    s_mul_i32 s60, s60, {BUF}
    s_add_u32 s60, s60, {SCR1}
    s_add_u32 s61, s60, {BUF}
    s_lshl_b32 s62, s23, 6
    s_mul_i32 s64, s22, {U_STRIDE}
    s_add_u32 s64, s64, {C_U + 512}
    v_mul_u32_u24 v{rd}, 272, v{col}
    v_lshl_add_u32 v{rd}, v{rq}, 4, v{rd}
    v_add_u32 v{rd}, s56, v{rd}
    v_lshlrev_b32 v{t0}, 4, v{lane}
    v_add_u32 v{own}, s56, v{t0}
    v_add_u32 v{prt}, s57, v{t0}
    v_lshrrev_b32 v{t1}, 1, v{rq}
    v_lshlrev_b32 v{t1}, 5, v{t1}
    v_and_b32 v{t2}, 1, v{rq}
    v_lshlrev_b32 v{t2}, 4, v{t2}
    v_sub_u32 v{t3}, v{t2}, v{t1}
    v_lshlrev_b32 v{t1}, 1, v{col}
    v_sub_u32 v{aT}, v{t3}, v{t1}
    v_and_b32 v{t2}, 1, v{col}
    v_cmp_eq_u32 vcc, 0, v{t2}
    v_mov_b32 v{t0}, {KR_COPY + 2}
    v_cndmask_b32 v{t0}, 0, v{t0}, vcc
    v_add_u32 v{aT}, v{aT}, v{t0}
    s_sub_u32 s63, s60, s62
    s_add_u32 s63, s63, {2*L0 - 9*128}
    v_add_u32 v{aT}, s63, v{aT}
    v_add_u32 v{aT2}, 640, v{aT}
    v_lshl_add_u32 v{aU}, v{col}, 5, v{t3}
    s_sub_u32 s65, s64, s62
    s_sub_u32 s65, s65, 384
    v_add_u32 v{aU}, s65, v{aU}
    v_lshlrev_b32 v{aS}, 5, v{col}
    v_lshl_add_u32 v{aS}, v{rq}, 4, v{aS}
    s_lshl_b32 s65, s23, 4
    s_sub_u32 s65, s64, s65
    s_sub_u32 s65, s65, 32
    v_add_u32 v{aS}, s65, v{aS}
    v_lshlrev_b32 v{aB1}, 4, v{rq}
    v_sub_u32 v{aB1}, v{aB1}, v{t1}
    v_mul_u32_u24 v{t2}, 258, v{t2}
    v_add_u32 v{aB1}, v{aB1}, v{t2}
    v_add_u32 v{aB1}, {C_BOX + 128 - 24}, v{aB1}
    s_lshl_b32 s65, s23, 9
    s_add_u32 s65, s65, {1024 + 8}
    v_add_u32 v{aB2}, s65, v{aB1}
    v_add_u32 v{t0}, 1, v{col}
    v_and_b32 v{t0}, 3, v{t0}
    v_mul_u32_u24 v{t0}, {GH_COPY + 2}, v{t0}
    v_sub_u32 v{t0}, v{t0}, v{t1}
    v_lshl_add_u32 v{t0}, v{rq}, 3, v{t0}
    s_mul_i32 s65, s23, 288
    s_add_u32 s65, s65, s61
    v_add_u32 v{aKF}, s65, v{t0}
    s_mul_i32 s65, s23, 176
    s_add_u32 s65, s65, s61
    v_add_u32 v{aHF}, s65, v{t0}
    v_lshlrev_b32 v{oadr}, 5, v{col}
    v_lshl_add_u32 v{oadr}, v{rq}, 3, v{oadr}
    """)
    a(f"""
    v_lshrrev_b32 v{t0}, 6, v0
    v_lshrrev_b32 v{t1}, 1, v{t0}
    v_add_u32 v{t1}, 1, v{t1}
    v_and_b32 v{t0}, 1, v{t0}
    v_lshlrev_b32 v{t2}, 1, v{lane}
    v_sub_u32 v{t2}, v{t2}, v{t0}
    v_subrev_u32 v{t2}, 64, v{t2}
    v_add_u32 v{t3}, v{t2}, v{t1}
    v_lshlrev_b32 v{t1}, 1, v{t1}
    v_cmp_ge_u32 vcc, v{t1}, v{t3}
    v_mov_b32 v{t0}, 0x3c00
    v_cndmask_b32 v{t2}, 0, v{t0}, vcc
    v_add_u32 v{t3}, 1, v{t3}
    v_cmp_ge_u32 vcc, v{t1}, v{t3}
    v_mov_b32 v{t0}, 0x3c000000
    v_cndmask_b32 v{t3}, 0, v{t0}, vcc
    v_or_b32 v{t2}, v{t2}, v{t3}
    v_lshlrev_b32 v{t0}, 2, v0
    v_add_u32 v{t0}, {C_BOX}, v{t0}
    v_cmp_gt_u32 vcc, 512, v0
    s_and_saveexec_b64 s[32:33], vcc
    ds_write_b32 v{t0}, v{t2}
    s_mov_b64 exec, s[32:33]
    v_lshrrev_b32 v{t0}, 7, v0
    v_mul_u32_u24 v{t0}, {U_STRIDE}, v{t0}
    v_and_b32 v{t1}, 127, v0
    v_lshl_add_u32 v{t0}, v{t1}, 2, v{t0}
    v_add_u32 v{t0}, {C_U}, v{t0}
    v_mov_b32 v{t1}, 0
    ds_write_b32 v{t0}, v{t1}
    """)
    a(f"""
    v_add_u32 v{t1}, 1, v{col}
    v_cmp_eq_u32 vcc, 15, v{col}
    v_cndmask_b32 v{t1}, v{t1}, 32, vcc
    v_add_u32 v{t2}, 16, v{lane}
    v_cmp_eq_u32 vcc, 0, v{rq}
    v_cndmask_b32 v{t1}, v{t1}, v{t2}, vcc
    v_lshlrev_b32 v{kA}, 2, v{t1}
    v_sub_u32 v{t0}, s60, v{oadr}
    s_cmp_eq_u32 s23, 0
    s_cselect_b64 vcc, -1, 0
    v_cndmask_b32 v{kA}, v{kA}, v{t0}, vcc
    v_cmp_eq_u32 s[66:67], 32, v{lane}
    v_lshl_add_u32 v{t1}, v{col}, 1, v{rq}
    v_cndmask_b32 v{t1}, v{t1}, 32, s[66:67]
    v_lshlrev_b32 v{t1}, 4, v{t1}
    v_sub_u32 v{kB}, s60, v{t1}
    v_and_b32 v{t1}, 3, v{col}
    v_mul_u32_u24 v{t1}, 144, v{t1}
    v_lshrrev_b32 v{t2}, 2, v{col}
    v_lshlrev_b32 v{t2}, 5, v{t2}
    v_sub_u32 v{t1}, v{t1}, v{t2}
    v_add_u32 v{t1}, 88, v{t1}
    v_and_b32 v{t2}, 1, v{col}
    v_mul_u32_u24 v{t2}, 176, v{t2}
    v_lshrrev_b32 v{t3}, 1, v{col}
    v_lshlrev_b32 v{t3}, 5, v{t3}
    v_sub_u32 v{t2}, v{t2}, v{t3}
    v_add_u32 v{t2}, {576 + 120 + 128}, v{t2}
    v_cmp_gt_u32 vcc, 8, v{col}
    v_cndmask_b32 v{t1}, v{t2}, v{t1}, vcc
    v_lshlrev_b32 v{t2}, 3, v{rq}
    v_sub_u32 v{t1}, v{t1}, v{t2}
    v_add_u32 v{kC}, s61, v{t1}
    """)
    def rd16(dst, base, byteoff):
        o = byteoff // 4
        a(f"ds_read2_b32 v[{dst}:{dst+1}], v{base} offset0:{o} offset1:{o+1}")
        a(f"ds_read2_b32 v[{dst+2}:{dst+3}], v{base} offset0:{o+2} offset1:{o+3}")
    a(f"""
    s_mul_i32 s31, s21, 12
    v_mul_u32_u24 v{t3}, 9216, v0
    v_lshlrev_b32 v{dt}, 16, v{dt}
    v_mul_f32 v{dt}, {LOG2E}, v{dt}
    v_exp_f32 v{dt}, v{dt}
    v_lshlrev_b32 v{dsk}, 16, v{dsk}
    v_cvt_pk_bf16_f32 v{dt}, v{dt}, v{dt}
    v_readfirstlane_b32 s30, v{dsk}
    v_lshlrev_b32 v{dt}, 16, v{dt}
    """)
    R.put(dsk)
    pp = R.get(8, 2)
    for i in range(4): a(f"v_lshlrev_b32 v{pp+i}, 16, v{par+2+i}")
    stamp(a, 1)
    for i in range(4): a(f"v_lshlrev_b32 v{pp+4+i}, 16, v{par+6+i}")
    are = R.get(); aim = R.get()
    W = R.get(2); W2 = R.get(2); tp = R.get(2)
    a(f"""
    v_lshlrev_b32 v{are}, 16, v{par}
    v_lshlrev_b32 v{aim}, 16, v{par+1}
    v_mul_f32 v{are}, v{dt}, v{are}
    v_mul_f32 v{aim}, v{dt}, v{aim}
    v_mul_f32 v{are}, {LOG2E}, v{are}
    """)
    cmul(a, W, pp+2, pp, tp)
    cmul(a, W2, pp+6, pp+4, tp)
    a(f"""
    v_max_f32 v{t0}, |v{W}|, |v{W+1}|
    v_max3_f32 v{t0}, |v{W2}|, |v{W2+1}|, v{t0}
    v_mul_f32 v{t0}, v{dt}, v{t0}
    v_mul_f32 v{W}, v{dt}, v{W}
    v_mul_f32 v{W+1}, v{dt}, v{W+1}
    v_max_u32_dpp v{t0}, v{t0}, v{t0} row_ror:1 row_mask:0xf bank_mask:0xf
    v_max_u32_dpp v{t0}, v{t0}, v{t0} row_ror:2 row_mask:0xf bank_mask:0xf
    v_max_u32_dpp v{t0}, v{t0}, v{t0} row_ror:4 row_mask:0xf bank_mask:0xf
    v_max_u32_dpp v{t0}, v{t0}, v{t0} row_ror:8 row_mask:0xf bank_mask:0xf
    v_readlane_b32 s52, v{t0}, 0
    v_readlane_b32 s53, v{t0}, 16
    v_readlane_b32 s54, v{t0}, 32
    v_readlane_b32 s55, v{t0}, 48
    s_max_u32 s52, s52, s53
    s_max_u32 s54, s54, s55
    s_max_u32 s52, s52, s54
    s_lshr_b32 s52, s52, 23
    s_add_u32 s52, s52, 8
    s_bfe_u32 s53, s30, 0x80017
    s_max_u32 s52, s52, s53
    s_max_u32 s52, s52, 14
    s_min_u32 s52, s52, 262
    s_sub_u32 s53, 267, s52
    s_lshl_b32 s53, s53, 23
    """)
    R.put(par, 10); R.put(W2, 2); R.put(pp, 8)
    Yk = {h: R.get(2) for h in (0, 2, 4, 6, 8, 10, 12, 14, 16)}
    a(f"""
    v_mul_f32 v{Yk[0]}, s53, v{W}
    v_mul_f32 v{Yk[0]+1}, s53, v{W+1}
    s_mov_b32 s54, {INV2PI_HI}
    s_mov_b32 s55, {INV2PI_LO}
    """)
    R.put(W, 2)
    E = {}
    e3 = R.get(3)
    for p in (1, 16, 256):
        e = R.get(2); E[p] = e
        if p == 1:
            a(f"v_exp_f32 v{t0}, v{are}"); th = aim
        else:
            a(f"v_mul_f32 v{t0}, {fbits(float(p))}, v{are}")
            a(f"v_mul_f32 v{t1}, {fbits(float(p))}, v{aim}")
            a(f"v_exp_f32 v{t0}, v{t0}"); th = t1
        a(f"""
        v_mul_f32 v{t2}, s54, v{th}
        v_fma_f32 v{e3}, v{th}, s54, -v{t2}
        v_fma_f32 v{e3}, v{th}, s55, v{e3}
        v_fract_f32 v{t2}, v{t2}
        v_add_f32 v{t2}, v{t2}, v{e3}
        v_cos_f32 v{e}, v{t2}
        v_sin_f32 v{e+1}, v{t2}
        v_mul_f32 v{e}, v{e}, v{t0}
        v_mul_f32 v{e+1}, v{e+1}, v{t0}
        """)
    R.put(are); R.put(aim); R.put(dt); R.put(e3, 3)
    def gathers():
        a.wait(vm=0)
        a("s_cmp_ge_u32 s20, 4")
        snap = a.branch("s_cbranch_scc1 CV_nox", rawblock=True)
        for i in range(8):
            if i == 4: a.raw("s_add_u32 s31, s31, 4608")
            a.raw(f"buffer_load_dwordx3 v[{xrow[i]}:{xrow[i]+2}], v{t3}, s[8:11], s31 offen offset:{(i%4)*1152}")
        a.merge("CV_nox", snap, rawblock=True)
    pk = [R.get() for _ in range(4)]; pki = [0]
    def put_row(buf, row, x, neg):
        p = pk[pki[0] % 4]; pki[0] += 1
        a(f"v_cvt_pk_f16_f32 v{p}, v{x}, {'-' if neg else ''}v{x+1}")
        a(f"ds_write_addtid_b32 v{p} offset:{buf*SCR1 + row*272}")
    def get_frags(buf, dst):
        for ks in range(4):
            a(f"ds_read_b128 v[{dst+4*ks}:{dst+4*ks+3}], v{rd} offset:{buf*SCR1 + ks*64}")
    Z = [R.get(2), R.get(2)]
    Yo = R.get(2)
    P = {1: E[256]}
    for i in range(2, 8): P[i] = R.get(2)
    tq = R.get(2)
    a(f"v_mov_b32 v{pk[3]}, 0x3c00")
    a(f"ds_write_addtid_b32 v{pk[3]} offset:0")
    put_row(0, 1, E[16], False)
    put_row(1, 0, Yk[0], True)
    zprev = E[16]; yprev = Yk[0]
    for h in range(1, 17):
        yd = Yk[h] if h % 2 == 0 else Yo
        cmul(a, yd, yprev, E[1], tp)
        if h + 1 <= 15:
            zd = Z[h % 2]
            cmul(a, zd, zprev, E[16], tq)
        if 1 <= h <= 6:
            cmul(a, P[h+1], P[h], E[256], P[h+1])
        if h <= 15: put_row(1, h, yd, True)
        if h + 1 <= 15:
            put_row(0, h + 1, zd, False); zprev = zd
        yprev = yd
        if h == GATHER_AT: gathers()
    R.put(Z[0], 2); R.put(Z[1], 2); R.put(E[1], 2); R.put(E[16], 2)
    ZF = R.get(16, 4); AF = R.get(16, 4)
    D = R.get(12, 4)
    get_frags(0, ZF)
    get_frags(1, AF)
    X = [Yo, R.get(2), R.get(2)]
    xi = [0]
    def prod_row(buf, row, y, p):
        x = X[xi[0] % 3]; xi[0] += 1
        cmul(a, x, y, p, x)
        put_row(buf, row, x, True)
    for h in range(8): prod_row(0, h, Yk[2*h], P[1])
    prod_row(0, 8, Yk[0], P[2]); prod_row(0, 9, Yk[0], P[4])
    for ks in range(4):
        a(f"v_mfma_f32_16x16x32_f16 v[{D}:{D+3}], v[{AF+4*ks}:{AF+4*ks+3}], v[{ZF+4*ks}:{ZF+4*ks+3}], {f'v[{D}:{D+3}]' if ks else 0}")
    get_frags(0, AF)
    for i in range(2):
        for mu in range(1, 5): prod_row(1, 4*i + mu - 1, Yk[4*mu], P[2+i])
    for ks in range(4):
        a(f"v_mfma_f32_16x16x32_f16 v[{D+4}:{D+7}], v[{AF+4*ks}:{AF+4*ks+3}], v[{ZF+4*ks}:{ZF+4*ks+3}], {f'v[{D+4}:{D+7}]' if ks else 0}")
    for i in range(4):
        for mu in (1, 2): prod_row(1, 8 + 2*i + mu - 1, Yk[8*mu], P[4+i])
    get_frags(1, AF)
    for x in X: R.put(x, 2)
    for h in Yk.values(): R.put(h, 2)
    for i in P.values(): R.put(i, 2)
    R.put(tq, 2)
    Z4 = R.get(4, 4)
    for j in range(4): a(f"v_mov_b32 v{Z4+j}, 0")
    for i in range(4):
        a(f"ds_write_b128 v{own}, v[{Z4}:{Z4+3}] offset:{SCR1 + i*1024}")
    a(f"ds_write_addtid_b32 v{Z4} offset:{SCR1 + 4096}")
    a(f"ds_write_b128 v{own}, v[{D}:{D+3}]")
    a(f"ds_write_b128 v{own}, v[{D+4}:{D+7}] offset:1024")
    for ks in range(4):
        a(f"v_mfma_f32_16x16x32_f16 v[{D+8}:{D+11}], v[{ZF+4*ks}:{ZF+4*ks+3}], v[{AF+4*ks}:{AF+4*ks+3}], {f'v[{D+8}:{D+11}]' if ks else 0}")
    R.put(ZF, 16); R.put(AF, 16); R.put(Z4, 4)
    stamp(a, 2)
    a("s_cmp_ge_u32 s20, 4")
    snap = a.branch("s_cbranch_scc1 CV_nomax")
    a.raw("s_waitcnt vmcnt(0)")
    stamp(a, 3)
    m = R.get(4)
    a("s_mov_b32 s58, 0x7fff7fff")
    regs = [xrow[i] + p for i in range(8) for p in range(3)]
    for i in range(3): a(f"v_and_b32 v{m+i}, s58, v{regs[i]}")
    for i in range(3, 24):
        a(f"v_and_b32 v{m+3}, s58, v{regs[i]}")
        a(f"v_pk_max_u16 v{m+i%3}, v{m+i%3}, v{m+3}")
    a(f"""
    v_pk_max_u16 v{m}, v{m}, v{m+1}
    v_pk_max_u16 v{m}, v{m}, v{m+2}
    v_lshlrev_b32 v{m+1}, 16, v{m}
    v_max_u32 v{m}, v{m}, v{m+1}
    v_max_u32_dpp v{m}, v{m}, v{m} row_ror:1 row_mask:0xf bank_mask:0xf
    v_max_u32_dpp v{m}, v{m}, v{m} row_ror:2 row_mask:0xf bank_mask:0xf
    v_max_u32_dpp v{m}, v{m}, v{m} row_ror:4 row_mask:0xf bank_mask:0xf
    v_max_u32_dpp v{m}, v{m}, v{m} row_ror:8 row_mask:0xf bank_mask:0xf
    v_lshrrev_b32 v{m+1}, 2, v0
    v_add_u32 v{m+1}, {C_MAX}, v{m+1}
    s_mov_b32 exec_lo, 0x10001
    s_mov_b32 exec_hi, 0x10001
    ds_write_b32 v{m+1}, v{m}
    s_mov_b64 exec, -1
    """)
    R.put(m, 4)
    a.merge("CV_nomax", snap)
    a(f"ds_write_b128 v{own}, v[{D+8}:{D+11}] offset:2048")
    a.wait(lg=0)
    a("s_barrier")
    stamp(a, 4)
    PD = R.get(8, 4)
    a(f"""
    v_lshlrev_b32 v{t1}, 2, v{col}
    v_add_u32 v{t1}, {C_MAX}, v{t1}
    ds_read_b32 v{t0}, v{t1}
    s_lshl_b32 s58, s23, 10
    v_add_u32 v{t2}, s58, v{prt}
    ds_read_b128 v[{PD}:{PD+3}], v{t2}
    ds_read_b128 v[{PD+4}:{PD+7}], v{t2} offset:1024
    v_max_u32_dpp v{t0}, v{t0}, v{t0} row_ror:1 row_mask:0xf bank_mask:0xf
    v_max_u32_dpp v{t0}, v{t0}, v{t0} row_ror:2 row_mask:0xf bank_mask:0xf
    v_max_u32_dpp v{t0}, v{t0}, v{t0} row_ror:4 row_mask:0xf bank_mask:0xf
    v_max_u32_dpp v{t0}, v{t0}, v{t0} row_ror:8 row_mask:0xf bank_mask:0xf
    v_readfirstlane_b32 s59, v{t0}
    s_lshr_b32 s59, s59, 23
    s_max_u32 s59, s59, 11
    s_min_u32 s59, s59, 254
    s_sub_u32 s58, 264, s59
    s_lshl_b32 s58, s58, 23
    s_add_u32 s59, s59, s52
    s_sub_u32 s59, s59, 277
    """)
    rd16(BX, aB1, 0); rd16(BX+4, aB1, 520); rd16(BX+8, aB2, 0)
    R.put(aB1); R.put(aB2)
    a("s_cmp_ge_u32 s20, 4")
    snap = a.branch("s_cbranch_scc1 CV_nocvt")
    f = R.get(8); o2 = R.get(8, 4)
    a(f"v_lshlrev_b32 v{t1}, 4, v0")
    a(f"v_add_u32 v{t1}, {C_U + 512}, v{t1}")
    for c in range(6):
        p = c >> 1; o = o2 + 4 * (c & 1)
        for i in range(8):
            if c & 1: a(f"v_and_b32 v{f+i}, 0xffff0000, v{xrow[i]+p}")
            else: a(f"v_lshlrev_b32 v{f+i}, 16, v{xrow[i]+p}")
        for i in range(4): a(f"v_fma_mixlo_f16 v{o+i}, v{f+2*i}, s58, 0")
        for i in range(4): a(f"v_fma_mixhi_f16 v{o+i}, v{f+2*i+1}, s58, 0")
        a(f"ds_write_b128 v{t1}, v[{o}:{o+3}] offset:{c*U_STRIDE}")
    R.put(f, 8); R.put(o2, 8)
    a.merge("CV_nocvt", snap)
    for x in xrow: R.put(x, 4)
    q = R.get(8, 4)
    a("s_cmp_eq_u32 s23, 1")
    snapK = a.branch("s_cbranch_scc1 CV_kfin1")
    a(f"""
    v_mov_b32 v{t1}, s30
    v_mul_f32 v{t1}, s53, v{t1}
    v_cmp_eq_u32 vcc, 0, v{lane}
    v_cndmask_b32 v{t1}, 0, v{t1}, vcc
    v_add_f32 v{D}, v{D}, v{t1}
    v_pk_add_f32 v[{D}:{D+1}], v[{D}:{D+1}], v[{PD}:{PD+1}]
    v_pk_add_f32 v[{D+2}:{D+3}], v[{D+2}:{D+3}], v[{PD+2}:{PD+3}]
    v_cvt_pk_f16_f32 v{q}, v{D+3}, v{D+2}
    v_cvt_pk_f16_f32 v{q+1}, v{D+1}, v{D}
    v_cvt_pk_f16_f32 v{q+2}, v{D+2}, v{D+1}
    ds_write_b64 v{kA}, v[{q}:{q+1}] offset:{2*(L0-3)}
    ds_write_b16 v{kA}, v{q} offset:{KR_COPY + 2*(L0-3) + 2}
    ds_write_b32 v{kA}, v{q+2} offset:{KR_COPY + 2*(L0-3) + 4}
    ds_write_b16_d16_hi v{kA}, v{q+1} offset:{KR_COPY + 2*(L0-3) + 8}
    """)
    a.wait(lg=0)
    a.nopflush()
    a.raw("s_branch CV_kfin_done")
    a.restore("CV_kfin1", snapK)
    for j in range(0, 8, 2): a(f"v_pk_add_f32 v[{D+4+j}:{D+5+j}], v[{D+4+j}:{D+5+j}], v[{PD+j}:{PD+j+1}]")
    c0, c2, c4, c6 = D+4, D+5, D+6, D+7
    c8 = PD
    T2 = D + 8
    a(f"""
    ds_bpermute_b32 v{c8}, v{kA}, v{c0}
    v_cvt_pk_f16_f32 v{q}, v{T2+3}, v{T2+2}
    v_cvt_pk_f16_f32 v{q+1}, v{T2+1}, v{T2}
    v_cvt_pk_f16_f32 v{q+2}, v{T2+2}, v{T2+1}
    ds_write_b64 v{kC}, v[{q}:{q+1}]
    ds_write_b16 v{kC}, v{q} offset:{GH_COPY + 2}
    ds_write_b32 v{kC}, v{q+2} offset:{GH_COPY + 4}
    ds_write_b16_d16_hi v{kC}, v{q+1} offset:{GH_COPY + 8}
    ds_write_b32 v{kC}, v{q} offset:{2*GH_COPY + 4}
    ds_write_b32 v{kC}, v{q+1} offset:{2*GH_COPY + 8}
    ds_write_b16 v{kC}, v{q} offset:{3*GH_COPY + 6}
    ds_write_b32 v{kC}, v{q+2} offset:{3*GH_COPY + 8}
    ds_write_b16_d16_hi v{kC}, v{q+1} offset:{3*GH_COPY + 12}
    v_cvt_pk_f16_f32 v{q+7}, v{c2}, v{c2}
    v_cndmask_b32 v{c2}, v{c2}, v{c0}, s[66:67]
    v_cndmask_b32 v{c4}, v{c4}, 0, s[66:67]
    v_cndmask_b32 v{c6}, v{c6}, 0, s[66:67]
    v_cndmask_b32 v{c8}, v{c8}, 0, s[66:67]
    v_cvt_pk_f16_f32 v{T2}, v{c8}, v{c6}
    v_cvt_pk_f16_f32 v{T2+1}, v{c4}, v{c4}
    v_cvt_pk_f16_f32 v{T2+2}, v{c4}, v{c2}
    v_cvt_pk_f16_f32 v{T2+3}, v{c0}, v{c0}
    v_mov_b32 v{q+4}, v{T2+1}
    v_cvt_pk_f16_f32 v{q+5}, v{c2}, v{c0}
    v_cvt_pk_f16_f32 v{q+6}, v{c6}, v{c4}
    v_mov_b32 v{t2}, s60
    s_mov_b32 exec_hi, 1
    ds_write_b128 v{kB}, v[{T2}:{T2+3}] offset:{2*(L0-256-7)}
    ds_write_b16 v{kB}, v{T2} offset:{KR_COPY + 2*(L0-256-7) + 2}
    ds_write_b32 v{kB}, v{q+6} offset:{KR_COPY + 2*(L0-256-7) + 4}
    ds_write_b64 v{kB}, v[{q+4}:{q+5}] offset:{KR_COPY + 2*(L0-256-7) + 8}
    ds_write_b16 v{kB}, v{T2+3} offset:{KR_COPY + 2*(L0-256-7) + 16}
    s_mov_b32 exec_lo, 0
    ds_write_b16 v{t2}, v{q+7} offset:{2*(L0-580)}
    ds_write_b16 v{t2}, v{q+7} offset:{2*(L0-579)}
    ds_write_b32 v{t2}, v{q+7} offset:{KR_COPY + 2*(L0-580) + 2}
    s_mov_b64 exec, -1
    """)
    a.wait(lg=0)
    a.label("CV_kfin_done")
    R.put(q, 8); R.put(D, 12); R.put(PD, 8)
    for p in pk: R.put(p)
    R.put(rd); R.put(tp, 2); R.put(kA); R.put(kB); R.put(kC)
    a("s_barrier")
    stamp(a, 5)
    TK = R.get(40, 4); KF = R.get(12, 4); HF = R.get(10, 2)
    acc = R.get(32, 4)
    NU = 4
    UF = [R.get(4, 4) for _ in range(NU)]
    US = R.get(4, 4)
    S1 = R.get(12, 4)
    W2f = R.get(4, 4); W3f = R.get(4, 4)
    gam = list(range(-3, 29))
    def ldU(i):
        if i < len(gam):
            a(f"ds_read_b128 v[{UF[i%NU]}:{UF[i%NU]+3}], v{aU} offset:{(gam[i]+3)*128}")
    def ldTK(sg):
        o = (9 - sg) * 32
        base = aT
        if o >= 160: base = aT2; o -= 160
        a(f"ds_read2_b32 v[{TK+4*sg}:{TK+4*sg+1}], v{base} offset0:{o} offset1:{o+1}")
        a(f"ds_read2_b32 v[{TK+4*sg+2}:{TK+4*sg+3}], v{base} offset0:{o+2} offset1:{o+3}")
    a(f"ds_read_b128 v[{US}:{US+3}], v{aS}")
    for i in range(NU - 1): ldU(i)
    for sg in (3, 7, 2, 6, 1, 5, 0, 4, 8, 9): ldTK(sg)
    for ai, aa in enumerate((2, 3, 4)):
        a(f"ds_read_b64 v[{KF+4*ai}:{KF+4*ai+1}], v{aKF} offset:{2*(79 - 16*aa)}")
        a(f"ds_read_b64 v[{KF+4*ai+2}:{KF+4*ai+3}], v{aKF} offset:{144 + 2*(79 - 16*aa)}")
    for aa in (7, 6, 5, 4):
        a(f"ds_read_b64 v[{HF+2*(7-aa)}:{HF+2*(7-aa)+1}], v{aHF} offset:{576 + 2*(127 - 16*aa)}")
    a(f"v_mov_b32 v{HF+8}, 0"); a(f"v_mov_b32 v{HF+9}, 0")
    inited = set()
    def mm(J, A, B):
        c = f"v[{acc+4*J}:{acc+4*J+3}]"
        a(f"v_mfma_f32_16x16x32_f16 {c}, v[{A}:{A+3}], v[{B}:{B+3}], {c if J in inited else 0}")
        inited.add(J)
    def direct(i):
        g = gam[i]
        ldU(i + NU - 1)
        for J in range(8):
            sg = 4*J - g
            if 0 <= sg <= 8: mm(J, TK + 4*sg, UF[i % NU])
            if sg == 16: mm(J, TK + 36, UF[i % NU])
    di = 0
    for b in range(6):
        a(f"v_mfma_f32_16x16x32_f16 v[{S1}:{S1+3}], v[{US}:{US+3}], v[{BX}:{BX+3}], 0")
        a(f"v_mfma_f32_16x16x32_f16 v[{S1+4}:{S1+7}], v[{US}:{US+3}], v[{BX+4}:{BX+7}], 0")
        if b < 4:
            a(f"v_mfma_f32_16x16x32_f16 v[{S1+8}:{S1+11}], v[{US}:{US+3}], v[{BX+8}:{BX+11}], 0")
        if b < 5: a(f"ds_read_b128 v[{US}:{US+3}], v{aS} offset:{512*(b+1)}")
        for _ in range(3): direct(di); di += 1
        a(f"""
        v_cvt_pk_f16_f32 v{W2f}, v{S1}, v{S1+1}
        v_cvt_pk_f16_f32 v{W2f+1}, v{S1+2}, v{S1+3}
        v_cvt_pk_f16_f32 v{W2f+2}, v{S1+4}, v{S1+5}
        v_cvt_pk_f16_f32 v{W2f+3}, v{S1+6}, v{S1+7}
        """)
        if b < 4:
            a(f"v_cvt_pk_f16_f32 v{W3f+2*(b&1)}, v{S1+8}, v{S1+9}")
            a(f"v_cvt_pk_f16_f32 v{W3f+2*(b&1)+1}, v{S1+10}, v{S1+11}")
        for _ in range(2): direct(di); di += 1
        for ai, aa in enumerate((2, 3, 4)):
            if b + aa <= 7: mm(b + aa, W2f, KF + 4*ai)
        if b in (1, 3):
            Bq = b >> 1
            for aa in (4, 5, 6, 7):
                if aa + 2*Bq <= 7: mm(aa + 2*Bq, W3f, HF + 2*(7-aa))
    while di < len(gam): direct(di); di += 1
    assert len(inited) == 8
    for x in UF: R.put(x, 4)
    R.put(US, 4); R.put(S1, 12); R.put(W2f, 4); R.put(W3f, 4); R.put(TK, 40); R.put(BX, 12); R.put(KF, 12); R.put(HF, 10)
    stamp(a, 6)
    a(f"""
    s_lshl_b32 s65, s23, 11
    s_lshl_b32 s66, s24, 12
    s_add_u32 s66, s66, s65
    s_add_u32 s66, s66, {WS_BT}
    """)
    PA = R.get(16, 4)
    def tail(w):
        keep = acc + 16*w; send = acc + 16*(1-w)
        for j in range(4):
            a(f"ds_write_b128 v{own}, v[{send+4*j}:{send+4*j+3}] offset:{j*1024}")
        a.wait(lg=0)
        a("s_barrier")
        stamp(a, 7)
        for j in range(4):
            a(f"ds_read_b128 v[{PA+4*j}:{PA+4*j+3}], v{prt} offset:{j*1024}")
        for j in range(4):
            k = keep + 4*j
            a(f"v_pk_add_f32 v[{k}:{k+1}], v[{k}:{k+1}], v[{PA+4*j}:{PA+4*j+1}]")
            a(f"v_pk_add_f32 v[{k+2}:{k+3}], v[{k+2}:{k+3}], v[{PA+4*j+2}:{PA+4*j+3}]")
            for e in range(4): a(f"v_ldexp_f32 v{k+e}, v{k+e}, s59")
            a(f"""
            v_cvt_pk_bf16_f32 v{k}, v{k}, v{k+1}
            v_cvt_pk_bf16_f32 v{k+1}, v{k+2}, v{k+3}
            buffer_store_dwordx2 v[{k}:{k+1}], v{oadr}, s[12:15], s66 offen offset:{512*j}
            """)
        stamp(a, 8)
        stamp_dump(a, 9, 12, 20, t0, t1)
        a.raw("s_endpgm")
    a("s_cmp_eq_u32 s23, 1")
    snapE = a.branch("s_cbranch_scc1 CV_tail1")
    tail(0)
    a.restore("CV_tail1", snapE)
    tail(1)
```

```python
from asmlib import *
import os
from layout import *
from k1_conv import LOG2E

ASLOT = 16384
BSLOT = 24576
BRING = 3 * ASLOT
G_KVI = BRING + 3 * BSLOT
KVI_H = 6144
G_LDS = G_KVI + 2 * KVI_H
EPS = 0x358637bd

def lanemask(f):
    m = 0
    for l in range(64):
        if f(l & 15, l >> 4): m |= 1 << l
    return m
def set_exec(a, m):
    a(f"s_mov_b32 exec_lo, {m & 0xffffffff:#x}")
    a(f"s_mov_b32 exec_hi, {m >> 32:#x}")

def gen_gemm(a, R):
    a("s_cmp_ge_u32 s20, 8")
    a("s_cbranch_scc1 GM_exit")
    lane = R.get(); t0 = R.get(); t1 = R.get(); t2 = R.get(); t3 = R.get()
    stamp(a, 0)
    a(f"""
    s_load_dwordx4 s[4:7], s[0:1], 0
    s_load_dwordx4 s[36:39], s[0:1], 112
    v_and_b32 v{lane}, 63, v0
    s_sub_u32 s21, s17, 12
    s_and_b32 s22, s16, 3
    s_lshl_b32 s22, s22, 2
    s_lshr_b32 s23, s16, 2
    s_and_b32 s24, s21, 3
    s_lshr_b32 s25, s21, 2
    s_lshl_b32 s26, s23, 1
    s_add_u32 s26, s26, s24
    s_mul_i32 s27, s23, 5
    s_add_u32 s27, s27, s25
    s_cmp_ge_u32 s21, 16
    s_cselect_b32 s24, s26, s24
    s_cselect_b32 s27, 4, s27
    s_add_u32 s28, s22, s24
    s_add_u32 s29, s24, s25
    s_lshl_b32 s29, s29, 1
    s_cmp_ge_u32 s29, 9
    s_cselect_b32 s30, 9, 0
    s_sub_u32 s29, s29, s30
    """)
    NP = int(os.environ.get("NP", 0)); NR = 9 - NP
    if NP: a(f"""
    s_mul_i32 s29, s24, 3
    s_lshr_b32 s29, s29, 1
    s_add_u32 s29, s29, s25
    s_cmp_ge_u32 s29, {NR}
    s_cselect_b32 s30, {NR}, 0
    s_sub_u32 s29, s29, s30
    """)
    def st_calc(s):
        if s < NP: return f"s_mov_b32 s56, {s}"
        return f"""s_add_u32 s56, s29, {s - NP}
        s_cmp_ge_u32 s56, {NR}
        s_cselect_b32 s60, {NR}, 0
        s_sub_u32 s56, s56, s60
        s_add_u32 s56, s56, {NP}"""
    a(f"""
    s_mov_b32 s8, s4
    s_mov_b32 s9, s5
    s_mov_b32 s10, 2359296
    s_mov_b32 s11, 0x20000
    s_mov_b32 s12, s6
    s_mov_b32 s13, s7
    s_mov_b32 s14, 1990656
    s_mov_b32 s15, 0x20000
    s_mov_b32 s40, s38
    s_mov_b32 s41, s39
    s_mov_b32 s42, {WS_SIZE}
    s_mov_b32 s43, 0x20000
    s_mov_b32 s44, s36
    s_mov_b32 s45, s37
    s_mov_b32 s46, 256
    s_mov_b32 s47, 0x20000
    """)
    a("s_cmp_lt_u32 s20, 4")
    snapC = a.branch("s_cbranch_scc1 GM_cons")
    vA = R.get(4); vB = R.get(6)
    a(f"""
    s_sub_u32 s48, s20, 4
    v_lshrrev_b32 v{t0}, 3, v{lane}
    v_mul_u32_u24 v{t0}, 1152, v{t0}
    v_and_b32 v{t1}, 7, v{lane}
    v_bfe_u32 v{t2}, v{lane}, 4, 1
    v_xor_b32 v{t1}, v{t1}, v{t2}
    v_lshl_add_u32 v{vA}, v{t1}, 4, v{t0}
    v_xor_b32 v{vA+1}, 32, v{vA}
    v_xor_b32 v{vA+2}, 64, v{vA}
    v_xor_b32 v{vA+3}, 0x60, v{vA}
    s_lshl_b32 s49, s28, 7
    s_lshl_b32 s50, s48, 5
    s_add_u32 s49, s49, s50
    s_mul_i32 s49, s49, 1152
    s_lshl_b32 s50, s48, 12
    s_mul_i32 s51, s48, {16*3456}
    s_mul_i32 s52, s48, {16*384}
    s_add_u32 s52, s52, {BRING}
    """)
    a(f"""
    s_mul_i32 s53, s27, 144
    s_add_u32 s54, s53, {2304 - 144}
    s_add_u32 s53, s53, 1152
    s_mul_i32 s55, s27, 96
    s_sub_u32 s55, s55, 288
    s_cmp_eq_u32 s27, 8
    s_cselect_b32 s53, 768, s53
    s_cselect_b32 s54, 768, s54
    s_cselect_b32 s55, 768, s55
    """)
    def stage_st(s):
        a(st_calc(s))
        a(f"""
        s_lshl_b32 s57, s56, 7
        s_add_u32 s57, s57, s49
        s_mul_i32 s58, s56, {64*3456}
        s_add_u32 s58, s58, s51
        """)
    def issueA(s):
        for i in range(4):
            a(f"""
            s_add_u32 s59, s57, {8*i*1152}
            s_add_u32 m0, s50, {(s % 3)*ASLOT + i*1024}
            buffer_load_dwordx4 v{vA + i}, s[8:11], s59 offen lds
            """)
    def issueB(s, i):
        a(f"""
        s_add_u32 m0, s52, {(s % 3)*BSLOT + i*1024}
        buffer_load_dwordx4 v{vB + i}, s[12:15], s58 offen lds
        """)
    stage_st(0)
    issueA(0)
    a("s_mov_b32 s60, 2731")
    for i in range(6):
        a(f"""
        v_add_u32 v{t0}, {64*i}, v{lane}
        v_mul_lo_u32 v{t1}, v{t0}, s60
        v_lshrrev_b32 v{t1}, 16, v{t1}
        v_mul_u32_u24 v{t2}, 24, v{t1}
        v_sub_u32 v{t0}, v{t0}, v{t2}
        v_and_b32 v{t2}, 2, v{t1}
        v_lshrrev_b32 v{t3}, 1, v{t1}
        v_and_b32 v{t3}, 4, v{t3}
        v_or_b32 v{t2}, v{t2}, v{t3}
        v_xor_b32 v{t0}, v{t0}, v{t2}
        v_mov_b32 v{t2}, s53
        v_mov_b32 v{t3}, s54
        v_cmp_lt_u32 vcc, 8, v{t0}
        v_cndmask_b32 v{t2}, v{t2}, v{t3}, vcc
        v_mov_b32 v{t3}, s55
        v_cmp_lt_u32 vcc, 17, v{t0}
        v_cndmask_b32 v{t2}, v{t2}, v{t3}, vcc
        v_lshl_add_u32 v{t2}, v{t0}, 4, v{t2}
        v_mul_u32_u24 v{t1}, 3456, v{t1}
        v_add_u32 v{vB+i}, v{t1}, v{t2}
        """)
        issueB(0, i)
    stamp(a, 1)
    a("s_barrier")
    for s in (1,):
        stage_st(s); issueA(s)
        for i in range(6): issueB(s, i)
    gA = R.get(); gacc = R.get(2); gx = R.get(32, 4); ga = R.get(8)
    a(f"""
    s_load_dwordx2 s[62:63], s[0:1], 96
    s_cmp_eq_u32 s27, 8
    s_cselect_b32 s61, s48, 9
    v_bfe_u32 v{t0}, v{lane}, 1, 1
    v_lshrrev_b32 v{t1}, 2, v{lane}
    v_and_b32 v{t1}, 6, v{t1}
    v_or_b32 v{t0}, v{t0}, v{t1}
    v_lshlrev_b32 v{t0}, 4, v{t0}
    v_lshl_add_u32 v{gA}, v{lane}, 7, v{t0}
    s_lshl_b32 s60, s48, 13
    v_add_u32 v{gA}, s60, v{gA}
    v_mov_b32 v{gacc}, 0
    v_mov_b32 v{gacc+1}, 0
    """)
    a.wait(lg=0)
    def gate_ld(s):
        for l in st_calc(s).split("\n"): a.raw(l.strip())
        for l in f"""s_lshl_b32 s56, s56, 7
        s_load_dwordx16 s[64:79], s[62:63], s56
        s_add_u32 s56, s56, 64
        s_load_dwordx16 s[80:95], s[62:63], s56""".split("\n"): a.raw(l.strip())
    def gate(s):
        a("s_cmp_ge_u32 s61, 2")
        sn = a.branch(f"s_cbranch_scc1 GM_nogate{s}")
        a(f"v_add_u32 v{ga}, {(s % 3)*ASLOT}, v{gA}")
        for c in range(1, 8): a(f"v_xor_b32 v{ga+c}, {16*c}, v{ga}")
        for c in range(8): a(f"ds_read_b128 v[{gx+4*c}:{gx+4*c+3}], v{ga+c}")
        a.wait(lg=0)
        for i in range(32): a(f"v_dot2c_f32_bf16 v{gacc+(i&1)}, s{64+i}, v{gx+i}")
        if s < 8: gate_ld(s + 1)
        a.merge(f"GM_nogate{s}", sn)
    stamp(a, 2)
    a.wait(vm=10)
    stamp(a, 3)
    if STAMPS: stamp_dump(a, 4, 40, 20, t0, t1); a.raw("s_mov_b64 exec, -1")
    gate_ld(0)
    a("s_barrier")
    stage_st(2); issueA(2)
    for i in range(6): issueB(2, i)
    for s in range(8):
        gate(s)
        a.wait(vm=10 if s + 2 <= 8 else 0)
        a("s_barrier")
        if s + 3 <= 8 and not os.environ.get("NOLOAD"):
            stage_st(s + 3); issueA(s + 3)
            for i in range(6): issueB(s + 3, i)
    gate(8)
    a("s_cmp_ge_u32 s61, 2")
    a("s_cbranch_scc1 GM_exit")
    a("s_nop 3")
    a(f"""
    v_add_f32 v{gacc}, v{gacc}, v{gacc+1}
    v_cvt_pk_bf16_f32 v{gacc}, v{gacc}, v{gacc}
    v_lshlrev_b32 v{gacc}, 16, v{gacc}
    v_mul_f32 v{gacc}, {LOG2E}, v{gacc}
    v_exp_f32 v{gacc}, -v{gacc}
    v_add_f32 v{gacc}, 1.0, v{gacc}
    v_rcp_f32 v{gacc}, v{gacc}
    v_cvt_pk_bf16_f32 v{gacc}, v{gacc}, v{gacc}
    v_lshlrev_b32 v{gacc}, 16, v{gacc}
    v_lshlrev_b32 v{t0}, 2, v{lane}
    s_lshl_b32 s56, s28, 9
    s_lshl_b32 s60, s48, 8
    s_add_u32 s56, s56, s60
    s_add_u32 s56, s56, {WS_G}
    buffer_store_dword v{gacc}, v{t0}, s[40:43], s56 offen
    """)
    a.raw("s_endpgm")
    R.put(gA); R.put(gacc, 2); R.put(gx, 32); R.put(ga, 8)
    R.put(vA, 4); R.put(vB, 6)
    a.restore("GM_cons", snapC)
    col = R.get(); rq = R.get()
    acc = R.get(96, 4)
    AF = [R.get(16, 4), R.get(16, 4)]
    BF = R.get(24, 4)
    aA = R.get(2); aB = R.get(6)
    ac = lambda mt, T: acc + 4 * (mt * 6 + T)
    tk = AF[1]
    a(f"""
    s_mov_b32 s61, 1
    s_lshl_b32 s31, s27, 2
    v_mov_b32 v{tk}, 1
    v_mov_b32 v{tk+1}, 0
    s_cmp_eq_u32 s27, 8
    s_cselect_b32 s62, 1, s20
    s_cmp_lg_u32 s62, 0
    """)
    snapT = a.branch("s_cbranch_scc1 GM_notick")
    a.raw("s_mov_b64 exec, 1")
    a.raw(f"buffer_atomic_add v{tk}, v{tk+1}, s[44:47], s31 offen sc0")
    a.raw("s_mov_b64 exec, -1")
    a.merge("GM_notick", snapT)
    zz = AF[0]
    for j in range(4): a(f"v_mov_b32 v{zz+j}, 0")
    a(f"v_lshlrev_b32 v{t0}, 4, v0")
    a(f"v_add_u32 v{t0}, {G_KVI}, v{t0}")
    for i in range(3): a(f"ds_write_b128 v{t0}, v[{zz}:{zz+3}] offset:{4096*i}")
    a(f"""
    s_and_b32 s48, s20, 1
    s_lshr_b32 s49, s20, 1
    v_and_b32 v{col}, 15, v{lane}
    v_lshrrev_b32 v{rq}, 4, v{lane}
    v_lshrrev_b32 v{t0}, 1, v{col}
    v_xor_b32 v{t0}, v{t0}, v{rq}
    v_lshlrev_b32 v{t0}, 4, v{t0}
    v_and_b32 v{t1}, 12, v{col}
    v_add_u32 v{t1}, v{t1}, v{col}
    v_lshl_add_u32 v{t0}, v{t1}, 7, v{t0}
    s_lshl_b32 s50, s48, 13
    v_add_u32 v{aA}, s50, v{t0}
    v_xor_b32 v{aA+1}, 64, v{aA}
    """)
    rr = BF; cc = BF + 1; gg = BF + 2
    a(f"""
    v_lshrrev_b32 v{rr}, 2, v{lane}
    v_and_b32 v{rr}, 3, v{rr}
    v_and_b32 v{cc}, 3, v{lane}
    v_and_b32 v{gg}, 2, v{rr}
    v_and_b32 v{t0}, 1, v{rq}
    v_lshl_or_b32 v{gg}, v{t0}, 2, v{gg}
    v_lshl_add_u32 v{rr}, v{rq}, 3, v{rr}
    v_mul_u32_u24 v{rr}, 384, v{rr}
    v_add_u32 v{rr}, {BRING}, v{rr}
    s_mul_i32 s51, s49, 9
    s_mul_i32 s52, s49, 6
    s_mul_i32 s53, s49, 24
    s_cmp_eq_u32 s27, 8
    s_cselect_b64 s[54:55], -1, 0
    """)
    for T in range(6):
        if T < 4:
            a(f"v_add_u32 v{t0}, s51, v{cc}")
            k = [0, 5, 18, 23][T]
            if k: a(f"v_add_u32 v{t0}, {k}, v{t0}")
        elif T == 5:
            a(f"v_add_u32 v{t0}, s52, v{cc}"); a(f"v_add_u32 v{t0}, 38, v{t0}")
        else:
            a(f"""
            v_mul_u32_u24 v{t0}, 18, v{cc}
            v_add_u32 v{t0}, s51, v{t0}
            v_add_u32 v{t0}, 4, v{t0}
            v_add_u32 v{t1}, s52, v{cc}
            v_add_u32 v{t1}, 34, v{t1}
            v_cmp_lt_u32 vcc, 1, v{cc}
            v_cndmask_b32 v{t0}, v{t0}, v{t1}, vcc
            """)
        a(f"""
        v_add_u32 v{t1}, s53, v{cc}
        v_add_u32 v{t1}, {4*T}, v{t1}
        v_cndmask_b32 v{t0}, v{t0}, v{t1}, s[54:55]
        v_lshrrev_b32 v{t1}, 1, v{t0}
        v_xor_b32 v{t1}, v{t1}, v{gg}
        v_and_b32 v{t0}, 1, v{t0}
        v_lshlrev_b32 v{t0}, 3, v{t0}
        v_lshl_add_u32 v{t0}, v{t1}, 4, v{t0}
        v_add_u32 v{aB+T}, v{rr}, v{t0}
        """)
    a(f"""
    v_mov_b32 v{t2}, {EPS:#x}
    v_cndmask_b32 v{t0}, 0, v{t2}, s[54:55]
    v_lshrrev_b32 v{t3}, 2, v{col}
    v_cmp_eq_u32 vcc, 1, v{t3}
    v_cndmask_b32 v{t1}, v{t2}, v{t0}, vcc
    """)
    for mt in range(4):
        for T in range(6):
            src = t0 if T in (2, 3) else (t1 if T == 4 else t2)
            for j in range(4): a(f"v_mov_b32 v{ac(mt,T)+j}, v{src}")
    a.raw("s_barrier")
    a.raw("s_waitcnt vmcnt(0)")
    a(f"v_readfirstlane_b32 s61, v{tk}")
    a("s_cmp_lg_u32 s61, 0")
    snapZ = a.branch("s_cbranch_scc1 GM_nozero")
    Z4 = BF
    for j in range(4): a(f"v_mov_b32 v{Z4+j}, 0")
    a(f"""
    v_lshlrev_b32 v{Z4+4}, 4, v{lane}
    s_mul_i32 s33, s27, 6080
    s_add_u32 s33, s33, {WS_KVS}
    """)
    for i in range(5):
        a.raw(f"buffer_store_dwordx4 v[{Z4}:{Z4+3}], v{Z4+4}, s[40:43], s33 offen sc1")
        a.raw("s_add_u32 s33, s33, 1024")
    a.raw("s_mov_b32 exec_hi, 0x0fffffff")
    a.raw(f"buffer_store_dwordx4 v[{Z4}:{Z4+3}], v{Z4+4}, s[40:43], s33 offen sc1")
    a.raw("s_mov_b64 exec, -1")
    a.raw("s_nop 2")
    a.merge("GM_nozero", snapZ)
    def setflag():
        a("s_cmp_lg_u32 s61, 0")
        sn = a.branch("s_cbranch_scc1 GM_noflag", rawblock=True)
        a.raw("s_waitcnt vmcnt(0)")
        a.raw("s_mov_b64 exec, 1")
        a.raw(f"v_mov_b32 v{t0}, 1")
        a.raw(f"v_mov_b32 v{t1}, 0")
        a.raw(f"buffer_atomic_add v{t0}, v{t1}, s[44:47], s31 offen offset:64")
        a.raw("s_mov_b64 exec, -1")
        a.merge("GM_noflag", sn, rawblock=True)
    def ldA1(t, mt):
        f = AF[t & 1]
        return f"ds_read_b128 v[{f+4*mt}:{f+4*mt+3}], v{aA + (t & 1)} offset:{((t>>1)%3)*ASLOT + (mt>>1)*4096 + (mt&1)*512}"
    def ldB1(t, T, h):
        o = ((t >> 1) % 3) * BSLOT + (t & 1) * 32 * 384 + h * 4 * 384
        return f"ds_read_b64_tr_b16 v[{BF+4*T+2*h}:{BF+4*T+2*h+1}], v{aB+T} offset:{o}"
    a.wait(lg=0)
    a("s_barrier")
    stamp(a, 1)
    for mt in range(4): a(ldA1(0, mt))
    for T in range(6):
        a(ldB1(0, T, 0)); a(ldB1(0, T, 1))
    for t in range(18):
        f = AF[t & 1]
        if t == 4: stamp(a, 6)
        if t == 10: stamp(a, 7)
        fill = {g: [] for g in range(24)}
        if t > 0:
            fill[0].append(ldB1(t, 5, 0)); fill[1].append(ldB1(t, 5, 1))
        if t < 17:
            n = t + 1
            if t & 1 == 0:
                for T in range(5):
                    fill[4*(T+1)].append(ldB1(n, T, 0)); fill[4*(T+1)+1].append(ldB1(n, T, 1))
                for mt in range(4): fill[6 + 4*mt].append(ldA1(n, mt))
            else:
                fill[7].append("BAR")
                seq = [ldB1(n, 0, 0), ldB1(n, 0, 1), ldA1(n, 0), ldA1(n, 1), ldB1(n, 1, 0), ldB1(n, 1, 1), ldA1(n, 2), ldA1(n, 3),
                       ldB1(n, 2, 0), ldB1(n, 2, 1), ldB1(n, 3, 0), ldB1(n, 3, 1), ldB1(n, 4, 0), ldB1(n, 4, 1)]
                for i, x in enumerate(seq): fill[8 + i].append(x)
        for T in range(6):
            for mt in range(4):
                c = f"v[{ac(mt,T)}:{ac(mt,T)+3}]"
                a(f"v_mfma_f32_16x16x32_bf16 {c}, v[{f+4*mt}:{f+4*mt+3}], v[{BF+4*T}:{BF+4*T+3}], {c}")
                for x in fill[4*T + mt]:
                    if x == "BAR":
                        a.wait(lg=0)
                        a("s_barrier")
                        if t == 3: setflag()
                    else: a(x)
    stamp(a, 2)
    R.put(AF[0], 16); R.put(AF[1], 16); R.put(BF, 24); R.put(aA, 2); R.put(aB, 6)
    tm = R.get(4, 2); L2 = R.get(2); fl = R.get(); zr = R.get()
    a(f"""
    v_mov_b32 v{zr}, 0
    buffer_load_dword v{fl}, v{zr}, s[44:47], s31 offen offset:64 sc1
    v_mov_b32 v{L2}, {LOG2E:#x}
    v_mov_b32 v{L2+1}, {LOG2E:#x}
    s_mov_b32 s56, {EPS:#x}
    """)
    def phi(r, keepmask=None):
        a(f"v_pk_mul_f32 v[{tm}:{tm+1}], v[{r}:{r+1}], v[{L2}:{L2+1}]")
        a(f"v_pk_mul_f32 v[{tm+2}:{tm+3}], v[{r+2}:{r+3}], v[{L2}:{L2+1}]")
        for j in range(4): a(f"v_exp_f32_e64 v{tm+j}, v{tm+j} clamp")
        if keepmask is not None: set_exec(a, keepmask)
        for j in range(4): a(f"v_max_f32 v{r+j}, s56, v{r+j}")
        a(f"v_pk_add_f32 v[{r}:{r+1}], v[{r}:{r+1}], v[{tm}:{tm+1}]")
        a(f"v_pk_add_f32 v[{r+2}:{r+3}], v[{r+2}:{r+3}], v[{tm+2}:{tm+3}]")
        if keepmask is not None: a("s_mov_b64 exec, -1")
    def pack(d, r):
        a(f"v_cvt_pk_bf16_f32 v{d}, v{r}, v{r+1}")
        a(f"v_cvt_pk_bf16_f32 v{d+1}, v{r+2}, v{r+3}")
    vq = R.get()
    a(f"""
    v_lshlrev_b32 v{vq}, 12, v{col}
    v_lshl_add_u32 v{vq}, v{rq}, 4, v{vq}
    s_lshl_b32 s57, s28, 8
    s_lshl_b32 s58, s48, 7
    s_add_u32 s57, s57, s58
    """)
    a("s_cmp_eq_u32 s27, 8")
    snapQ = a.branch("s_cbranch_scc1 GM_epi_q")
    F = {(T, p): R.get(4, 4) for T in range(5) for p in range(2)}
    AL = [R.get(4, 4) for p in range(2)]
    m_nv = lanemask(lambda c, r: (c >> 2) != 1)
    KVt = [ac(0, 0), ac(0, 1), ac(0, 2), ac(0, 3), ac(0, 4), ac(1, 0), ac(1, 1)]
    prods = [(('F', 2), 0), (('F', 3), 1), (('L', 0), 0), (('L', 0), 1), (('F', 2), 4), (('F', 3), 4), (('L', 0), 4)]
    a(f"v_cmp_eq_u32 s[64:65], 1, v{t3}")
    a(f"v_mov_b32 v{t1}, 0x3f803f80")
    for p in range(2):
        for mt in (2*p, 2*p+1):
            for T in (0, 1, 4, 2, 3):
                r = ac(mt, T)
                if T in (0, 1): phi(r)
                if T == 4: phi(r, m_nv)
                pack(F[(T, p)] + 2 * (mt & 1), r)
        for j in range(4): a(f"v_cndmask_b32 v{AL[p]+j}, v{t1}, v{F[(4,p)]+j}, s[64:65]")
        for i, (A_, B_) in enumerate(prods):
            Ar = F[(A_[1], p)] if A_[0] == 'F' else AL[p]
            Br = F[(B_, p)]
            c = f"v[{KVt[i]}:{KVt[i]+3}]"
            a(f"v_mfma_f32_16x16x32_bf16 {c}, v[{Ar}:{Ar+3}], v[{Br}:{Br+3}], {c if p else 0}")
    stamp(a, 4)
    b1 = AL[0]; b2 = AL[0] + 1; b3 = AL[0] + 2
    a(f"""
    s_mul_i32 s63, s48, {KVI_H}
    s_mul_i32 s60, s49, {2*380*4}
    s_add_u32 s60, s60, s63
    s_add_u32 s60, s60, {G_KVI}
    v_mul_u32_u24 v{b1}, {4*20*4}, v{rq}
    v_lshl_add_u32 v{b1}, v{col}, 2, v{b1}
    v_add_u32 v{b1}, s60, v{b1}
    v_lshlrev_b32 v{b2}, 2, v{col}
    v_add_u32 v{b2}, s60, v{b2}
    s_mul_i32 s58, s27, 48
    s_mul_i32 s59, s49, 24
    s_add_u32 s58, s58, s59
    s_lshl_b32 s58, s58, 12
    s_add_u32 s58, s58, s57
    s_add_u32 s59, s58, {8*4096}
    s_sub_u32 s58, s58, {8*4096}
    """)
    def add(base, reg, off): a(f"ds_write_b32 v{base}, v{reg} offset:{4*off}")
    K = KVt
    RS = 20; HS = 380
    for j in range(4): add(b1, K[0] + j, j * RS)
    for j in range(4): add(b1, K[1] + j, HS + (2 + j) * RS + 2)
    set_exec(a, lanemask(lambda c, r: r == 1))
    add(b2, K[2], 16 * RS); add(b2, K[2] + 1, 17 * RS)
    add(b2, K[3] + 2, HS + 2); add(b2, K[3] + 3, HS + RS + 2)
    set_exec(a, lanemask(lambda c, r: r == 2))
    add(b2, K[2], 18 * RS); add(b2, K[3], HS + 18 * RS + 2)
    set_exec(a, lanemask(lambda c, r: c < 2))
    for j in range(4): add(b1, K[4] + j, j * RS + 16)
    set_exec(a, lanemask(lambda c, r: c in (2, 3)))
    for j in range(4): add(b1, K[5] + j, HS + (2 + j) * RS - 2)
    set_exec(a, lanemask(lambda c, r: r == 1 and c < 2))
    add(b2, K[6], 16 * RS + 16); add(b2, K[6] + 1, 17 * RS + 16)
    set_exec(a, lanemask(lambda c, r: r == 1 and c in (2, 3)))
    add(b2, K[6] + 2, HS - 2); add(b2, K[6] + 3, HS + RS - 2)
    set_exec(a, lanemask(lambda c, r: r == 2 and c < 2))
    add(b2, K[6], 18 * RS + 16)
    set_exec(a, lanemask(lambda c, r: r == 2 and c in (2, 3)))
    add(b2, K[6], HS + 18 * RS - 2)
    a("s_mov_b64 exec, -1")
    a(f"v_add_u32 v{t0}, s58, v{vq}")
    set_exec(a, lanemask(lambda c, r: c >= 8))
    for p in range(2):
        d = F[(4, p)]
        a(f"buffer_store_dwordx4 v[{d}:{d+3}], v{t0}, s[40:43], 0 offen offset:{64*p}")
    a("s_mov_b64 exec, -1")
    a.wait(lg=0)
    a("s_barrier")
    stamp(a, 5)
    V6 = ac(2, 0); V7 = ac(3, 0)
    a(f"""
    v_lshlrev_b32 v{t0}, 2, v0
    v_add_u32 v{t1}, {G_KVI}, v{t0}
    """)
    for i in range(6): a(f"ds_read_b32 v{V6+i}, v{t1} offset:{1024*i}")
    for i in range(6): a(f"ds_read_b32 v{V7+i}, v{t1} offset:{KVI_H + 1024*i}")
    a(f"""
    s_mul_i32 s33, s27, 6080
    s_add_u32 s33, s33, {WS_KVS}
    v_mov_b32 v{t2}, 0x7f000000
    v_cmp_gt_u32 vcc, 240, v0
    v_cndmask_b32 v{t1}, v{t2}, v{t0}, vcc
    """)
    for i in range(6): a(f"v_add_f32 v{V6+i}, v{V6+i}, v{V7+i}")
    a(f"v_readfirstlane_b32 s32, v{fl}")
    a("s_cmp_lg_u32 s32, 0")
    sn = a.branch("s_cbranch_scc1 GM_flagok")
    a.raw("GM_poll:")
    a.raw(f"buffer_load_dword v{fl}, v{zr}, s[44:47], s31 offen offset:64 sc1")
    a.raw("s_waitcnt vmcnt(0)")
    a.raw(f"v_readfirstlane_b32 s32, v{fl}")
    a.raw("s_nop 1")
    a.raw("s_cmp_eq_u32 s32, 0")
    a.raw("s_cbranch_scc1 GM_poll")
    a.merge("GM_flagok", sn)
    for i in range(4):
        a(f"buffer_atomic_add_f32 v{V6+i}, v{t0}, s[40:43], s33 offen offset:{1024*i}")
    a(f"""
    s_add_u32 s33, s33, 4096
    buffer_atomic_add_f32 v{V6+4}, v{t0}, s[40:43], s33 offen
    buffer_atomic_add_f32 v{V6+5}, v{t1}, s[40:43], s33 offen offset:1024
    """)
    for p in range(2):
        d = F[(0, p)]
        for mt in (2*p, 2*p+1):
            r = ac(mt, 5); phi(r); pack(d + 2 * (mt & 1), r)
        a(f"buffer_store_dwordx4 v[{d}:{d+3}], v{vq}, s[40:43], s59 offen offset:{64*p}")
    stamp(a, 3)
    stamp_dump(a, 8, 40, 20, t0, t1)
    a.raw("s_endpgm")
    a.restore("GM_epi_q", snapQ)
    a(f"""
    s_mul_i32 s58, s49, 96
    s_add_u32 s58, s58, 384
    s_lshl_b32 s58, s58, 12
    s_add_u32 s58, s58, s57
    """)
    k = 0
    for T in range(6):
        for p in range(2):
            d = list(F.values())[k % 10]; k += 1
            for mt in (2*p, 2*p+1):
                r = ac(mt, T); phi(r); pack(d + 2 * (mt & 1), r)
            a(f"buffer_store_dwordx4 v[{d}:{d+3}], v{vq}, s[40:43], s58 offen offset:{64*p}")
        a(f"s_add_u32 s58, s58, {16*4096}")
    stamp(a, 3)
    stamp_dump(a, 8, 40, 20, t0, t1)
    a.label("GM_exit", flush=False)
    a.raw("s_endpgm")
```

```python
from asmlib import *
from layout import *

K2_PQ = 0
K2_KV = 49152
K2_OF = K2_KV + 30720
K2_LDS = K2_OF + 36864
K2_GRID = 256; K2_BLOCK = 576
import os
EARLYBAR = int(os.environ.get('EARLYBAR', 0))
PREF = int(os.environ.get('PREF', 0))

def gen_k2():
    a = Asm()
    R = VAlloc(1, 168)
    a("""
    s_cmp_ge_u32 s2, 256
    s_cbranch_scc1 K2_end
    s_load_dwordx2 s[4:5], s[0:1], 104
    s_load_dwordx2 s[6:7], s[0:1], 120
    """)
    lane = R.get(); t0 = R.get(); t1 = R.get(); t2 = R.get(); t3 = R.get()
    col = R.get(); rq = R.get(); l16 = R.get()
    aB = R.get(); aM = R.get(); aX0 = R.get(); aX1 = R.get(); aO = R.get(); aL = R.get(); _pad = R.get()
    lo = R.get(4, 2); r0 = R.get(2); r1 = R.get(2)
    stamp(a, 0)
    a(f"""
    v_lshrrev_b32 v{t0}, 6, v0
    v_and_b32 v{lane}, 63, v0
    v_readfirstlane_b32 s20, v{t0}
    s_and_b32 s21, s2, 7
    s_lshr_b32 s22, s2, 3
    s_lshl_b32 s21, s21, 3
    s_lshr_b32 s23, s22, 2
    s_add_u32 s21, s21, s23
    s_and_b32 s22, s22, 3
    s_lshl_b32 s23, s23, 1
    v_and_b32 v{col}, 15, v{lane}
    v_lshrrev_b32 v{rq}, 4, v{lane}
    v_lshlrev_b32 v{l16}, 4, v{lane}
    v_lshrrev_b32 v{t1}, 2, v{lane}
    v_lshlrev_b32 v{t1}, 12, v{t1}
    v_and_b32 v{t2}, 3, v{lane}
    v_lshl_add_u32 v{t1}, v{t2}, 4, v{t1}
    s_mul_i32 s24, s20, 6080
    s_add_u32 s24, s24, {WS_KVS}
    s_mul_i32 s25, s20, {72*4096}
    s_lshl_b32 s26, s21, 6
    s_add_u32 s25, s25, s26
    s_mul_i32 s27, s20, 6144
    s_mul_i32 s26, s22, 9
    s_add_u32 s26, s26, s20
    s_mul_i32 s28, s26, 18432
    s_add_u32 s28, s28, {WS_WOF}
    """)
    a(f"""
    s_mov_b32 s8, s6
    s_mov_b32 s9, s7
    s_mov_b32 s10, {WS_SIZE}
    s_mov_b32 s11, 0x20000
    s_mov_b32 s12, s4
    s_mov_b32 s13, s5
    s_mov_b32 s14, 2359296
    s_mov_b32 s15, 0x20000
    """)
    wof = R.get(72, 4); bt = R.get(4, 2); g = R.get(8, 4)
    def wof_ld(i):
        a(f"""
        s_add_u32 s30, s23, {i}
        s_cmp_ge_u32 s30, 18
        s_cselect_b32 s31, 18, 0
        s_sub_u32 s30, s30, s31
        s_lshl_b32 s{40+i}, s30, 10
        s_add_u32 s31, s{40+i}, s28
        buffer_load_dwordx4 v[{wof+4*i}:{wof+4*i+3}], v{l16}, s[8:11], s31 offen
        """)
    def btg_ld():
        a(f"""
        v_lshlrev_b32 v{t2}, 12, v{col}
        v_lshl_add_u32 v{t2}, v{rq}, 3, v{t2}
        s_lshl_b32 s29, s26, 16
        s_lshl_b32 s30, s21, 6
        s_add_u32 s29, s29, s30
        s_add_u32 s29, s29, {WS_BT}
        buffer_load_dwordx2 v[{bt}:{bt+1}], v{t2}, s[8:11], s29 offen
        buffer_load_dwordx2 v[{bt+2}:{bt+3}], v{t2}, s[8:11], s29 offen offset:32
        v_lshlrev_b32 v{t3}, 4, v{rq}
        s_lshl_b32 s30, s21, 7
        s_add_u32 s30, s30, {WS_G}
        buffer_load_dwordx4 v[{g}:{g+3}], v{t3}, s[8:11], s30 offen
        buffer_load_dwordx4 v[{g+4}:{g+7}], v{t3}, s[8:11], s30 offen offset:64
        """)
    if PREF:
        a(f"""
        s_lshr_b32 s62, s2, 3
        s_and_b32 s63, s2, 7
        v_lshrrev_b32 v{t0}, 5, v{lane}
        v_lshlrev_b32 v{t0}, 12, v{t0}
        v_and_b32 v{t2}, 31, v{lane}
        v_lshl_add_u32 v{t0}, v{t2}, 4, v{t0}
        s_mul_i32 s64, s62, 18
        s_lshl_b32 s65, s20, 1
        s_add_u32 s64, s64, s65
        s_lshl_b32 s64, s64, 12
        s_lshl_b32 s65, s63, 9
        s_add_u32 s64, s64, s65
        s_mul_i32 s66, s62, 1536
        s_lshl_b32 s65, s20, 10
        s_add_u32 s66, s66, s65
        s_add_u32 s66, s66, {WS_KVS}
        s_cmp_ge_u32 s20, 2
        s_cselect_b32 s66, 0x7f000000, s66
        s_mul_i32 s67, s62, 20736
        s_add_u32 s67, s67, s65
        s_add_u32 s67, s67, {WS_WOF}
        """)
        d = wof + 56
        a.raw(f"buffer_load_dwordx4 v[{d}:{d+3}], v{t0}, s[8:11], s64 offen")
        a.raw(f"buffer_load_dwordx4 v[{d+4}:{d+7}], v{l16}, s[8:11], s66 offen")
        def pref2():
            a.raw(f"buffer_load_dwordx4 v[{d+8}:{d+11}], v{l16}, s[8:11], s67 offen")
            a.raw("s_add_u32 s67, s67, 9216")
            a.raw(f"buffer_load_dwordx4 v[{d+12}:{d+15}], v{l16}, s[8:11], s67 offen")
            a.raw("s_add_u32 s67, s67, 9216")
            a.raw("s_cmp_ge_u32 s20, 3")
            a.raw("s_cselect_b32 s67, 0x7f000000, s67")
            a.raw(f"buffer_load_dwordx4 v[{d}:{d+3}], v{l16}, s[8:11], s67 offen")
            a.raw(f"s_add_u32 s64, s64, {WS_BT}")
            a.raw(f"buffer_load_dwordx4 v[{d+4}:{d+7}], v{t0}, s[8:11], s64 offen")
        pref2()
    a("s_cmp_eq_u32 s20, 8")
    snap8 = a.branch("s_cbranch_scc1 K2_w8")
    kv = R.get(24, 4)
    for i in range(6):
        if i == 4: a("s_add_u32 s24, s24, 4096")
        a(f"buffer_load_dwordx4 v[{kv+4*i}:{kv+4*i+3}], v{l16}, s[8:11], s24 offen offset:{(i%4)*1024}")
    for i in range(6):
        a(f"""
        s_add_u32 s29, s25, {WS_PQT + i*65536}
        s_add_u32 m0, s27, {K2_PQ + i*1024}
        buffer_load_dwordx4 v{t1}, s[8:11], s29 offen lds
        """)
    if EARLYBAR: a("s_barrier")
    z4 = R.get(4, 4); ka = R.get(6)
    for j in range(4): a(f"v_mov_b32 v{z4+j}, 0")
    a(f"""
    s_mul_i32 s34, s20, 3840
    s_add_u32 s34, s34, {K2_KV}
    v_add_u32 v{t0}, s34, v{l16}
    ds_write_b128 v{t0}, v[{z4}:{z4+3}]
    ds_write_b128 v{t0}, v[{z4}:{z4+3}] offset:1024
    ds_write_b128 v{t0}, v[{z4}:{z4+3}] offset:2048
    s_mov_b32 exec_hi, 0xffff
    ds_write_b128 v{t0}, v[{z4}:{z4+3}] offset:3072
    s_mov_b64 exec, -1
    s_mov_b32 s31, 13108
    s_mov_b32 s32, 3450
    """)
    R.put(z4, 4)
    for i in range(6):
        a(f"""
        v_add_u32 v{t0}, {64*i}, v{lane}
        v_mul_lo_u32 v{t2}, v{t0}, s31
        v_lshrrev_b32 v{t2}, 16, v{t2}
        v_mul_lo_u32 v{t3}, v{t2}, s32
        v_lshrrev_b32 v{t3}, 16, v{t3}
        v_add_u32 v{t3}, v{t3}, v{t2}
        v_mul_u32_u24 v{t3}, 48, v{t3}
        v_mul_u32_u24 v{t2}, 40, v{t2}
        v_lshlrev_b32 v{t0}, 3, v{t0}
        v_sub_u32 v{t0}, v{t0}, v{t2}
        v_add3_u32 v{ka+i}, v{t0}, v{t3}, s34
        """)
    a(f"""
    v_lshrrev_b32 v{t0}, 2, v{lane}
    v_and_b32 v{t0}, 3, v{t0}
    v_lshl_add_u32 v{t0}, v{rq}, 3, v{t0}
    v_lshlrev_b32 v{t0}, 6, v{t0}
    v_and_b32 v{t2}, 3, v{lane}
    v_lshl_add_u32 v{t0}, v{t2}, 3, v{t0}
    v_add_u32 v{aB}, s27, v{t0}
    v_mul_u32_u24 v{t0}, 48, v{col}
    v_lshl_add_u32 v{t0}, v{rq}, 4, v{t0}
    v_mov_b32 v{t2}, {19*48}
    v_cmp_gt_u32 vcc, 3, v{rq}
    v_cndmask_b32 v{t0}, v{t2}, v{t0}, vcc
    v_add_u32 v{aM}, s34, v{t0}
    """)
    jq = aO; rr = aL
    a(f"v_and_b32 v{jq}, 3, v{col}"); a(f"v_lshrrev_b32 v{rr}, 2, v{col}")
    for p, aX in ((0, aX0), (1, aX1)):
        a(f"""
        v_mov_b32 v{t0}, 19
        v_cmp_eq_u32 vcc, {p}, v{jq}
        v_cndmask_b32 v{t0}, v{t0}, 18, vcc
        v_and_b32 v{t2}, 1, v{rr}
        v_add_u32 v{t2}, 16, v{t2}
        v_lshrrev_b32 v{t3}, 1, v{rr}
        v_lshlrev_b32 v{t3}, 2, v{t3}
        v_add_u32 v{t3}, v{t3}, v{jq}
        v_cmp_eq_u32 vcc, {4*p+2}, v{t3}
        v_cndmask_b32 v{t0}, v{t0}, v{t2}, vcc
        v_cmp_gt_u32 vcc, 3, v{rq}
        v_cndmask_b32 v{t0}, 19, v{t0}, vcc
        v_mul_u32_u24 v{t0}, 48, v{t0}
        v_min_u32 v{t2}, 2, v{rq}
        v_lshl_add_u32 v{t0}, v{t2}, 4, v{t0}
        v_add_u32 v{aX}, s34, v{t0}
        """)
    a(f"""
    v_cmp_lt_u32 s[36:37], 1, v{rq}
    s_lshl_b32 s38, s20, 11
    s_add_u32 s38, s38, {K2_OF}
    v_add_u32 v{aO}, s38, v{l16}
    s_lshr_b32 s38, s20, 2
    s_lshl_b32 s38, s38, 10
    s_and_b32 s39, s20, 3
    s_lshl_b32 s39, s39, 2
    s_add_u32 s38, s38, s39
    s_add_u32 s38, s38, {K2_OF + 16*1024}
    v_add_u32 v{aL}, s38, v{l16}
    """)
    stamp(a, 1)
    for i in range(6):
        a(f"v_cvt_pk_bf16_f32 v{kv+4*i}, v{kv+4*i}, v{kv+4*i+1}")
        a(f"v_cvt_pk_bf16_f32 v{kv+4*i+1}, v{kv+4*i+2}, v{kv+4*i+3}")
        if i == 5: a("s_mov_b32 exec_hi, 0x0fffffff")
        a(f"ds_write_b64 v{ka+i}, v[{kv+4*i}:{kv+4*i+1}]")
    a("s_mov_b64 exec, -1")
    R.put(kv, 24); R.put(ka, 6)
    stamp(a, 2)
    FA = R.get(16, 4); FB = R.get(16, 4); M = R.get(24, 4)
    def ldA(p):
        for hh in range(2):
            h = 2*p + hh
            a(f"ds_read_b128 v[{FA+8*hh}:{FA+8*hh+3}], v{aM} offset:{h*960}")
            a(f"ds_read_b128 v[{FA+8*hh+4}:{FA+8*hh+7}], v{aX0 if hh == 0 else aX1} offset:{h*960}")
    def ldB(p):
        for mt in range(2):
            for hh in range(2):
                h = 2*p + hh; b = FB + 8*mt + 4*hh
                a(f"ds_read_b64_tr_b16 v[{b}:{b+1}], v{aB} offset:{h*1152 + 32*mt}")
                a(f"ds_read_b64_tr_b16 v[{b+2}:{b+3}], v{aB} offset:{h*1152 + 256 + 32*mt}")
    ldA(0)
    for i in range(4): wof_ld(i)
    a.wait(vm=4)
    stamp(a, 3)
    ldB(0)
    wi = 4
    for p in range(2):
        for mt in range(2):
            m = M + 12*mt; b = FB + 8*mt
            a(f"""
            v_mfma_f32_16x16x32_bf16 v[{m+8}:{m+11}], v[{FA+4}:{FA+7}], v[{b}:{b+3}], 0
            v_mfma_f32_16x16x32_bf16 v[{m}:{m+3}], v[{FA}:{FA+3}], v[{b}:{b+3}], 0
            v_mfma_f32_16x16x32_bf16 v[{m+8}:{m+11}], v[{FA+12}:{FA+15}], v[{b+4}:{b+7}], v[{m+8}:{m+11}]
            v_mfma_f32_16x16x32_bf16 v[{m+4}:{m+7}], v[{FA+8}:{FA+11}], v[{b+4}:{b+7}], 0
            """)
        if p == 0:
            ldA(1); ldB(1)
        for _ in range(3): wof_ld(wi); wi += 1
        for mt in range(2):
            m = M + 12*mt
            a(f"""
            v_add_f32 v{r0}, 0x358637bd, v{m+8}
            v_add_f32 v{r1}, 0x358637bd, v{m+9}
            v_rcp_f32 v{r0}, v{r0}
            v_rcp_f32 v{r1}, v{r1}
            v_pk_mul_f32 v[{m}:{m+1}], v[{m}:{m+1}], v[{r0}:{r0+1}] op_sel_hi:[1,0]
            v_pk_mul_f32 v[{m+2}:{m+3}], v[{m+2}:{m+3}], v[{r0}:{r0+1}] op_sel_hi:[1,0]
            v_pk_mul_f32 v[{m+4}:{m+5}], v[{m+4}:{m+5}], v[{r1}:{r1+1}] op_sel_hi:[1,0]
            v_pk_mul_f32 v[{m+6}:{m+7}], v[{m+6}:{m+7}], v[{r1}:{r1+1}] op_sel_hi:[1,0]
            v_cndmask_b32 v{r0}, v{r0}, v{r1}, s[36:37]
            v_mul_f32 v{lo+2*mt+p}, v{m+10}, v{r0}
            v_cvt_pk_bf16_f32 v{m+8}, v{m}, v{m+1}
            v_cvt_pk_bf16_f32 v{m+9}, v{m+2}, v{m+3}
            v_cvt_pk_bf16_f32 v{m+10}, v{m+4}, v{m+5}
            v_cvt_pk_bf16_f32 v{m+11}, v{m+6}, v{m+7}
            ds_write_b128 v{aO}, v[{m+8}:{m+11}] offset:{mt*18432 + p*1024}
            """)
            for _ in range(2): wof_ld(wi); wi += 1
    a(f"""
    v_cvt_pk_bf16_f32 v{lo}, v{lo}, v{lo+1}
    v_cvt_pk_bf16_f32 v{lo+2}, v{lo+2}, v{lo+3}
    ds_write_b32 v{aL}, v{lo}
    ds_write_b32 v{aL}, v{lo+2} offset:18432
    """)
    assert wi == 18
    btg_ld()
    a.wait(lg=0)
    a.nopflush()
    final_q = [set(x) for x in a.vmq]
    a.raw("s_branch K2_phaseB")
    a.restore("K2_w8", snap8)
    if EARLYBAR: a("s_barrier")
    for i in range(18): wof_ld(i)
    btg_ld()
    a.nopflush()
    assert [sorted(x) for x in a.vmq] == [sorted(x) for x in final_q], (len(a.vmq), len(final_q))
    a.raw("K2_phaseB:")
    a("s_barrier")
    stamp(a, 4)
    R.put(FA, 16); R.put(FB, 16); R.put(M, 24)
    acc = R.get(8, 4)
    NB = 3
    fa = [R.get(8, 4) for _ in range(NB)]
    ad = [R.get() for _ in range(NB)]
    a(f"v_add_u32 v{t3}, {K2_OF}, v{l16}")
    def ld(i):
        if i >= 18: return
        a(f"v_add_u32 v{ad[i%NB]}, s{40+i}, v{t3}")
        a(f"ds_read_b128 v[{fa[i%NB]}:{fa[i%NB]+3}], v{ad[i%NB]}")
        a(f"ds_read_b128 v[{fa[i%NB]+4}:{fa[i%NB]+7}], v{ad[i%NB]} offset:18432")
    for i in range(NB - 1): ld(i)
    for i in range(18):
        ld(i + NB - 1)
        for mt in range(2):
            c = f"v[{acc+4*mt}:{acc+4*mt+3}]"
            a(f"v_mfma_f32_16x16x32_bf16 {c}, v[{fa[i%NB]+4*mt}:{fa[i%NB]+4*mt+3}], v[{wof+4*i}:{wof+4*i+3}], {c if i else 0}")
    stamp(a, 5)
    bf = R.get(4); o16 = R.get(2)
    a(f"""
    v_lshlrev_b32 v{t0}, 2, v{rq}
    v_mul_u32_u24 v{t0}, 1152, v{t0}
    v_lshl_add_u32 v{t0}, v{col}, 1, v{t0}
    s_mul_i32 s60, s21, {32*1152}
    s_lshl_b32 s61, s26, 5
    s_add_u32 s60, s60, s61
    """)
    for mt in range(2):
        a(f"""
        v_lshlrev_b32 v{bf}, 16, v{bt+2*mt}
        v_and_b32 v{bf+1}, 0xffff0000, v{bt+2*mt}
        v_lshlrev_b32 v{bf+2}, 16, v{bt+2*mt+1}
        v_and_b32 v{bf+3}, 0xffff0000, v{bt+2*mt+1}
        """)
        for j in range(4):
            A = acc + 4*mt + j
            a(f"v_sub_f32 v{A}, v{A}, v{bf+j}")
            a(f"v_fma_f32 v{A}, v{g+4*mt+j}, v{A}, v{bf+j}")
        a(f"""
        v_cvt_pk_bf16_f32 v{o16}, v{acc+4*mt}, v{acc+4*mt+1}
        v_cvt_pk_bf16_f32 v{o16+1}, v{acc+4*mt+2}, v{acc+4*mt+3}
        buffer_store_short v{o16}, v{t0}, s[12:15], s60 offen
        buffer_store_short_d16_hi v{o16}, v{t0}, s[12:15], s60 offen offset:1152
        buffer_store_short v{o16+1}, v{t0}, s[12:15], s60 offen offset:2304
        buffer_store_short_d16_hi v{o16+1}, v{t0}, s[12:15], s60 offen offset:3456
        """)
        if mt == 0:
            a(f"s_add_u32 s60, s60, {16*1152}")
            o16 = R.get(2)
    stamp(a, 6)
    stamp_dump(a, 7, 8, 20, t1, t2)
    a.label("K2_end", flush=False)
    return a, R.high
```

```python
from asmlib import *
def touch_setup(a, lane, vx, vw, t0, t1):
    a(f"""
    v_mul_u32_u24 v{vx}, 1152, v{lane}
    s_lshr_b32 s68, s16, 2
    s_mul_i32 s69, s68, 3
    s_lshl_b32 s70, s68, 1
    s_add_u32 s70, s70, 4
    s_add_u32 s71, s68, 10
    v_and_b32 v{t0}, 15, v{lane}
    v_add_u32 v{vw}, s69, v{t0}
    s_sub_u32 s69, 5, s68
    v_add_u32 v{t1}, s69, v{vw}
    v_cmp_le_u32 vcc, s70, v{t0}
    v_cndmask_b32 v{vw}, v{vw}, v{t1}, vcc
    s_add_u32 s69, s68, 3
    v_add_u32 v{t1}, s69, v{vw}
    v_cmp_le_u32 vcc, s71, v{t0}
    v_cndmask_b32 v{vw}, v{vw}, v{t1}, vcc
    v_lshlrev_b32 v{vw}, 7, v{vw}
    v_lshrrev_b32 v{t0}, 4, v{lane}
    v_mul_u32_u24 v{t0}, 3456, v{t0}
    v_add_u32 v{vw}, v{vw}, v{t0}
    """)
def touch_issue(a, sq, vx, vw, dst, srdx, srdw, tag):
    a(f"""
    s_mul_hi_u32 s68, s{sq}, 178956971
    s_mul_i32 s69, s68, 24
    s_sub_u32 s69, s{sq}, s69
    s_cmp_ge_u32 s69, 8
    """)
    a.raw(f"s_cbranch_scc1 {tag}_w")
    a.raw("s_and_b32 s70, s16, 3")
    a.raw("s_lshl_b32 s70, s70, 3")
    a.raw("s_add_u32 s70, s70, s69")
    a.raw(f"s_mul_i32 s70, s70, {64*1152}")
    a.raw("s_lshl_b32 s71, s68, 7")
    a.raw("s_add_u32 s70, s70, s71")
    a.raw(f"buffer_load_dword v{dst}, v{vx}, s[{srdx}:{srdx+3}], s70 offen")
    a.raw(f"s_branch {tag}_d")
    a.raw(f"{tag}_w:")
    a.raw("s_lshl_b32 s70, s68, 4")
    a.raw("s_add_u32 s70, s70, s69")
    a.raw("s_sub_u32 s70, s70, 8")
    a.raw(f"s_mul_i32 s70, s70, {4*3456}")
    a.raw(f"buffer_load_dword v{dst}, v{vw}, s[{srdw}:{srdw+3}], s70 offen")
    a.raw(f"{tag}_d:")
    a.vmq.append(set([('v', dst)]))
```

```python
from asmlib import *
from layout import *
from touch import *
import os

def gen_aux(a, R):
    lane = R.get(); t0 = R.get(); t1 = R.get(); t2 = R.get(); l16 = R.get(); aT = R.get(); aL = R.get()
    a(f"""
    s_load_dwordx2 s[6:7], s[0:1], 120
    s_load_dwordx2 s[36:37], s[0:1], 16
    s_load_dwordx4 s[92:95], s[0:1], 0
    v_and_b32 v{lane}, 63, v0
    s_lshl_b32 s21, s16, 1
    s_add_u32 s21, s21, s17
    s_sub_u32 s21, s21, 30
    v_lshlrev_b32 v{l16}, 4, v{lane}
    s_mul_i32 s22, s21, 41472
    s_lshl_b32 s23, s20, 10
    s_add_u32 s22, s22, s23
    v_lshrrev_b32 v{t0}, 2, v{lane}
    v_mul_u32_u24 v{t0}, 1152, v{t0}
    v_and_b32 v{t1}, 3, v{lane}
    v_lshl_add_u32 v{aT}, v{t1}, 3, v{t0}
    s_mul_i32 s24, s20, 96
    v_add_u32 v{aT}, s24, v{aT}
    v_lshrrev_b32 v{t0}, 5, v{lane}
    v_mul_u32_u24 v{t0}, {18*1152}, v{t0}
    v_bfe_u32 v{t1}, v{lane}, 4, 1
    v_mul_u32_u24 v{t1}, 1152, v{t1}
    v_add_u32 v{t0}, v{t0}, v{t1}
    v_and_b32 v{t1}, 15, v{lane}
    v_lshl_add_u32 v{aL}, v{t1}, 1, v{t0}
    v_add_u32 v{aL}, s24, v{aL}
    s_mov_b32 s12, s6
    s_mov_b32 s13, s7
    s_mov_b32 s14, {WS_SIZE}
    s_mov_b32 s15, 0x20000
    s_mov_b32 s40, s36
    s_mov_b32 s41, s37
    s_mov_b32 s42, 663552
    s_mov_b32 s43, 0x20000
    """)
    if os.environ.get("TLBW"):
        dm = R.get(2); ta = R.get()
        a(f"""
        s_load_dwordx2 s[48:49], s[0:1], 104
        v_lshlrev_b32 v{ta}, 16, v{lane}
        buffer_load_dword v{dm}, v{ta}, s[12:15], 0 offen
        s_mov_b32 s30, 0x400000
        buffer_load_dword v{dm}, v{ta}, s[12:15], s30 offen
        s_mov_b32 s50, 2359296
        s_mov_b32 s51, 0x20000
        buffer_load_dword v{dm+1}, v{ta}, s[48:51], 0 offen
        """)
    for i in range(4):
        a(f"""
        s_add_u32 m0, s23, {i*12288}
        s_add_u32 s25, s22, {i*12288}
        buffer_load_dwordx4 v{l16}, s[40:43], s25 offen lds
        """)
    if os.environ.get("TOUCH", "0") == "1":
        vx = R.get(); vw = R.get(); dd = R.get(3)
        a("""
        s_mov_b32 s8, s92
        s_mov_b32 s9, s93
        s_mov_b32 s10, 2359296
        s_mov_b32 s11, 0x20000
        s_mov_b32 s96, s94
        s_mov_b32 s97, s95
        s_mov_b32 s98, 1990656
        s_mov_b32 s99, 0x20000
        s_lshl_b32 s33, s20, 1
        s_add_u32 s33, s33, s17
        s_add_u32 s33, s33, 18
        """)
        touch_setup(a, lane, vx, vw, t0, t1)
        touch_issue(a, 33, vx, vw, dd, 8, 96, "AX_t0")
        a.wait(vm=1)
    else:
        a.wait(vm=0)
    a("s_barrier")
    F = [R.get(4, 4) for _ in range(3)]; H = R.get(3)
    for j in range(3):
        a(f"ds_read_b64_tr_b16 v[{F[j]}:{F[j]+1}], v{aT} offset:{32*j}")
        a(f"ds_read_b64_tr_b16 v[{F[j]+2}:{F[j]+3}], v{aT} offset:{18*1152 + 32*j}")
        a(f"ds_read_u16 v{H+j}, v{aL} offset:{16*1152 + 32*j}")
    a(f"""
    s_mul_i32 s26, s20, {3*18432}
    s_lshl_b32 s27, s21, 10
    s_add_u32 s27, s27, s26
    s_add_u32 s27, s27, {WS_WOF}
    s_lshr_b32 s28, s21, 3
    s_lshl_b32 s28, s28, 10
    s_and_b32 s29, s21, 7
    s_lshl_b32 s29, s29, 1
    s_add_u32 s28, s28, s29
    s_add_u32 s28, s28, s26
    s_add_u32 s28, s28, {WS_WOF + 16*1024}
    """)
    for j in range(3):
        a(f"buffer_store_dwordx4 v[{F[j]}:{F[j]+3}], v{l16}, s[12:15], s27 offen{SC}")
        a(f"buffer_store_short v{H+j}, v{l16}, s[12:15], s28 offen{SC}")
        if j < 2:
            a("s_add_u32 s27, s27, 18432"); a("s_add_u32 s28, s28, 18432")
    if os.environ.get("TOUCH", "0") == "1":
        for i in ():
            a("s_add_u32 s33, s33, 24")
            touch_issue(a, 33, vx, vw, dd + i, 8, 96, f"AX_t{i}")
    if MERGE:
        a("s_load_dwordx2 s[44:45], s[0:1], 112")
        a(f"""
        v_lshlrev_b32 v{t0}, 7, v{lane}
        v_mov_b32 v{F[0]}, 0
        v_mov_b32 v{F[0]+1}, 0
        s_lshl_b32 s30, s21, 11
        s_add_u32 s30, s30, {WS_GO}
        s_mov_b64 exec, 0xffff
        buffer_store_dwordx2 v[{F[0]}:{F[0]+1}], v{t0}, s[12:15], s30 offen sc1
        s_mov_b64 exec, -1
        """)
        a.wait(vm=0, lg=0)
        a("s_barrier")
        a(f"""
        s_mov_b32 s46, 256
        s_mov_b32 s47, 0x20000
        s_mov_b32 s19, {D_DUMMY}
        s_mov_b32 s18, -1
        s_cmp_lg_u32 s20, 0
        s_cbranch_scc1 PH2
        s_mov_b64 exec, 1
        v_mov_b32 v{t0}, 1
        buffer_atomic_add v{t0}, off, s[44:47], 0 offset:{D_AUX}
        s_mov_b64 exec, -1
        """)
        a.raw("s_branch PH2")
    else: a.raw("s_endpgm")
```

```python
from asmlib import *
from layout import *
import struct, os
def fbits(x): return struct.unpack('<I', struct.pack('<f', x))[0]
LOG2E = fbits(1.4426950408889634)
import numpy as np
_c = 1.0/(2*np.pi); C_HI = np.float32(_c); C_LO = np.float32(_c - float(C_HI))
INV2PI_HI = fbits(float(C_HI)); INV2PI_LO = fbits(float(C_LO))

BUF = 4352
SCR0 = 0
SCR1 = 12 * BUF
U_STRIDE = 4608
C_U = 24 * BUF
C_BOX = C_U + 6 * U_STRIDE
C_FL = C_BOX + 2048
C_TAB = C_FL + 256
C_LDS = C_TAB + 3072
L0 = 639; KR_COPY = 1344
GH_COPY = 928
F_P, F_K, F_A, F_M, F_U = 0, 12, 24, 36, 40
SLEEP = int(os.environ.get("CSLEEP", 2))
GATHER_AT = int(os.environ.get("GATHER_AT", 6))
WAITALL = int(os.environ.get("WAITALL", 1))

def cmul(a, d, x, y, t):
    a(f"v_pk_mul_f32 v[{t}:{t+1}], v[{x}:{x+1}], v[{y}:{y+1}] op_sel:[0,0] op_sel_hi:[0,1]")
    a(f"v_pk_fma_f32 v[{d}:{d+1}], v[{x}:{x+1}], v[{y}:{y+1}], v[{t}:{t+1}] op_sel:[1,1,0] op_sel_hi:[1,0,1] neg_lo:[1,0,0]")

def gen_conv(a, R):
    lane = R.get(); t0 = R.get(); t1 = R.get(); t2 = R.get(); t3 = R.get()
    col = R.get(); rq = R.get()
    own = R.get(); prt = R.get(); aT = R.get(); aT2 = R.get(); aU = R.get(); aS = R.get(); aKF = R.get(); aHF = R.get(); oadr = R.get()
    fad = R.get(); flv = R.get(); one = R.get()
    BX = R.get(12, 2)
    rd = R.get(); p0 = R.get(); p1 = R.get(); p3 = R.get(); dt = R.get(); dsk = R.get()
    stamp(a, 0)
    a(f"""
    s_setprio 3
    s_load_dwordx16 s[36:51], s[0:1], 32
    s_load_dwordx2 s[4:5], s[0:1], 0
    s_load_dwordx2 s[6:7], s[0:1], 120
    v_and_b32 v{lane}, 63, v0
    s_lshr_b32 s22, s20, 1
    s_and_b32 s23, s20, 1
    s_mul_i32 s24, s21, 6
    s_add_u32 s24, s24, s22
    s_lshl_b32 s25, s24, 8
    s_lshl_b32 s26, s23, 7
    s_add_u32 s27, s25, s26
    s_xor_b32 s26, s26, 128
    s_add_u32 s28, s25, s26
    v_lshlrev_b32 v{p0}, 1, v{lane}
    v_add_u32 v{p1}, s28, v{p0}
    v_add_u32 v{p0}, s27, v{p0}
    s_lshl_b32 s25, s24, 1
    v_mov_b32 v{p3}, s25
    v_and_b32 v{col}, 15, v0
    v_lshrrev_b32 v{rq}, 4, v{lane}
    v_lshlrev_b32 v{fad}, 2, v{lane}
    v_add_u32 v{fad}, {C_FL}, v{fad}
    v_mov_b32 v{one}, 0
    s_mul_i32 s56, s20, {BUF}
    s_mov_b32 m0, s56
    s_xor_b32 s57, s20, 1
    s_and_b32 s60, s20, 14
    s_mul_i32 s60, s60, {BUF}
    s_add_u32 s60, s60, {SCR1}
    s_add_u32 s61, s60, {BUF}
    s_lshl_b32 s62, s23, 6
    s_mul_i32 s64, s22, {U_STRIDE}
    s_add_u32 s64, s64, {C_U + 512}
    """)
    par = R.get(10)
    a(f"global_load_ushort v{dt}, v{p3}, s[48:49]")
    a(f"global_load_ushort v{dsk}, v{p3}, s[50:51]")
    for i in range(6):
        a(f"global_load_ushort v{par+i}, v{p0}, s[{36+2*i}:{37+2*i}]")
    for i in range(4):
        a(f"global_load_ushort v{par+6+i}, v{p1}, s[{40+2*i}:{41+2*i}]")
    R.put(p0); R.put(p1); R.put(p3)
    a(f"""
    s_mov_b32 s8, s4
    s_mov_b32 s9, s5
    s_mov_b32 s10, 2359296
    s_mov_b32 s11, 0x20000
    s_mov_b32 s12, s6
    s_mov_b32 s13, s7
    s_mov_b32 s14, {WS_SIZE}
    s_mov_b32 s15, 0x20000
    """)
    xrow = [R.get(4, 2) for _ in range(8)]
    gad = R.get(); uad = R.get()
    a("s_cmp_lt_u32 s20, 4")
    snG2 = a.branch("s_cbranch_scc1 CV_g2pre")
    a(f"""
    s_sub_u32 s32, s22, 1
    s_sub_u32 s33, s32, s23
    s_sub_u32 s33, s33, 64
    s_lshl_b32 s32, s32, 1
    v_lshl_add_u32 v{t3}, v{lane}, 1, s33
    v_cmp_ge_u32 vcc, s32, v{t3}
    v_mov_b32 v{t0}, 0x3c00
    v_cndmask_b32 v{t2}, 0, v{t0}, vcc
    v_add_u32 v{t3}, 1, v{t3}
    v_cmp_ge_u32 vcc, s32, v{t3}
    v_mov_b32 v{t0}, 0x3c000000
    v_cndmask_b32 v{t3}, 0, v{t0}, vcc
    v_or_b32 v{t2}, v{t2}, v{t3}
    s_lshl_b32 s32, s20, 8
    s_sub_u32 s32, s32, 3072
    v_add_u32 v{t0}, s32, v{fad}
    ds_write_b32 v{t0}, v{t2}
    """)
    pieces = {}
    pieces[0] = f"""
    v_lshrrev_b32 v{t1}, 1, v{rq}
    v_lshlrev_b32 v{t1}, 5, v{t1}
    v_and_b32 v{t2}, 1, v{rq}
    v_lshlrev_b32 v{t2}, 4, v{t2}
    v_sub_u32 v{t3}, v{t2}, v{t1}
    v_lshlrev_b32 v{t1}, 1, v{col}
    v_sub_u32 v{t3}, v{t3}, v{t1}
    v_and_b32 v{t2}, 1, v{col}
    v_cmp_eq_u32 vcc, 0, v{t2}
    v_mov_b32 v{t0}, {KR_COPY + 2}
    v_cndmask_b32 v{t0}, 0, v{t0}, vcc
    v_add_u32 v{t0}, v{t3}, v{t0}
    ds_write_b32 v{fad}, v{one}
    """
    pieces[1] = f"""
    v_lshrrev_b32 v{t1}, 1, v{rq}
    v_lshlrev_b32 v{t1}, 5, v{t1}
    v_and_b32 v{t2}, 1, v{rq}
    v_lshlrev_b32 v{t2}, 4, v{t2}
    v_sub_u32 v{t3}, v{t2}, v{t1}
    v_lshl_add_u32 v{t0}, v{col}, 5, v{t3}
    """
    pieces[2] = f"""
    v_lshlrev_b32 v{t0}, 4, v{rq}
    v_lshlrev_b32 v{t1}, 1, v{col}
    v_sub_u32 v{t0}, v{t0}, v{t1}
    v_and_b32 v{t2}, 1, v{col}
    v_mul_u32_u24 v{t2}, 258, v{t2}
    v_add_u32 v{t0}, v{t0}, v{t2}
    v_add_u32 v{t0}, {C_BOX + 128 - 24}, v{t0}
    """
    pieces[3] = f"""
    v_add_u32 v{t0}, 1, v{col}
    v_and_b32 v{t0}, 3, v{t0}
    v_mul_u32_u24 v{t0}, {GH_COPY + 2}, v{t0}
    v_lshlrev_b32 v{t1}, 1, v{col}
    v_sub_u32 v{t0}, v{t0}, v{t1}
    v_lshl_add_u32 v{t0}, v{rq}, 3, v{t0}
    """
    pieces[4] = f"""
    v_add_u32 v{t1}, 1, v{col}
    v_cmp_eq_u32 vcc, 15, v{col}
    v_cndmask_b32 v{t1}, v{t1}, 32, vcc
    v_add_u32 v{t2}, 16, v{lane}
    v_cmp_eq_u32 vcc, 0, v{rq}
    v_cndmask_b32 v{t1}, v{t1}, v{t2}, vcc
    v_lshlrev_b32 v{t0}, 2, v{t1}
    """
    pieces[5] = f"""
    v_cmp_eq_u32 vcc, 32, v{lane}
    v_lshl_add_u32 v{t1}, v{col}, 1, v{rq}
    v_cndmask_b32 v{t1}, v{t1}, 32, vcc
    v_lshlrev_b32 v{t0}, 4, v{t1}
    """
    pieces[6] = f"""
    v_and_b32 v{t1}, 3, v{col}
    v_mul_u32_u24 v{t1}, 144, v{t1}
    v_lshrrev_b32 v{t2}, 2, v{col}
    v_lshlrev_b32 v{t2}, 5, v{t2}
    v_sub_u32 v{t1}, v{t1}, v{t2}
    v_add_u32 v{t1}, 88, v{t1}
    v_and_b32 v{t2}, 1, v{col}
    v_mul_u32_u24 v{t2}, 176, v{t2}
    v_lshrrev_b32 v{t3}, 1, v{col}
    v_lshlrev_b32 v{t3}, 5, v{t3}
    v_sub_u32 v{t2}, v{t2}, v{t3}
    v_add_u32 v{t2}, {576 + 120 + 128}, v{t2}
    v_cmp_gt_u32 vcc, 8, v{col}
    v_cndmask_b32 v{t1}, v{t2}, v{t1}, vcc
    v_lshlrev_b32 v{t2}, 3, v{rq}
    v_sub_u32 v{t0}, v{t1}, v{t2}
    """
    for i in range(7):
        a(f"s_cmp_lg_u32 s20, {i+4}")
        a.nopflush(); a.raw(f"s_cbranch_scc1 CV_pc{i}")
        a(pieces[i])
        a(f"ds_write_b32 v{fad}, v{t0} offset:{256 + 256*i}")
        a.nopflush(); a.raw("s_branch CV_pre_done")
        a.raw(f"CV_pc{i}:")
    a.raw("s_branch CV_pre_done")
    a.restore("CV_g2pre", snG2)
    a(f"""
    s_mov_b32 s34, s20
    s_add_u32 s32, s20, s17
    s_and_b32 s32, s32, 3
    v_lshl_add_u32 v{gad}, s32, 6, v{lane}
    v_lshlrev_b32 v{uad}, 4, v{gad}
    v_add_u32 v{uad}, {C_U + 512}, v{uad}
    v_mul_u32_u24 v{gad}, 9216, v{gad}
    s_mul_i32 s31, s21, 12
    s_add_u32 s35, s31, 4608
    s_lshr_b32 s33, s17, 2
    """)
    z4 = BX
    a(f"""
    v_mov_b32 v{z4}, 0
    v_mov_b32 v{z4+1}, 0
    v_mov_b32 v{z4+2}, 0
    v_mov_b32 v{z4+3}, 0
    v_lshrrev_b32 v{t0}, 5, v{lane}
    s_min_u32 s32, s34, 2
    s_lshl_b32 s32, s32, 1
    v_add_u32 v{t0}, s32, v{t0}
    v_mul_u32_u24 v{t0}, {U_STRIDE}, v{t0}
    v_and_b32 v{t1}, 31, v{lane}
    v_lshl_add_u32 v{t0}, v{t1}, 4, v{t0}
    v_add_u32 v{t0}, {C_U}, v{t0}
    ds_write_b128 v{t0}, v[{z4}:{z4+3}]
    """)
    a.nopflush()
    a.raw("CV_pre_done:")
    a.last = {}
    a(f"""
    v_mul_u32_u24 v{rd}, 272, v{col}
    v_lshl_add_u32 v{rd}, v{rq}, 4, v{rd}
    v_add_u32 v{rd}, s56, v{rd}
    v_lshlrev_b32 v{t0}, 4, v{lane}
    v_add_u32 v{own}, s56, v{t0}
    s_mul_i32 s58, s57, {BUF}
    v_add_u32 v{prt}, s58, v{t0}
    v_mov_b32 v{one}, 1
    s_lshl_b32 s58, s20, 2
    s_add_u32 s58, s58, {C_FL}
    v_mov_b32 v{oadr}, s58
    """)
    a.wait(lg=0)
    a("s_barrier")
    pollc = [0]
    def poll(mask_sg):
        n = pollc[0]; pollc[0] += 1
        a.nopflush()
        a.raw(f"CV_poll{n}:")
        a.raw(f"ds_read_b32 v{flv}, v{fad}")
        a.raw("s_waitcnt lgkmcnt(0)")
        a.raw(f"v_cmp_eq_u32 vcc, 0, v{flv}")
        a.raw("s_nop 1")
        a.raw(f"s_and_b64 vcc, vcc, s[{mask_sg}:{mask_sg+1}]")
        a.raw(f"s_cbranch_scc0 CV_poll{n}_ok")
        a.raw(f"s_sleep {SLEEP}")
        a.raw(f"s_branch CV_poll{n}")
        a.raw(f"CV_poll{n}_ok:")
        a.lgq = []
    def scale_from_flags():
        a(f"""
        v_readlane_b32 s58, v{flv}, {F_M}
        v_readlane_b32 s59, v{flv}, {F_M+1}
        v_readlane_b32 s68, v{flv}, {F_M+2}
        v_readlane_b32 s69, v{flv}, {F_M+3}
        s_max_u32 s58, s58, s59
        s_max_u32 s68, s68, s69
        s_max_u32 s59, s58, s68
        s_lshr_b32 s59, s59, 23
        s_max_u32 s59, s59, 11
        s_min_u32 s59, s59, 254
        """)
    gcnt = [0]
    def gather1():
        k = gcnt[0]; gcnt[0] += 1
        if k >= 8: return
        a.raw("s_cmp_ge_u32 s20, 4")
        a.raw(f"s_cbranch_scc1 CV_g{k}_d")
        for r in range(3):
            i = (k + 3 * r) & 7
            if r < 2:
                a.raw(f"s_cmp_lg_u32 s33, {r}")
                a.raw(f"s_cbranch_scc1 CV_g{k}_{r}")
            a.raw(f"buffer_load_dwordx3 v[{xrow[i]}:{xrow[i]+2}], v{gad}, s[8:11], {'s31' if i < 4 else 's35'} offen offset:{(i%4)*1152}")
            if r < 2:
                a.raw(f"s_branch CV_g{k}_d")
                a.raw(f"CV_g{k}_{r}:")
        a.raw(f"CV_g{k}_d:")
    NG0 = int(os.environ.get("NG0", 2))
    for _ in range(NG0): gather1()
    a.raw("s_cmp_ge_u32 s20, 4")
    a.raw("s_cbranch_scc1 CV_g12")
    a.raw(f"s_waitcnt vmcnt({NG0})")
    a.raw("s_branch CV_kgen")
    a.raw("CV_g12:")
    a.raw("s_waitcnt vmcnt(0)")
    a.vmq = []
    a.raw("s_setprio 2")
    a.raw("s_cmp_lt_u32 s20, 8")
    a.raw("s_cbranch_scc1 CV_kgen")
    a.raw("s_setprio 1")
    a.raw("CV_kgen:")
    def xstage():
        a("s_cmp_ge_u32 s20, 4")
        snX = a.branch("s_cbranch_scc1 CV_nox")
        a(f"""
        s_mov_b32 s58, 0x7fff7fff
        s_mov_b32 s70, 0
        s_mov_b32 s71, 0xf0
        """)
        a.raw("s_waitcnt vmcnt(0)")
        stamp(a, 3)
        m = R.get(4)
        regs = [xrow[i] + p for i in range(8) for p in range(3)]
        for i in range(3): a(f"v_and_b32 v{m+i}, s58, v{regs[i]}")
        for i in range(3, 24):
            a(f"v_and_b32 v{m+3}, s58, v{regs[i]}")
            a(f"v_pk_max_u16 v{m+i%3}, v{m+i%3}, v{m+3}")
        a(f"""
        v_pk_max_u16 v{m}, v{m}, v{m+1}
        v_pk_max_u16 v{m}, v{m}, v{m+2}
        v_lshlrev_b32 v{m+1}, 16, v{m}
        v_max_u32 v{m}, v{m}, v{m+1}
        v_max_u32_dpp v{m}, v{m}, v{m} row_ror:1 row_mask:0xf bank_mask:0xf
        v_max_u32_dpp v{m}, v{m}, v{m} row_ror:2 row_mask:0xf bank_mask:0xf
        v_max_u32_dpp v{m}, v{m}, v{m} row_ror:4 row_mask:0xf bank_mask:0xf
        v_max_u32_dpp v{m}, v{m}, v{m} row_ror:8 row_mask:0xf bank_mask:0xf
        v_readlane_b32 s58, v{m}, 0
        v_readlane_b32 s59, v{m}, 16
        v_readlane_b32 s68, v{m}, 32
        v_readlane_b32 s69, v{m}, 48
        s_max_u32 s58, s58, s59
        s_max_u32 s68, s68, s69
        s_max_u32 s58, s58, s68
        s_or_b32 s58, s58, 1
        v_mov_b32 v{m}, s58
        ds_write_b32 v{oadr}, v{m} offset:{4*F_M}
        """)
        R.put(m, 4)
        poll(70)
        scale_from_flags()
        a("s_sub_u32 s58, 264, s59")
        a("s_lshl_b32 s58, s58, 23")
        f = R.get(8); o2 = R.get(8, 2)
        for c in range(6):
            p = c >> 1; o = o2 + 4 * (c & 1)
            for i in range(8):
                if c & 1: a(f"v_and_b32 v{f+i}, 0xffff0000, v{xrow[i]+p}")
                else: a(f"v_lshlrev_b32 v{f+i}, 16, v{xrow[i]+p}")
            for i in range(4): a(f"v_fma_mixlo_f16 v{o+i}, v{f+2*i}, s58, 0")
            for i in range(4): a(f"v_fma_mixhi_f16 v{o+i}, v{f+2*i+1}, s58, 0")
            a(f"ds_write_b128 v{uad}, v[{o}:{o+3}] offset:{c*U_STRIDE}")
        a(f"ds_write_b32 v{oadr}, v{one} offset:{4*F_U}")
        R.put(f, 8); R.put(o2, 8)
        stamp(a, 4)
        a.nopflush()
        a.raw("CV_nox:")
        a.last = {}
        for x in xrow: R.put(x, 4)
        R.put(gad); R.put(uad)
    a(f"""
    v_lshlrev_b32 v{dt}, 16, v{dt}
    v_mul_f32 v{dt}, {LOG2E}, v{dt}
    v_exp_f32 v{dt}, v{dt}
    v_lshlrev_b32 v{dsk}, 16, v{dsk}
    v_cvt_pk_bf16_f32 v{dt}, v{dt}, v{dt}
    v_readfirstlane_b32 s30, v{dsk}
    v_lshlrev_b32 v{dt}, 16, v{dt}
    """)
    R.put(dsk)
    pp = R.get(8, 2)
    stamp(a, 1)
    for i in range(8): a(f"v_lshlrev_b32 v{pp+i}, 16, v{par+2+i}")
    are = R.get(); aim = R.get()
    W = R.get(2); W2 = R.get(2); tp = R.get(2)
    a(f"""
    v_lshlrev_b32 v{are}, 16, v{par}
    v_lshlrev_b32 v{aim}, 16, v{par+1}
    v_mul_f32 v{are}, v{dt}, v{are}
    v_mul_f32 v{aim}, v{dt}, v{aim}
    v_mul_f32 v{are}, {LOG2E}, v{are}
    """)
    cmul(a, W, pp+2, pp, tp)
    cmul(a, W2, pp+6, pp+4, tp)
    a(f"""
    v_max_f32 v{t0}, |v{W}|, |v{W+1}|
    v_max3_f32 v{t0}, |v{W2}|, |v{W2+1}|, v{t0}
    v_mul_f32 v{t0}, v{dt}, v{t0}
    s_mov_b32 s54, {INV2PI_HI}
    s_mov_b32 s55, {INV2PI_LO}
    v_max_u32_dpp v{t0}, v{t0}, v{t0} row_ror:1 row_mask:0xf bank_mask:0xf
    v_max_u32_dpp v{t0}, v{t0}, v{t0} row_ror:2 row_mask:0xf bank_mask:0xf
    v_max_u32_dpp v{t0}, v{t0}, v{t0} row_ror:4 row_mask:0xf bank_mask:0xf
    v_max_u32_dpp v{t0}, v{t0}, v{t0} row_ror:8 row_mask:0xf bank_mask:0xf
    v_readlane_b32 s52, v{t0}, 0
    v_readlane_b32 s53, v{t0}, 16
    v_readlane_b32 s68, v{t0}, 32
    v_readlane_b32 s69, v{t0}, 48
    s_max_u32 s52, s52, s53
    s_max_u32 s68, s68, s69
    s_max_u32 s52, s52, s68
    s_lshr_b32 s52, s52, 23
    s_add_u32 s52, s52, 8
    s_bfe_u32 s53, s30, 0x80017
    s_max_u32 s52, s52, s53
    s_max_u32 s52, s52, 14
    s_min_u32 s52, s52, 262
    s_sub_u32 s53, 267, s52
    s_lshl_b32 s53, s53, 23
    """)
    R.put(par, 10); R.put(W2, 2); R.put(pp, 8)
    Yk = {h: R.get(2) for h in (0, 2, 4, 6, 8, 10, 12, 14, 16)}
    E = {}
    e3 = R.get()
    for p in (1, 16, 256):
        e = R.get(2); E[p] = e
        if p == 1:
            a(f"v_exp_f32 v{t0}, v{are}"); th = aim
        else:
            a(f"v_mul_f32 v{t0}, {fbits(float(p))}, v{are}")
            a(f"v_mul_f32 v{t1}, {fbits(float(p))}, v{aim}")
            a(f"v_exp_f32 v{t0}, v{t0}"); th = t1
        a(f"""
        v_mul_f32 v{t2}, s54, v{th}
        v_fma_f32 v{e3}, v{th}, s54, -v{t2}
        v_fma_f32 v{e3}, v{th}, s55, v{e3}
        v_fract_f32 v{t2}, v{t2}
        v_add_f32 v{t2}, v{t2}, v{e3}
        v_cos_f32 v{e}, v{t2}
        v_sin_f32 v{e+1}, v{t2}
        v_mul_f32 v{e}, v{e}, v{t0}
        v_mul_f32 v{e+1}, v{e+1}, v{t0}
        """)
    a(f"""
    v_mul_f32 v{dt}, s53, v{dt}
    v_mul_f32 v{Yk[0]}, v{dt}, v{W}
    v_mul_f32 v{Yk[0]+1}, v{dt}, v{W+1}
    """)
    R.put(W, 2); R.put(are); R.put(aim); R.put(dt); R.put(e3)
    gather1()
    pk = [R.get() for _ in range(4)]; pki = [0]
    def put_row(buf, row, x, neg):
        p = pk[pki[0] % 4]; pki[0] += 1
        a(f"v_cvt_pk_f16_f32 v{p}, v{x}, {'-' if neg else ''}v{x+1}")
        a(f"ds_write_addtid_b32 v{p} offset:{buf*SCR1 + row*272}")
    def get_frags(buf, dst):
        for ks in range(4):
            a(f"ds_read_b128 v[{dst+4*ks}:{dst+4*ks+3}], v{rd} offset:{buf*SCR1 + ks*64}")
    Z = [R.get(2), R.get(2)]
    Yo = R.get(2)
    P = {1: E[256]}
    for i in range(2, 8): P[i] = R.get(2)
    tq = R.get(2)
    a(f"v_mov_b32 v{pk[3]}, 0x3c00")
    a(f"ds_write_addtid_b32 v{pk[3]} offset:0")
    put_row(0, 1, E[16], False)
    put_row(1, 0, Yk[0], True)
    zprev = E[16]; yprev = Yk[0]
    for h in range(1, 17):
        yd = Yk[h] if h % 2 == 0 else Yo
        cmul(a, yd, yprev, E[1], tp)
        if h + 1 <= 15:
            zd = Z[h % 2]
            cmul(a, zd, zprev, E[16], tq)
        if 1 <= h <= 6:
            cmul(a, P[h+1], P[h], E[256], P[h+1])
        if h <= 15: put_row(1, h, yd, True)
        if h + 1 <= 15:
            put_row(0, h + 1, zd, False); zprev = zd
        yprev = yd
        if h in (1, 5, 9, 13): gather1()
    R.put(Z[0], 2); R.put(Z[1], 2); R.put(E[1], 2); R.put(E[16], 2)
    ZF = R.get(16, 2); AF = R.get(16, 2)
    D = R.get(12, 2)
    get_frags(0, ZF)
    get_frags(1, AF)
    X = [Yo, R.get(2), R.get(2)]
    xi = [0]
    def prod_row(buf, row, y, p):
        x = X[xi[0] % 3]; xi[0] += 1
        cmul(a, x, y, p, x)
        put_row(buf, row, x, True)
    for h in range(8): prod_row(0, h, Yk[2*h], P[1])
    prod_row(0, 8, Yk[0], P[2]); prod_row(0, 9, Yk[0], P[4])
    gather1()
    for ks in range(4):
        a(f"v_mfma_f32_16x16x32_f16 v[{D}:{D+3}], v[{AF+4*ks}:{AF+4*ks+3}], v[{ZF+4*ks}:{ZF+4*ks+3}], {f'v[{D}:{D+3}]' if ks else 0}")
    get_frags(0, AF)
    for i in range(2):
        for mu in range(1, 5): prod_row(1, 4*i + mu - 1, Yk[4*mu], P[2+i])
    for ks in range(4):
        a(f"v_mfma_f32_16x16x32_f16 v[{D+4}:{D+7}], v[{AF+4*ks}:{AF+4*ks+3}], v[{ZF+4*ks}:{ZF+4*ks+3}], {f'v[{D+4}:{D+7}]' if ks else 0}")
    for i in range(4):
        for mu in (1, 2): prod_row(1, 8 + 2*i + mu - 1, Yk[8*mu], P[4+i])
    get_frags(1, AF)
    for x in X: R.put(x, 2)
    for h in Yk.values(): R.put(h, 2)
    for i in P.values(): R.put(i, 2)
    R.put(tq, 2)
    Z4 = R.get(4, 2)
    TB = R.get(7)
    for j in range(4): a(f"v_mov_b32 v{Z4+j}, 0")
    for i in range(4):
        a(f"ds_write_b128 v{own}, v[{Z4}:{Z4+3}] offset:{SCR1 + i*1024}")
    a(f"ds_write_addtid_b32 v{Z4} offset:{SCR1 + 4096}")
    a(f"ds_write_b128 v{own}, v[{D}:{D+3}]")
    a(f"ds_write_b128 v{own}, v[{D+4}:{D+7}] offset:1024")
    for ks in range(4):
        a(f"v_mfma_f32_16x16x32_f16 v[{D+8}:{D+11}], v[{ZF+4*ks}:{ZF+4*ks+3}], v[{AF+4*ks}:{AF+4*ks+3}], {f'v[{D+8}:{D+11}]' if ks else 0}")
    for i in range(7): a(f"ds_read_b32 v{TB+i}, v{fad} offset:{256 + 256*i}")
    R.put(ZF, 16); R.put(AF, 16); R.put(Z4, 4)
    kA = R.get(); kB = R.get(); kC = R.get(); aB2 = R.get()
    a(f"""
    s_lshl_b64 s[66:67], 1, s57
    s_sub_u32 s63, s60, s62
    s_add_u32 s63, s63, {2*L0 - 9*128}
    s_sub_u32 s65, s64, s62
    s_sub_u32 s65, s65, 384
    s_lshl_b32 s58, s23, 10
    v_add_u32 v{t2}, s58, v{prt}
    ds_write_b128 v{own}, v[{D+8}:{D+11}] offset:2048
    ds_write_b32 v{oadr}, v{one} offset:{4*F_P}
    v_add_u32 v{aT}, s63, v{TB}
    v_add_u32 v{aT2}, 640, v{aT}
    v_add_u32 v{aU}, s65, v{TB+1}
    s_lshl_b32 s65, s23, 9
    s_add_u32 s65, s65, {1024 + 8}
    v_add_u32 v{aB2}, s65, v{TB+2}
    s_mul_i32 s65, s23, 288
    s_add_u32 s65, s65, s61
    v_add_u32 v{aKF}, s65, v{TB+3}
    s_mul_i32 s65, s23, 176
    s_add_u32 s65, s65, s61
    v_add_u32 v{aHF}, s65, v{TB+3}
    v_lshlrev_b32 v{t3}, 5, v{col}
    v_lshl_add_u32 v{aS}, v{rq}, 4, v{t3}
    s_lshl_b32 s65, s23, 4
    s_sub_u32 s65, s64, s65
    s_sub_u32 s65, s65, 32
    v_add_u32 v{aS}, s65, v{aS}
    v_lshl_add_u32 v{t3}, v{rq}, 3, v{t3}
    """)
    def rd16(dst, base, byteoff):
        o = byteoff // 4
        a(f"ds_read2_b32 v[{dst}:{dst+1}], v{base} offset0:{o} offset1:{o+1}")
        a(f"ds_read2_b32 v[{dst+2}:{dst+3}], v{base} offset0:{o+2} offset1:{o+3}")
    rd16(BX, TB+2, 0); rd16(BX+4, TB+2, 520); rd16(BX+8, aB2, 0)
    R.put(aB2)
    stamp(a, 2)
    while gcnt[0] < 8: gather1()
    poll(66)
    PD = R.get(8, 2)
    a(f"ds_read_b128 v[{PD}:{PD+3}], v{t2}")
    a(f"ds_read_b128 v[{PD+4}:{PD+7}], v{t2} offset:1024")
    q = R.get(8, 2)
    a("s_cmp_eq_u32 s23, 1")
    snapK = a.branch("s_cbranch_scc1 CV_kfin1")
    a(f"""
    v_sub_u32 v{kA}, s60, v{t3}
    v_mov_b32 v{t1}, s30
    v_mul_f32 v{t1}, s53, v{t1}
    v_cmp_eq_u32 vcc, 0, v{lane}
    v_cndmask_b32 v{t1}, 0, v{t1}, vcc
    v_add_f32 v{D}, v{D}, v{t1}
    v_pk_add_f32 v[{D}:{D+1}], v[{D}:{D+1}], v[{PD}:{PD+1}]
    v_pk_add_f32 v[{D+2}:{D+3}], v[{D+2}:{D+3}], v[{PD+2}:{PD+3}]
    v_cvt_pk_f16_f32 v{q}, v{D+3}, v{D+2}
    v_cvt_pk_f16_f32 v{q+1}, v{D+1}, v{D}
    v_cvt_pk_f16_f32 v{q+2}, v{D+2}, v{D+1}
    ds_write_b64 v{kA}, v[{q}:{q+1}] offset:{2*(L0-3)}
    ds_write_b16 v{kA}, v{q} offset:{KR_COPY + 2*(L0-3) + 2}
    ds_write_b32 v{kA}, v{q+2} offset:{KR_COPY + 2*(L0-3) + 4}
    ds_write_b16_d16_hi v{kA}, v{q+1} offset:{KR_COPY + 2*(L0-3) + 8}
    """)
    a.nopflush()
    a.raw("s_branch CV_kfin_done")
    a.restore("CV_kfin1", snapK)
    a(f"""
    v_sub_u32 v{kB}, s60, v{TB+5}
    v_add_u32 v{kC}, s61, v{TB+6}
    v_cmp_eq_u32 s[68:69], 32, v{lane}
    """)
    for j in range(0, 8, 2): a(f"v_pk_add_f32 v[{D+4+j}:{D+5+j}], v[{D+4+j}:{D+5+j}], v[{PD+j}:{PD+j+1}]")
    c0, c2, c4, c6 = D+4, D+5, D+6, D+7
    c8 = PD
    T2 = D + 8
    a(f"""
    ds_bpermute_b32 v{c8}, v{TB+4}, v{c0}
    v_cvt_pk_f16_f32 v{q}, v{T2+3}, v{T2+2}
    v_cvt_pk_f16_f32 v{q+1}, v{T2+1}, v{T2}
    v_cvt_pk_f16_f32 v{q+2}, v{T2+2}, v{T2+1}
    ds_write_b64 v{kC}, v[{q}:{q+1}]
    ds_write_b16 v{kC}, v{q} offset:{GH_COPY + 2}
    ds_write_b32 v{kC}, v{q+2} offset:{GH_COPY + 4}
    ds_write_b16_d16_hi v{kC}, v{q+1} offset:{GH_COPY + 8}
    ds_write_b32 v{kC}, v{q} offset:{2*GH_COPY + 4}
    ds_write_b32 v{kC}, v{q+1} offset:{2*GH_COPY + 8}
    ds_write_b16 v{kC}, v{q} offset:{3*GH_COPY + 6}
    ds_write_b32 v{kC}, v{q+2} offset:{3*GH_COPY + 8}
    ds_write_b16_d16_hi v{kC}, v{q+1} offset:{3*GH_COPY + 12}
    v_cvt_pk_f16_f32 v{q+7}, v{c2}, v{c2}
    v_cndmask_b32 v{c2}, v{c2}, v{c0}, s[68:69]
    v_cndmask_b32 v{c4}, v{c4}, 0, s[68:69]
    v_cndmask_b32 v{c6}, v{c6}, 0, s[68:69]
    v_cndmask_b32 v{c8}, v{c8}, 0, s[68:69]
    v_cvt_pk_f16_f32 v{T2}, v{c8}, v{c6}
    v_cvt_pk_f16_f32 v{T2+1}, v{c4}, v{c4}
    v_cvt_pk_f16_f32 v{T2+2}, v{c4}, v{c2}
    v_cvt_pk_f16_f32 v{T2+3}, v{c0}, v{c0}
    v_mov_b32 v{q+4}, v{T2+1}
    v_cvt_pk_f16_f32 v{q+5}, v{c2}, v{c0}
    v_cvt_pk_f16_f32 v{q+6}, v{c6}, v{c4}
    v_mov_b32 v{t2}, s60
    s_mov_b32 exec_hi, 1
    ds_write_b128 v{kB}, v[{T2}:{T2+3}] offset:{2*(L0-256-7)}
    ds_write_b16 v{kB}, v{T2} offset:{KR_COPY + 2*(L0-256-7) + 2}
    ds_write_b32 v{kB}, v{q+6} offset:{KR_COPY + 2*(L0-256-7) + 4}
    ds_write_b64 v{kB}, v[{q+4}:{q+5}] offset:{KR_COPY + 2*(L0-256-7) + 8}
    ds_write_b16 v{kB}, v{T2+3} offset:{KR_COPY + 2*(L0-256-7) + 16}
    s_mov_b32 exec_lo, 0
    ds_write_b16 v{t2}, v{q+7} offset:{2*(L0-580)}
    ds_write_b16 v{t2}, v{q+7} offset:{2*(L0-579)}
    ds_write_b32 v{t2}, v{q+7} offset:{KR_COPY + 2*(L0-580) + 2}
    s_mov_b64 exec, -1
    """)
    a.nopflush()
    a.raw("CV_kfin_done:")
    a.last = {}
    a(f"""
    ds_write_b32 v{oadr}, v{one} offset:{4*F_K}
    s_lshl_b64 s[66:67], s[66:67], {F_K}
    s_or_b32 s67, s67, 0xf00
    """)
    if WAITALL: a("s_or_b32 s66, s66, 0xfff")
    R.put(q, 8); R.put(D, 12); R.put(PD, 8); R.put(TB, 7)
    for p in pk: R.put(p)
    R.put(rd); R.put(tp, 2); R.put(kA); R.put(kB); R.put(kC)
    xstage()
    poll(66)
    stamp(a, 5)
    TK = R.get(40, 2); KF = R.get(12, 2); HF = R.get(10, 2)
    acc = R.get(32, 2)
    NU = 4
    UF = [R.get(4, 2) for _ in range(NU)]
    US = R.get(4, 2)
    S1 = R.get(12, 2)
    W2f = R.get(4, 2); W3f = R.get(4, 2)
    gam = list(range(-3, 29))
    def ldU(i):
        if i < len(gam):
            a(f"ds_read_b128 v[{UF[i%NU]}:{UF[i%NU]+3}], v{aU} offset:{(gam[i]+3)*128}")
    def ldTK(sg):
        o = (9 - sg) * 32
        base = aT
        if o >= 160: base = aT2; o -= 160
        a(f"ds_read2_b32 v[{TK+4*sg}:{TK+4*sg+1}], v{base} offset0:{o} offset1:{o+1}")
        a(f"ds_read2_b32 v[{TK+4*sg+2}:{TK+4*sg+3}], v{base} offset0:{o+2} offset1:{o+3}")
    a(f"ds_read_b128 v[{US}:{US+3}], v{aS}")
    for i in range(NU - 1): ldU(i)
    for sg in (3, 7, 2, 6): ldTK(sg)
    scale_from_flags()
    a(f"""
    s_add_u32 s59, s59, s52
    s_sub_u32 s59, s59, 277
    s_lshl_b64 s[66:67], 1, s57
    s_lshl_b64 s[66:67], s[66:67], {F_A}
    """)
    fillers = []
    for sg in (1, 5, 0, 4, 8, 9):
        o = (9 - sg) * 32; base = aT
        if o >= 160: base = aT2; o -= 160
        fillers.append(f"ds_read2_b32 v[{TK+4*sg}:{TK+4*sg+1}], v{base} offset0:{o} offset1:{o+1}")
        fillers.append(f"ds_read2_b32 v[{TK+4*sg+2}:{TK+4*sg+3}], v{base} offset0:{o+2} offset1:{o+3}")
    for ai, aa in enumerate((2, 3, 4)):
        fillers.append(f"ds_read_b64 v[{KF+4*ai}:{KF+4*ai+1}], v{aKF} offset:{2*(79 - 16*aa)}")
        fillers.append(f"ds_read_b64 v[{KF+4*ai+2}:{KF+4*ai+3}], v{aKF} offset:{144 + 2*(79 - 16*aa)}")
    for aa in (7, 6, 5, 4):
        fillers.append(f"ds_read_b64 v[{HF+2*(7-aa)}:{HF+2*(7-aa)+1}], v{aHF} offset:{576 + 2*(127 - 16*aa)}")
    fillers.append(f"v_mov_b32 v{HF+8}, 0"); fillers.append(f"v_mov_b32 v{HF+9}, 0")
    inited = set()
    def fill(n):
        for _ in range(n):
            if fillers: a(fillers.pop(0))
    def mm(J, A, B, nf=1):
        c = f"v[{acc+4*J}:{acc+4*J+3}]"
        a(f"v_mfma_f32_16x16x32_f16 {c}, v[{A}:{A+3}], v[{B}:{B+3}], {c if J in inited else 0}")
        inited.add(J)
        fill(nf)
    def direct(i, nf=1):
        g = gam[i]
        ldU(i + NU - 1)
        for J in range(8):
            sg = 4*J - g
            if 0 <= sg <= 8: mm(J, TK + 4*sg, UF[i % NU], nf)
            if sg == 16: mm(J, TK + 36, UF[i % NU], nf)
    di = 0
    for b in range(6):
        nf0 = 4 if b == 0 else 1
        a(f"v_mfma_f32_16x16x32_f16 v[{S1}:{S1+3}], v[{US}:{US+3}], v[{BX}:{BX+3}], 0"); fill(nf0)
        a(f"v_mfma_f32_16x16x32_f16 v[{S1+4}:{S1+7}], v[{US}:{US+3}], v[{BX+4}:{BX+7}], 0"); fill(nf0)
        if b < 4:
            a(f"v_mfma_f32_16x16x32_f16 v[{S1+8}:{S1+11}], v[{US}:{US+3}], v[{BX+8}:{BX+11}], 0"); fill(nf0)
        if b < 5: a(f"ds_read_b128 v[{US}:{US+3}], v{aS} offset:{512*(b+1)}")
        for _ in range(2): direct(di, 3 if b == 0 else 1); di += 1
        fill(len(fillers))
        cv = [f"v_cvt_pk_f16_f32 v{W2f+j}, v{S1+2*j}, v{S1+2*j+1}" for j in range(4)]
        if b < 4:
            cv += [f"v_cvt_pk_f16_f32 v{W3f+2*(b&1)}, v{S1+8}, v{S1+9}", f"v_cvt_pk_f16_f32 v{W3f+2*(b&1)+1}, v{S1+10}, v{S1+11}"]
        fillers.extend(cv)
        for _ in range(3): direct(di); di += 1
        fill(len(fillers))
        for ai, aa in enumerate((2, 3, 4)):
            if b + aa <= 7: mm(b + aa, W2f, KF + 4*ai)
        if b in (1, 3):
            Bq = b >> 1
            for aa in (4, 5, 6, 7):
                if aa + 2*Bq <= 7: mm(aa + 2*Bq, W3f, HF + 2*(7-aa))
    while di < len(gam): direct(di); di += 1
    assert len(inited) == 8
    for x in UF: R.put(x, 4)
    R.put(US, 4); R.put(S1, 12); R.put(W2f, 4); R.put(W3f, 4); R.put(TK, 40); R.put(BX, 12); R.put(KF, 12); R.put(HF, 10)
    stamp(a, 6)
    a(f"""
    s_lshl_b32 s65, s23, 11
    s_lshl_b32 s63, s24, 12
    s_add_u32 s63, s63, s65
    s_add_u32 s63, s63, {WS_BT}
    """)
    PA = R.get(16, 2)
    def tail(w):
        keep = acc + 16*w; send = acc + 16*(1-w)
        for j in range(4):
            a(f"ds_write_b128 v{own}, v[{send+4*j}:{send+4*j+3}] offset:{j*1024}")
        a(f"ds_write_b32 v{oadr}, v{one} offset:{4*F_A}")
        poll(66)
        stamp(a, 7)
        for j in range(4):
            a(f"ds_read_b128 v[{PA+4*j}:{PA+4*j+3}], v{prt} offset:{j*1024}")
        for j in range(4):
            k = keep + 4*j
            for e in range(4): a(f"v_add_f32 v{k+e}, v{k+e}, v{PA+4*j+e}")
            for e in range(4): a(f"v_ldexp_f32 v{k+e}, v{k+e}, s59")
            a(f"""
            v_cvt_pk_bf16_f32 v{k}, v{k}, v{k+1}
            v_cvt_pk_bf16_f32 v{k+1}, v{k+2}, v{k+3}
            buffer_store_dwordx2 v[{k}:{k+1}], v{t3}, s[12:15], s63 offen offset:{512*j}{SC}
            """)
        stamp(a, 8)
        stamp_dump(a, 9, 12, 20, t0, t1)
        if MERGE:
            a("s_mul_hi_u32 s19, s21, 178956971")
            a("s_lshl_b32 s19, s19, 2"); a(f"s_add_u32 s19, s19, {D_CONV}"); a("s_mov_b32 s18, 23"); a.raw("s_branch PH2")
        else: a.raw("s_endpgm")
    a("s_cmp_eq_u32 s23, 1")
    snapE = a.branch("s_cbranch_scc1 CV_tail1")
    tail(0)
    a.restore("CV_tail1", snapE)
    tail(1)
```

```python
from asmlib import *
import os
from layout import *
from k1_conv import LOG2E

ASLOT = 16384
BSLOT = 24576
BRING = 3 * ASLOT
G_KVI = BRING + 3 * BSLOT
KVI_H = 6144
G_LDS = G_KVI + 2 * KVI_H
EPS = 0x358637bd

def lanemask(f):
    m = 0
    for l in range(64):
        if f(l & 15, l >> 4): m |= 1 << l
    return m
def set_exec(a, m):
    a(f"s_mov_b32 exec_lo, {m & 0xffffffff:#x}")
    a(f"s_mov_b32 exec_hi, {m >> 32:#x}")

def gen_gemm(a, R):
    a(f"s_cmp_ge_u32 s20, {9 if MERGE else 8}")
    a("s_cbranch_scc1 GM_exit")
    if MERGE:
        a("s_cmp_lg_u32 s20, 8")
        a("s_cbranch_scc1 GM_not8")
        for _ in range(11): a.raw("s_barrier")
        a.raw("s_branch PH2")
        a.raw("GM_not8:")
    lane = R.get(); t0 = R.get(); t1 = R.get(); t2 = R.get(); t3 = R.get()
    stamp(a, 0)
    a(f"""
    s_load_dwordx4 s[4:7], s[0:1], 0
    s_load_dwordx4 s[36:39], s[0:1], 112
    v_and_b32 v{lane}, 63, v0
    s_sub_u32 s21, s17, 12
    s_and_b32 s22, s16, 3
    s_lshl_b32 s22, s22, 2
    s_lshr_b32 s23, s16, 2
    s_and_b32 s24, s21, 3
    s_lshr_b32 s25, s21, 2
    s_lshl_b32 s26, s23, 1
    s_add_u32 s26, s26, s24
    s_mul_i32 s27, s23, 5
    s_add_u32 s27, s27, s25
    s_cmp_ge_u32 s21, 16
    s_cselect_b32 s24, s26, s24
    s_cselect_b32 s27, 4, s27
    s_add_u32 s28, s22, s24
    s_add_u32 s29, s24, s25
    s_lshl_b32 s29, s29, 1
    s_cmp_ge_u32 s29, 9
    s_cselect_b32 s30, 9, 0
    s_sub_u32 s29, s29, s30
    """)
    NP = int(os.environ.get("NP", 0)); NR = 9 - NP
    if NP: a(f"""
    s_mul_i32 s29, s24, 3
    s_lshr_b32 s29, s29, 1
    s_add_u32 s29, s29, s25
    s_cmp_ge_u32 s29, {NR}
    s_cselect_b32 s30, {NR}, 0
    s_sub_u32 s29, s29, s30
    """)
    def st_calc(s):
        if s < NP: return f"s_mov_b32 s56, {s}"
        return f"""s_add_u32 s56, s29, {s - NP}
        s_cmp_ge_u32 s56, {NR}
        s_cselect_b32 s60, {NR}, 0
        s_sub_u32 s56, s56, s60
        s_add_u32 s56, s56, {NP}"""
    a(f"""
    s_mov_b32 s8, s4
    s_mov_b32 s9, s5
    s_mov_b32 s10, 2359296
    s_mov_b32 s11, 0x20000
    s_mov_b32 s12, s6
    s_mov_b32 s13, s7
    s_mov_b32 s14, 1990656
    s_mov_b32 s15, 0x20000
    s_mov_b32 s40, s38
    s_mov_b32 s41, s39
    s_mov_b32 s42, {WS_SIZE}
    s_mov_b32 s43, 0x20000
    s_mov_b32 s44, s36
    s_mov_b32 s45, s37
    s_mov_b32 s46, 256
    s_mov_b32 s47, 0x20000
    """)
    a("s_cmp_lt_u32 s20, 4")
    snapC = a.branch("s_cbranch_scc1 GM_cons")
    vA = R.get(4); vB = R.get(6)
    a(f"""
    s_sub_u32 s48, s20, 4
    v_lshrrev_b32 v{t0}, 3, v{lane}
    v_mul_u32_u24 v{t0}, 1152, v{t0}
    v_and_b32 v{t1}, 7, v{lane}
    v_bfe_u32 v{t2}, v{lane}, 4, 1
    v_xor_b32 v{t1}, v{t1}, v{t2}
    v_lshl_add_u32 v{vA}, v{t1}, 4, v{t0}
    v_xor_b32 v{vA+1}, 32, v{vA}
    v_xor_b32 v{vA+2}, 64, v{vA}
    v_xor_b32 v{vA+3}, 0x60, v{vA}
    s_lshl_b32 s49, s28, 7
    s_lshl_b32 s50, s48, 5
    s_add_u32 s49, s49, s50
    s_mul_i32 s49, s49, 1152
    s_lshl_b32 s50, s48, 12
    s_mul_i32 s51, s48, {16*3456}
    s_mul_i32 s52, s48, {16*384}
    s_add_u32 s52, s52, {BRING}
    """)
    a(f"""
    s_mul_i32 s53, s27, 144
    s_add_u32 s54, s53, {2304 - 144}
    s_add_u32 s53, s53, 1152
    s_mul_i32 s55, s27, 96
    s_sub_u32 s55, s55, 288
    s_cmp_eq_u32 s27, 8
    s_cselect_b32 s53, 768, s53
    s_cselect_b32 s54, 768, s54
    s_cselect_b32 s55, 768, s55
    """)
    def stage_st(s):
        a(st_calc(s))
        a(f"""
        s_lshl_b32 s57, s56, 7
        s_add_u32 s57, s57, s49
        s_mul_i32 s58, s56, {64*3456}
        s_add_u32 s58, s58, s51
        """)
    def issueA(s):
        for i in range(4):
            a(f"""
            s_add_u32 s59, s57, {8*i*1152}
            s_add_u32 m0, s50, {(s % 3)*ASLOT + i*1024}
            buffer_load_dwordx4 v{vA + i}, s[8:11], s59 offen lds
            """)
    def issueB(s, i):
        a(f"""
        s_add_u32 m0, s52, {(s % 3)*BSLOT + i*1024}
        buffer_load_dwordx4 v{vB + i}, s[12:15], s58 offen lds
        """)
    stage_st(0)
    issueA(0)
    a("s_mov_b32 s60, 2731")
    for i in range(6):
        a(f"""
        v_add_u32 v{t0}, {64*i}, v{lane}
        v_mul_lo_u32 v{t1}, v{t0}, s60
        v_lshrrev_b32 v{t1}, 16, v{t1}
        v_mul_u32_u24 v{t2}, 24, v{t1}
        v_sub_u32 v{t0}, v{t0}, v{t2}
        v_and_b32 v{t2}, 2, v{t1}
        v_lshrrev_b32 v{t3}, 1, v{t1}
        v_and_b32 v{t3}, 4, v{t3}
        v_or_b32 v{t2}, v{t2}, v{t3}
        v_xor_b32 v{t0}, v{t0}, v{t2}
        v_mov_b32 v{t2}, s53
        v_mov_b32 v{t3}, s54
        v_cmp_lt_u32 vcc, 8, v{t0}
        v_cndmask_b32 v{t2}, v{t2}, v{t3}, vcc
        v_mov_b32 v{t3}, s55
        v_cmp_lt_u32 vcc, 17, v{t0}
        v_cndmask_b32 v{t2}, v{t2}, v{t3}, vcc
        v_lshl_add_u32 v{t2}, v{t0}, 4, v{t2}
        v_mul_u32_u24 v{t1}, 3456, v{t1}
        v_add_u32 v{vB+i}, v{t1}, v{t2}
        """)
        issueB(0, i)
    stamp(a, 1)
    a("s_barrier")
    for s in (1,):
        stage_st(s); issueA(s)
        for i in range(6): issueB(s, i)
    gA = R.get(); gacc = R.get(2); gx = R.get(32, 4); ga = R.get(8)
    a(f"""
    s_load_dwordx2 s[62:63], s[0:1], 96
    s_cmp_eq_u32 s27, 8
    s_cselect_b32 s61, s48, 9
    v_bfe_u32 v{t0}, v{lane}, 1, 1
    v_lshrrev_b32 v{t1}, 2, v{lane}
    v_and_b32 v{t1}, 6, v{t1}
    v_or_b32 v{t0}, v{t0}, v{t1}
    v_lshlrev_b32 v{t0}, 4, v{t0}
    v_lshl_add_u32 v{gA}, v{lane}, 7, v{t0}
    s_lshl_b32 s60, s48, 13
    v_add_u32 v{gA}, s60, v{gA}
    v_mov_b32 v{gacc}, 0
    v_mov_b32 v{gacc+1}, 0
    """)
    a.wait(lg=0)
    def gate_ld(s):
        for l in st_calc(s).split("\n"): a.raw(l.strip())
        for l in f"""s_lshl_b32 s56, s56, 7
        s_load_dwordx16 s[64:79], s[62:63], s56
        s_add_u32 s56, s56, 64
        s_load_dwordx16 s[80:95], s[62:63], s56""".split("\n"): a.raw(l.strip())
    def gate(s):
        a("s_cmp_ge_u32 s61, 2")
        sn = a.branch(f"s_cbranch_scc1 GM_nogate{s}")
        a(f"v_add_u32 v{ga}, {(s % 3)*ASLOT}, v{gA}")
        for c in range(1, 8): a(f"v_xor_b32 v{ga+c}, {16*c}, v{ga}")
        for c in range(8): a(f"ds_read_b128 v[{gx+4*c}:{gx+4*c+3}], v{ga+c}")
        a.wait(lg=0)
        for i in range(32): a(f"v_dot2c_f32_bf16 v{gacc+(i&1)}, s{64+i}, v{gx+i}")
        if s < 8: gate_ld(s + 1)
        a.merge(f"GM_nogate{s}", sn)
    stamp(a, 2)
    a.wait(vm=10)
    stamp(a, 3)
    if STAMPS: stamp_dump(a, 4, 40, 20, t0, t1); a.raw("s_mov_b64 exec, -1")
    gate_ld(0)
    a("s_barrier")
    stage_st(2); issueA(2)
    for i in range(6): issueB(2, i)
    for s in range(8):
        gate(s)
        a.wait(vm=10 if s + 2 <= 8 else 0)
        a("s_barrier")
        if s + 3 <= 8 and not os.environ.get("NOLOAD"):
            stage_st(s + 3); issueA(s + 3)
            for i in range(6): issueB(s + 3, i)
    gate(8)
    a("s_cmp_ge_u32 s61, 2")
    a(f"s_cbranch_scc1 {'GM_ld_end' if MERGE else 'GM_exit'}")
    a("s_nop 3")
    a(f"""
    v_add_f32 v{gacc}, v{gacc}, v{gacc+1}
    v_cvt_pk_bf16_f32 v{gacc}, v{gacc}, v{gacc}
    v_lshlrev_b32 v{gacc}, 16, v{gacc}
    v_mul_f32 v{gacc}, {LOG2E}, v{gacc}
    v_exp_f32 v{gacc}, -v{gacc}
    v_add_f32 v{gacc}, 1.0, v{gacc}
    v_rcp_f32 v{gacc}, v{gacc}
    v_cvt_pk_bf16_f32 v{gacc}, v{gacc}, v{gacc}
    v_lshlrev_b32 v{gacc}, 16, v{gacc}
    v_lshlrev_b32 v{t0}, 2, v{lane}
    s_lshl_b32 s56, s28, 9
    s_lshl_b32 s60, s48, 8
    s_add_u32 s56, s56, s60
    s_add_u32 s56, s56, {WS_G}
    buffer_store_dword v{gacc}, v{t0}, s[40:43], s56 offen{SC}
    """)
    if MERGE:
        a.raw("GM_ld_end:")
        a.raw("s_barrier")
        a.raw("s_branch PH2")
    else: a.raw("s_endpgm")
    R.put(gA); R.put(gacc, 2); R.put(gx, 32); R.put(ga, 8)
    R.put(vA, 4); R.put(vB, 6)
    a.restore("GM_cons", snapC)
    col = R.get(); rq = R.get()
    acc = R.get(96, 4)
    AF = [R.get(16, 4), R.get(16, 4)]
    BF = R.get(24, 4)
    aA = R.get(2); aB = R.get(6)
    ac = lambda mt, T: acc + 4 * (mt * 6 + T)
    tk = AF[1]
    a(f"""
    s_mov_b32 s61, 1
    s_lshl_b32 s31, s27, 2
    v_mov_b32 v{tk}, 1
    v_mov_b32 v{tk+1}, 0
    s_cmp_eq_u32 s27, 8
    s_cselect_b32 s62, 1, s20
    s_cmp_lg_u32 s62, 0
    """)
    snapT = a.branch("s_cbranch_scc1 GM_notick")
    a.raw("s_mov_b64 exec, 1")
    a.raw(f"buffer_atomic_add v{tk}, v{tk+1}, s[44:47], s31 offen sc0")
    a.raw("s_mov_b64 exec, -1")
    a.merge("GM_notick", snapT)
    zz = AF[0]
    for j in range(4): a(f"v_mov_b32 v{zz+j}, 0")
    a(f"v_lshlrev_b32 v{t0}, 4, v0")
    a(f"v_add_u32 v{t0}, {G_KVI}, v{t0}")
    for i in range(3): a(f"ds_write_b128 v{t0}, v[{zz}:{zz+3}] offset:{4096*i}")
    a(f"""
    s_and_b32 s48, s20, 1
    s_lshr_b32 s49, s20, 1
    v_and_b32 v{col}, 15, v{lane}
    v_lshrrev_b32 v{rq}, 4, v{lane}
    v_lshrrev_b32 v{t0}, 1, v{col}
    v_xor_b32 v{t0}, v{t0}, v{rq}
    v_lshlrev_b32 v{t0}, 4, v{t0}
    v_and_b32 v{t1}, 12, v{col}
    v_add_u32 v{t1}, v{t1}, v{col}
    v_lshl_add_u32 v{t0}, v{t1}, 7, v{t0}
    s_lshl_b32 s50, s48, 13
    v_add_u32 v{aA}, s50, v{t0}
    v_xor_b32 v{aA+1}, 64, v{aA}
    """)
    rr = BF; cc = BF + 1; gg = BF + 2
    a(f"""
    v_lshrrev_b32 v{rr}, 2, v{lane}
    v_and_b32 v{rr}, 3, v{rr}
    v_and_b32 v{cc}, 3, v{lane}
    v_and_b32 v{gg}, 2, v{rr}
    v_and_b32 v{t0}, 1, v{rq}
    v_lshl_or_b32 v{gg}, v{t0}, 2, v{gg}
    v_lshl_add_u32 v{rr}, v{rq}, 3, v{rr}
    v_mul_u32_u24 v{rr}, 384, v{rr}
    v_add_u32 v{rr}, {BRING}, v{rr}
    s_mul_i32 s51, s49, 9
    s_mul_i32 s52, s49, 6
    s_mul_i32 s53, s49, 24
    s_cmp_eq_u32 s27, 8
    s_cselect_b64 s[54:55], -1, 0
    """)
    for T in range(6):
        if T < 4:
            a(f"v_add_u32 v{t0}, s51, v{cc}")
            k = [0, 5, 18, 23][T]
            if k: a(f"v_add_u32 v{t0}, {k}, v{t0}")
        elif T == 5:
            a(f"v_add_u32 v{t0}, s52, v{cc}"); a(f"v_add_u32 v{t0}, 38, v{t0}")
        else:
            a(f"""
            v_mul_u32_u24 v{t0}, 18, v{cc}
            v_add_u32 v{t0}, s51, v{t0}
            v_add_u32 v{t0}, 4, v{t0}
            v_add_u32 v{t1}, s52, v{cc}
            v_add_u32 v{t1}, 34, v{t1}
            v_cmp_lt_u32 vcc, 1, v{cc}
            v_cndmask_b32 v{t0}, v{t0}, v{t1}, vcc
            """)
        a(f"""
        v_add_u32 v{t1}, s53, v{cc}
        v_add_u32 v{t1}, {4*T}, v{t1}
        v_cndmask_b32 v{t0}, v{t0}, v{t1}, s[54:55]
        v_lshrrev_b32 v{t1}, 1, v{t0}
        v_xor_b32 v{t1}, v{t1}, v{gg}
        v_and_b32 v{t0}, 1, v{t0}
        v_lshlrev_b32 v{t0}, 3, v{t0}
        v_lshl_add_u32 v{t0}, v{t1}, 4, v{t0}
        v_add_u32 v{aB+T}, v{rr}, v{t0}
        """)
    a(f"""
    v_mov_b32 v{t2}, {EPS:#x}
    v_cndmask_b32 v{t0}, 0, v{t2}, s[54:55]
    v_lshrrev_b32 v{t3}, 2, v{col}
    v_cmp_eq_u32 vcc, 1, v{t3}
    v_cndmask_b32 v{t1}, v{t2}, v{t0}, vcc
    """)
    for mt in range(4):
        for T in range(6):
            src = t0 if T in (2, 3) else (t1 if T == 4 else t2)
            for j in range(4): a(f"v_mov_b32 v{ac(mt,T)+j}, v{src}")
    a.raw("s_barrier")
    a.raw("s_waitcnt vmcnt(0)")
    a(f"v_readfirstlane_b32 s61, v{tk}")
    a("s_cmp_lg_u32 s61, 0")
    snapZ = a.branch("s_cbranch_scc1 GM_nozero")
    Z4 = BF
    for j in range(4): a(f"v_mov_b32 v{Z4+j}, 0")
    a(f"""
    v_lshlrev_b32 v{Z4+4}, 4, v{lane}
    s_mul_i32 s33, s27, 6080
    s_add_u32 s33, s33, {WS_KVS}
    """)
    for i in range(5):
        a.raw(f"buffer_store_dwordx4 v[{Z4}:{Z4+3}], v{Z4+4}, s[40:43], s33 offen sc1")
        a.raw("s_add_u32 s33, s33, 1024")
    a.raw("s_mov_b32 exec_hi, 0x0fffffff")
    a.raw(f"buffer_store_dwordx4 v[{Z4}:{Z4+3}], v{Z4+4}, s[40:43], s33 offen sc1")
    a.raw("s_mov_b64 exec, -1")
    a.raw("s_nop 2")
    a.merge("GM_nozero", snapZ)
    def setflag():
        a("s_cmp_lg_u32 s61, 0")
        sn = a.branch("s_cbranch_scc1 GM_noflag", rawblock=True)
        a.raw("s_waitcnt vmcnt(0)")
        a.raw("s_mov_b64 exec, 1")
        a.raw(f"v_mov_b32 v{t0}, 1")
        a.raw(f"v_mov_b32 v{t1}, 0")
        a.raw(f"buffer_atomic_add v{t0}, v{t1}, s[44:47], s31 offen offset:64")
        a.raw("s_mov_b64 exec, -1")
        a.merge("GM_noflag", sn, rawblock=True)
    def ldA1(t, mt):
        f = AF[t & 1]
        return f"ds_read_b128 v[{f+4*mt}:{f+4*mt+3}], v{aA + (t & 1)} offset:{((t>>1)%3)*ASLOT + (mt>>1)*4096 + (mt&1)*512}"
    def ldB1(t, T, h):
        o = ((t >> 1) % 3) * BSLOT + (t & 1) * 32 * 384 + h * 4 * 384
        return f"ds_read_b64_tr_b16 v[{BF+4*T+2*h}:{BF+4*T+2*h+1}], v{aB+T} offset:{o}"
    a.wait(lg=0)
    a("s_barrier")
    stamp(a, 1)
    for mt in range(4): a(ldA1(0, mt))
    for T in range(6):
        a(ldB1(0, T, 0)); a(ldB1(0, T, 1))
    for t in range(18):
        f = AF[t & 1]
        if t == 4: stamp(a, 6)
        if t == 10: stamp(a, 7)
        fill = {g: [] for g in range(24)}
        if t > 0:
            fill[0].append(ldB1(t, 5, 0)); fill[1].append(ldB1(t, 5, 1))
        if t < 17:
            n = t + 1
            if t & 1 == 0:
                for T in range(5):
                    fill[4*(T+1)].append(ldB1(n, T, 0)); fill[4*(T+1)+1].append(ldB1(n, T, 1))
                for mt in range(4): fill[6 + 4*mt].append(ldA1(n, mt))
            else:
                fill[7].append("BAR")
                seq = [ldB1(n, 0, 0), ldB1(n, 0, 1), ldA1(n, 0), ldA1(n, 1), ldB1(n, 1, 0), ldB1(n, 1, 1), ldA1(n, 2), ldA1(n, 3),
                       ldB1(n, 2, 0), ldB1(n, 2, 1), ldB1(n, 3, 0), ldB1(n, 3, 1), ldB1(n, 4, 0), ldB1(n, 4, 1)]
                for i, x in enumerate(seq): fill[8 + i].append(x)
        for T in range(6):
            for mt in range(4):
                c = f"v[{ac(mt,T)}:{ac(mt,T)+3}]"
                a(f"v_mfma_f32_16x16x32_bf16 {c}, v[{f+4*mt}:{f+4*mt+3}], v[{BF+4*T}:{BF+4*T+3}], {c}")
                for x in fill[4*T + mt]:
                    if x == "BAR":
                        a.wait(lg=0)
                        a("s_barrier")
                        if t == 3: setflag()
                    else: a(x)
    stamp(a, 2)
    R.put(AF[0], 16); R.put(AF[1], 16); R.put(BF, 24); R.put(aA, 2); R.put(aB, 6)
    tm = R.get(4, 2); L2 = R.get(2); fl = R.get(); zr = R.get()
    a(f"""
    v_mov_b32 v{zr}, 0
    buffer_load_dword v{fl}, v{zr}, s[44:47], s31 offen offset:64 sc1
    v_mov_b32 v{L2}, {LOG2E:#x}
    v_mov_b32 v{L2+1}, {LOG2E:#x}
    s_mov_b32 s56, {EPS:#x}
    """)
    def phi(r, keepmask=None):
        a(f"v_pk_mul_f32 v[{tm}:{tm+1}], v[{r}:{r+1}], v[{L2}:{L2+1}]")
        a(f"v_pk_mul_f32 v[{tm+2}:{tm+3}], v[{r+2}:{r+3}], v[{L2}:{L2+1}]")
        for j in range(4): a(f"v_exp_f32_e64 v{tm+j}, v{tm+j} clamp")
        if keepmask is not None: set_exec(a, keepmask)
        for j in range(4): a(f"v_max_f32 v{r+j}, s56, v{r+j}")
        a(f"v_pk_add_f32 v[{r}:{r+1}], v[{r}:{r+1}], v[{tm}:{tm+1}]")
        a(f"v_pk_add_f32 v[{r+2}:{r+3}], v[{r+2}:{r+3}], v[{tm+2}:{tm+3}]")
        if keepmask is not None: a("s_mov_b64 exec, -1")
    def pack(d, r):
        a(f"v_cvt_pk_bf16_f32 v{d}, v{r}, v{r+1}")
        a(f"v_cvt_pk_bf16_f32 v{d+1}, v{r+2}, v{r+3}")
    vq = R.get()
    a(f"""
    v_lshlrev_b32 v{vq}, 12, v{col}
    v_lshl_add_u32 v{vq}, v{rq}, 4, v{vq}
    s_lshl_b32 s57, s28, 8
    s_lshl_b32 s58, s48, 7
    s_add_u32 s57, s57, s58
    """)
    a("s_cmp_eq_u32 s27, 8")
    snapQ = a.branch("s_cbranch_scc1 GM_epi_q")
    F = {(T, p): R.get(4, 4) for T in range(5) for p in range(2)}
    AL = [R.get(4, 4) for p in range(2)]
    m_nv = lanemask(lambda c, r: (c >> 2) != 1)
    KVt = [ac(0, 0), ac(0, 1), ac(0, 2), ac(0, 3), ac(0, 4), ac(1, 0), ac(1, 1)]
    prods = [(('F', 2), 0), (('F', 3), 1), (('L', 0), 0), (('L', 0), 1), (('F', 2), 4), (('F', 3), 4), (('L', 0), 4)]
    a(f"v_cmp_eq_u32 s[64:65], 1, v{t3}")
    a(f"v_mov_b32 v{t1}, 0x3f803f80")
    for p in range(2):
        for mt in (2*p, 2*p+1):
            for T in (0, 1, 4, 2, 3):
                r = ac(mt, T)
                if T in (0, 1): phi(r)
                if T == 4: phi(r, m_nv)
                pack(F[(T, p)] + 2 * (mt & 1), r)
        for j in range(4): a(f"v_cndmask_b32 v{AL[p]+j}, v{t1}, v{F[(4,p)]+j}, s[64:65]")
        for i, (A_, B_) in enumerate(prods):
            Ar = F[(A_[1], p)] if A_[0] == 'F' else AL[p]
            Br = F[(B_, p)]
            c = f"v[{KVt[i]}:{KVt[i]+3}]"
            a(f"v_mfma_f32_16x16x32_bf16 {c}, v[{Ar}:{Ar+3}], v[{Br}:{Br+3}], {c if p else 0}")
    stamp(a, 4)
    b1 = AL[0]; b2 = AL[0] + 1; b3 = AL[0] + 2
    a(f"""
    s_mul_i32 s63, s48, {KVI_H}
    s_mul_i32 s60, s49, {2*380*4}
    s_add_u32 s60, s60, s63
    s_add_u32 s60, s60, {G_KVI}
    v_mul_u32_u24 v{b1}, {4*20*4}, v{rq}
    v_lshl_add_u32 v{b1}, v{col}, 2, v{b1}
    v_add_u32 v{b1}, s60, v{b1}
    v_lshlrev_b32 v{b2}, 2, v{col}
    v_add_u32 v{b2}, s60, v{b2}
    s_mul_i32 s58, s27, 48
    s_mul_i32 s59, s49, 24
    s_add_u32 s58, s58, s59
    s_lshl_b32 s58, s58, 12
    s_add_u32 s58, s58, s57
    s_add_u32 s59, s58, {8*4096}
    s_sub_u32 s58, s58, {8*4096}
    """)
    def add(base, reg, off): a(f"ds_write_b32 v{base}, v{reg} offset:{4*off}")
    K = KVt
    RS = 20; HS = 380
    for j in range(4): add(b1, K[0] + j, j * RS)
    for j in range(4): add(b1, K[1] + j, HS + (2 + j) * RS + 2)
    set_exec(a, lanemask(lambda c, r: r == 1))
    add(b2, K[2], 16 * RS); add(b2, K[2] + 1, 17 * RS)
    add(b2, K[3] + 2, HS + 2); add(b2, K[3] + 3, HS + RS + 2)
    set_exec(a, lanemask(lambda c, r: r == 2))
    add(b2, K[2], 18 * RS); add(b2, K[3], HS + 18 * RS + 2)
    set_exec(a, lanemask(lambda c, r: c < 2))
    for j in range(4): add(b1, K[4] + j, j * RS + 16)
    set_exec(a, lanemask(lambda c, r: c in (2, 3)))
    for j in range(4): add(b1, K[5] + j, HS + (2 + j) * RS - 2)
    set_exec(a, lanemask(lambda c, r: r == 1 and c < 2))
    add(b2, K[6], 16 * RS + 16); add(b2, K[6] + 1, 17 * RS + 16)
    set_exec(a, lanemask(lambda c, r: r == 1 and c in (2, 3)))
    add(b2, K[6] + 2, HS - 2); add(b2, K[6] + 3, HS + RS - 2)
    set_exec(a, lanemask(lambda c, r: r == 2 and c < 2))
    add(b2, K[6], 18 * RS + 16)
    set_exec(a, lanemask(lambda c, r: r == 2 and c in (2, 3)))
    add(b2, K[6], HS + 18 * RS - 2)
    a("s_mov_b64 exec, -1")
    a(f"v_add_u32 v{t0}, s58, v{vq}")
    set_exec(a, lanemask(lambda c, r: c >= 8))
    for p in range(2):
        d = F[(4, p)]
        a(f"buffer_store_dwordx4 v[{d}:{d+3}], v{t0}, s[40:43], 0 offen offset:{64*p}{SC}")
    a("s_mov_b64 exec, -1")
    a.wait(lg=0)
    a("s_barrier")
    stamp(a, 5)
    V6 = ac(2, 0); V7 = ac(3, 0)
    a(f"""
    v_lshlrev_b32 v{t0}, 2, v0
    v_add_u32 v{t1}, {G_KVI}, v{t0}
    """)
    for i in range(6): a(f"ds_read_b32 v{V6+i}, v{t1} offset:{1024*i}")
    for i in range(6): a(f"ds_read_b32 v{V7+i}, v{t1} offset:{KVI_H + 1024*i}")
    a(f"""
    s_mul_i32 s33, s27, 6080
    s_add_u32 s33, s33, {WS_KVS}
    v_mov_b32 v{t2}, 0x7f000000
    v_cmp_gt_u32 vcc, 240, v0
    v_cndmask_b32 v{t1}, v{t2}, v{t0}, vcc
    """)
    for i in range(6): a(f"v_add_f32 v{V6+i}, v{V6+i}, v{V7+i}")
    a(f"v_readfirstlane_b32 s32, v{fl}")
    a("s_cmp_lg_u32 s32, 0")
    sn = a.branch("s_cbranch_scc1 GM_flagok")
    a.raw("GM_poll:")
    a.raw(f"buffer_load_dword v{fl}, v{zr}, s[44:47], s31 offen offset:64 sc1")
    a.raw("s_waitcnt vmcnt(0)")
    a.raw(f"v_readfirstlane_b32 s32, v{fl}")
    a.raw("s_nop 1")
    a.raw("s_cmp_eq_u32 s32, 0")
    a.raw("s_cbranch_scc1 GM_poll")
    a.merge("GM_flagok", sn)
    for i in range(4):
        a(f"buffer_atomic_add_f32 v{V6+i}, v{t0}, s[40:43], s33 offen offset:{1024*i}")
    a(f"""
    s_add_u32 s33, s33, 4096
    buffer_atomic_add_f32 v{V6+4}, v{t0}, s[40:43], s33 offen
    buffer_atomic_add_f32 v{V6+5}, v{t1}, s[40:43], s33 offen offset:1024
    """)
    for p in range(2):
        d = F[(0, p)]
        for mt in (2*p, 2*p+1):
            r = ac(mt, 5); phi(r); pack(d + 2 * (mt & 1), r)
        a(f"buffer_store_dwordx4 v[{d}:{d+3}], v{vq}, s[40:43], s59 offen offset:{64*p}{SC}")
    stamp(a, 3)
    stamp_dump(a, 8, 40, 20, t0, t1)
    if MERGE:
        a(f"s_mov_b32 s19, {D_GEMM}"); a("s_mov_b32 s18, 143"); a.raw("s_branch PH2")
    else: a.raw("s_endpgm")
    a.restore("GM_epi_q", snapQ)
    if MERGE: a("s_barrier")
    a(f"""
    s_mul_i32 s58, s49, 96
    s_add_u32 s58, s58, 384
    s_lshl_b32 s58, s58, 12
    s_add_u32 s58, s58, s57
    """)
    k = 0
    for T in range(6):
        for p in range(2):
            d = list(F.values())[k % 10]; k += 1
            for mt in (2*p, 2*p+1):
                r = ac(mt, T); phi(r); pack(d + 2 * (mt & 1), r)
            a(f"buffer_store_dwordx4 v[{d}:{d+3}], v{vq}, s[40:43], s58 offen offset:{64*p}{SC}")
        a(f"s_add_u32 s58, s58, {16*4096}")
    stamp(a, 3)
    stamp_dump(a, 8, 40, 20, t0, t1)
    if MERGE:
        a(f"s_mov_b32 s19, {D_GEMM}"); a("s_mov_b32 s18, 143"); a.raw("s_branch PH2")
    a.label("GM_exit", flush=False)
    a.raw("s_endpgm")
```

```python
WS_PQT = 0
WS_BT  = 0x240000
WS_WOF = 0x480000
WS_KVS = 0x530000
WS_G   = 0x540000
WS_SIZE = 0x550000
import os
MERGE = int(os.environ.get("MERGE", 0))
SC = " sc1" if MERGE else ""
D_GEMM = 128
D_CONV = 192
D_AUX = 208
D_DUMMY = 252
WS_GO = 0x548000
```

```python
from asmlib import *
from layout import *

K2_PQ = 0
K2_KV = 49152
K2_OF = K2_KV + 30720
K2_LDS = K2_OF + 36864
K2_GRID = 256; K2_BLOCK = 576
import os
EARLYBAR = int(os.environ.get('EARLYBAR', 0))
PREF = int(os.environ.get('PREF', 0))

def gen_ph2(a):
    R = VAlloc(1, 168)
    a.restore("PH2", ([], []))
    a.raw("s_waitcnt lgkmcnt(0)")
    a("""
    s_setprio 0
    s_mov_b64 exec, -1
    s_load_dwordx4 s[92:95], s[0:1], 104
    s_load_dwordx2 s[6:7], s[0:1], 120
    """)
    lane = R.get(); t0 = R.get(); t1 = R.get(); t2 = R.get(); t3 = R.get()
    col = R.get(); rq = R.get(); l16 = R.get()
    aB = R.get(); aM = R.get(); aX0 = R.get(); aX1 = R.get(); aO = R.get(); aL = R.get(); _pad = R.get()
    lo = R.get(4, 2); r0 = R.get(2); r1 = R.get(2)
    stamp(a, 0)
    a(f"""
    v_and_b32 v{lane}, 63, v0
    s_and_b32 s21, s2, 7
    s_lshr_b32 s22, s2, 3
    s_lshl_b32 s21, s21, 3
    s_lshr_b32 s23, s22, 2
    s_add_u32 s21, s21, s23
    s_and_b32 s22, s22, 3
    s_lshl_b32 s23, s23, 1
    v_and_b32 v{col}, 15, v{lane}
    v_lshrrev_b32 v{rq}, 4, v{lane}
    v_lshlrev_b32 v{l16}, 4, v{lane}
    v_lshrrev_b32 v{t1}, 2, v{lane}
    v_lshlrev_b32 v{t1}, 12, v{t1}
    v_and_b32 v{t2}, 3, v{lane}
    v_lshl_add_u32 v{t1}, v{t2}, 4, v{t1}
    s_mul_i32 s24, s20, 6080
    s_add_u32 s24, s24, {WS_KVS}
    s_mul_i32 s25, s20, {72*4096}
    s_lshl_b32 s26, s21, 6
    s_add_u32 s25, s25, s26
    s_mul_i32 s27, s20, 6144
    s_mul_i32 s26, s22, 9
    s_add_u32 s26, s26, s20
    s_mul_i32 s28, s26, 18432
    s_add_u32 s28, s28, {WS_WOF}
    """)
    a(f"""
    s_mov_b32 s8, s6
    s_mov_b32 s9, s7
    s_mov_b32 s10, {WS_SIZE}
    s_mov_b32 s11, 0x20000
    s_mov_b32 s12, s92
    s_mov_b32 s13, s93
    s_mov_b32 s14, 2359296
    s_mov_b32 s15, 0x20000
    s_mov_b32 s96, s94
    s_mov_b32 s97, s95
    s_mov_b32 s98, 256
    s_mov_b32 s99, 0x20000
    s_mov_b32 s64, s6
    s_mov_b32 s65, s7
    s_mov_b32 s66, 2359296
    s_mov_b32 s67, 0x20000
    """)
    pc = [0]
    def pollg(srd, off, target, sleep):
        n = pc[0]; pc[0] += 1
        a.nopflush()
        a.raw(f"PH_poll{n}:")
        a.raw(f"buffer_load_dword v{t3}, off, s[{srd}:{srd+3}], {off} sc1")
        a.raw("s_waitcnt vmcnt(0)")
        a.raw(f"v_readfirstlane_b32 s68, v{t3}")
        a.raw("s_nop 1")
        a.raw(f"s_cmp_eq_u32 s68, {target}")
        a.raw(f"s_cbranch_scc1 PH_poll{n}_ok")
        a.raw(f"s_sleep {sleep}")
        a.raw(f"s_branch PH_poll{n}")
        a.raw(f"PH_poll{n}_ok:")
    a("s_cmp_lg_u32 s20, 8")
    a.raw("s_cbranch_scc1 PH_noaux")
    a.raw(f"s_mov_b32 s69, {D_AUX}")
    a.raw("s_mov_b64 exec, 1")
    pollg(96, "s69", 16, 16)
    a.raw("s_mov_b64 exec, -1")
    a.raw("PH_noaux:")
    a.raw("s_waitcnt vmcnt(0) lgkmcnt(0)")
    a.raw("s_barrier")
    a.raw("s_cmp_ge_u32 s20, 9")
    a.raw("s_cbranch_scc1 K2_end")
    a.raw("s_cmp_lg_u32 s20, 0")
    a.raw("s_cbranch_scc1 PH_nosig")
    a.raw(f"v_mov_b32 v{t0}, 1")
    a.raw(f"v_mov_b32 v{t3}, 1")
    a.raw("s_mov_b64 exec, 1")
    a.raw(f"buffer_atomic_add v{t0}, off, s[96:99], s19 sc0")
    a.raw("s_waitcnt vmcnt(0)")
    a.raw(f"v_readfirstlane_b32 s68, v{t0}")
    a.raw("s_mov_b64 exec, -1")
    a.raw("s_cmp_lg_u32 s68, s18")
    a.raw("s_cbranch_scc1 PH_nosig")
    a.raw(f"s_cmp_lg_u32 s19, {D_GEMM}")
    a.raw("s_cbranch_scc1 PH_bc_conv")
    a.raw(f"v_lshlrev_b32 v{t2}, 7, v{lane}")
    a.raw(f"s_mov_b32 s68, {WS_GO}")
    for i in range(4):
        a.raw(f"buffer_store_dword v{t3}, v{t2}, s[8:11], s68 offen sc1")
        if i < 3: a.raw("s_add_u32 s68, s68, 8192")
    a.raw("s_branch PH_nosig")
    a.raw("PH_bc_conv:")
    a.raw(f"v_lshrrev_b32 v{t2}, 3, v{lane}")
    a.raw(f"v_lshlrev_b32 v{t2}, 5, v{t2}")
    a.raw(f"v_and_b32 v{t0}, 7, v{lane}")
    a.raw(f"v_add_u32 v{t2}, v{t2}, v{t0}")
    a.raw(f"v_lshlrev_b32 v{t2}, 7, v{t2}")
    a.raw(f"s_sub_u32 s68, s19, {D_CONV}")
    a.raw("s_lshl_b32 s68, s68, 8")
    a.raw(f"s_add_u32 s68, s68, {WS_GO + 4}")
    a.raw(f"buffer_store_dword v{t3}, v{t2}, s[8:11], s68 offen sc1")
    a.raw("PH_nosig:")
    stamp(a, 9)
    wof = R.get(72, 4); bt = R.get(4, 2); g = R.get(8, 4)
    def wof_ld(i):
        a(f"""
        s_add_u32 s30, s23, {i}
        s_cmp_ge_u32 s30, 18
        s_cselect_b32 s31, 18, 0
        s_sub_u32 s30, s30, s31
        s_lshl_b32 s{40+i}, s30, 10
        s_add_u32 s31, s{40+i}, s28
        buffer_load_dwordx4 v[{wof+4*i}:{wof+4*i+3}], v{l16}, s[8:11], s31 offen
        """)
    def btg_ld():
        a(f"""
        v_lshlrev_b32 v{t2}, 12, v{col}
        v_lshl_add_u32 v{t2}, v{rq}, 3, v{t2}
        s_lshl_b32 s29, s26, 16
        s_lshl_b32 s30, s21, 6
        s_add_u32 s29, s29, s30
        s_add_u32 s29, s29, {WS_BT}
        buffer_load_dwordx2 v[{bt}:{bt+1}], v{t2}, s[8:11], s29 offen
        buffer_load_dwordx2 v[{bt+2}:{bt+3}], v{t2}, s[8:11], s29 offen offset:32
        v_lshlrev_b32 v{t3}, 4, v{rq}
        s_lshl_b32 s30, s21, 7
        s_add_u32 s30, s30, {WS_G}
        buffer_load_dwordx4 v[{g}:{g+3}], v{t3}, s[8:11], s30 offen
        buffer_load_dwordx4 v[{g+4}:{g+7}], v{t3}, s[8:11], s30 offen offset:64
        """)
    a("s_cmp_eq_u32 s20, 8")
    snap8 = a.branch("s_cbranch_scc1 K2_w8")
    for i in range(18): wof_ld(i)
    kv = R.get(24, 4)
    z4 = R.get(4, 4); ka = R.get(6)
    for j in range(4): a(f"v_mov_b32 v{z4+j}, 0")
    a(f"""
    s_mul_i32 s34, s20, 3840
    s_add_u32 s34, s34, {K2_KV}
    v_add_u32 v{t0}, s34, v{l16}
    ds_write_b128 v{t0}, v[{z4}:{z4+3}]
    ds_write_b128 v{t0}, v[{z4}:{z4+3}] offset:1024
    ds_write_b128 v{t0}, v[{z4}:{z4+3}] offset:2048
    s_mov_b32 exec_hi, 0xffff
    ds_write_b128 v{t0}, v[{z4}:{z4+3}] offset:3072
    s_mov_b64 exec, -1
    s_mov_b32 s31, 13108
    s_mov_b32 s32, 3450
    """)
    R.put(z4, 4)
    for i in range(6):
        a(f"""
        v_add_u32 v{t0}, {64*i}, v{lane}
        v_mul_lo_u32 v{t2}, v{t0}, s31
        v_lshrrev_b32 v{t2}, 16, v{t2}
        v_mul_lo_u32 v{t3}, v{t2}, s32
        v_lshrrev_b32 v{t3}, 16, v{t3}
        v_add_u32 v{t3}, v{t3}, v{t2}
        v_mul_u32_u24 v{t3}, 48, v{t3}
        v_mul_u32_u24 v{t2}, 40, v{t2}
        v_lshlrev_b32 v{t0}, 3, v{t0}
        v_sub_u32 v{t0}, v{t0}, v{t2}
        v_add3_u32 v{ka+i}, v{t0}, v{t3}, s34
        """)
    a(f"""
    v_lshrrev_b32 v{t0}, 2, v{lane}
    v_and_b32 v{t0}, 3, v{t0}
    v_lshl_add_u32 v{t0}, v{rq}, 3, v{t0}
    v_lshlrev_b32 v{t0}, 6, v{t0}
    v_and_b32 v{t2}, 3, v{lane}
    v_lshl_add_u32 v{t0}, v{t2}, 3, v{t0}
    v_add_u32 v{aB}, s27, v{t0}
    v_mul_u32_u24 v{t0}, 48, v{col}
    v_lshl_add_u32 v{t0}, v{rq}, 4, v{t0}
    v_mov_b32 v{t2}, {19*48}
    v_cmp_gt_u32 vcc, 3, v{rq}
    v_cndmask_b32 v{t0}, v{t2}, v{t0}, vcc
    v_add_u32 v{aM}, s34, v{t0}
    """)
    jq = aO; rr = aL
    a(f"v_and_b32 v{jq}, 3, v{col}"); a(f"v_lshrrev_b32 v{rr}, 2, v{col}")
    for p, aX in ((0, aX0), (1, aX1)):
        a(f"""
        v_mov_b32 v{t0}, 19
        v_cmp_eq_u32 vcc, {p}, v{jq}
        v_cndmask_b32 v{t0}, v{t0}, 18, vcc
        v_and_b32 v{t2}, 1, v{rr}
        v_add_u32 v{t2}, 16, v{t2}
        v_lshrrev_b32 v{t3}, 1, v{rr}
        v_lshlrev_b32 v{t3}, 2, v{t3}
        v_add_u32 v{t3}, v{t3}, v{jq}
        v_cmp_eq_u32 vcc, {4*p+2}, v{t3}
        v_cndmask_b32 v{t0}, v{t0}, v{t2}, vcc
        v_cmp_gt_u32 vcc, 3, v{rq}
        v_cndmask_b32 v{t0}, 19, v{t0}, vcc
        v_mul_u32_u24 v{t0}, 48, v{t0}
        v_min_u32 v{t2}, 2, v{rq}
        v_lshl_add_u32 v{t0}, v{t2}, 4, v{t0}
        v_add_u32 v{aX}, s34, v{t0}
        """)
    a(f"""
    v_cmp_lt_u32 s[36:37], 1, v{rq}
    s_lshl_b32 s38, s20, 11
    s_add_u32 s38, s38, {K2_OF}
    v_add_u32 v{aO}, s38, v{l16}
    s_lshr_b32 s38, s20, 2
    s_lshl_b32 s38, s38, 10
    s_and_b32 s39, s20, 3
    s_lshl_b32 s39, s39, 2
    s_add_u32 s38, s38, s39
    s_add_u32 s38, s38, {K2_OF + 16*1024}
    v_add_u32 v{aL}, s38, v{l16}
    """)
    a("s_barrier")
    stamp(a, 1)
    for i in range(6):
        if i == 4: a("s_add_u32 s24, s24, 4096")
        a(f"buffer_load_dwordx4 v[{kv+4*i}:{kv+4*i+3}], v{l16}, s[8:11], s24 offen offset:{(i%4)*1024}")
    for i in range(6):
        a(f"""
        s_add_u32 s29, s25, {WS_PQT + i*65536}
        s_add_u32 m0, s27, {K2_PQ + i*1024}
        buffer_load_dwordx4 v{t1}, s[64:67], s29 offen lds
        """)
    for i in range(6):
        a(f"v_cvt_pk_bf16_f32 v{kv+4*i}, v{kv+4*i}, v{kv+4*i+1}")
        a(f"v_cvt_pk_bf16_f32 v{kv+4*i+1}, v{kv+4*i+2}, v{kv+4*i+3}")
        if i == 5: a("s_mov_b32 exec_hi, 0x0fffffff")
        a(f"ds_write_b64 v{ka+i}, v[{kv+4*i}:{kv+4*i+1}]")
    a("s_mov_b64 exec, -1")
    R.put(kv, 24); R.put(ka, 6)
    stamp(a, 2)
    FA = R.get(16, 4); FB = R.get(16, 4); M = R.get(24, 4)
    def ldA(p):
        for hh in range(2):
            h = 2*p + hh
            a(f"ds_read_b128 v[{FA+8*hh}:{FA+8*hh+3}], v{aM} offset:{h*960}")
            a(f"ds_read_b128 v[{FA+8*hh+4}:{FA+8*hh+7}], v{aX0 if hh == 0 else aX1} offset:{h*960}")
    def ldB(p):
        for mt in range(2):
            for hh in range(2):
                h = 2*p + hh; b = FB + 8*mt + 4*hh
                a(f"ds_read_b64_tr_b16 v[{b}:{b+1}], v{aB} offset:{h*1152 + 32*mt}")
                a(f"ds_read_b64_tr_b16 v[{b+2}:{b+3}], v{aB} offset:{h*1152 + 256 + 32*mt}")
    ldA(0)
    a.wait(vm=0)
    stamp(a, 3)
    ldB(0)
    wi = 4
    for p in range(2):
        for mt in range(2):
            m = M + 12*mt; b = FB + 8*mt
            a(f"""
            v_mfma_f32_16x16x32_bf16 v[{m+8}:{m+11}], v[{FA+4}:{FA+7}], v[{b}:{b+3}], 0
            v_mfma_f32_16x16x32_bf16 v[{m}:{m+3}], v[{FA}:{FA+3}], v[{b}:{b+3}], 0
            v_mfma_f32_16x16x32_bf16 v[{m+8}:{m+11}], v[{FA+12}:{FA+15}], v[{b+4}:{b+7}], v[{m+8}:{m+11}]
            v_mfma_f32_16x16x32_bf16 v[{m+4}:{m+7}], v[{FA+8}:{FA+11}], v[{b+4}:{b+7}], 0
            """)
        if p == 0:
            ldA(1); ldB(1)
        for mt in range(2):
            m = M + 12*mt
            a(f"""
            v_add_f32 v{r0}, 0x358637bd, v{m+8}
            v_add_f32 v{r1}, 0x358637bd, v{m+9}
            v_rcp_f32 v{r0}, v{r0}
            v_rcp_f32 v{r1}, v{r1}
            v_pk_mul_f32 v[{m}:{m+1}], v[{m}:{m+1}], v[{r0}:{r0+1}] op_sel_hi:[1,0]
            v_pk_mul_f32 v[{m+2}:{m+3}], v[{m+2}:{m+3}], v[{r0}:{r0+1}] op_sel_hi:[1,0]
            v_pk_mul_f32 v[{m+4}:{m+5}], v[{m+4}:{m+5}], v[{r1}:{r1+1}] op_sel_hi:[1,0]
            v_pk_mul_f32 v[{m+6}:{m+7}], v[{m+6}:{m+7}], v[{r1}:{r1+1}] op_sel_hi:[1,0]
            v_cndmask_b32 v{r0}, v{r0}, v{r1}, s[36:37]
            v_mul_f32 v{lo+2*mt+p}, v{m+10}, v{r0}
            v_cvt_pk_bf16_f32 v{m+8}, v{m}, v{m+1}
            v_cvt_pk_bf16_f32 v{m+9}, v{m+2}, v{m+3}
            v_cvt_pk_bf16_f32 v{m+10}, v{m+4}, v{m+5}
            v_cvt_pk_bf16_f32 v{m+11}, v{m+6}, v{m+7}
            ds_write_b128 v{aO}, v[{m+8}:{m+11}] offset:{mt*18432 + p*1024}
            """)
    a(f"""
    v_cvt_pk_bf16_f32 v{lo}, v{lo}, v{lo+1}
    v_cvt_pk_bf16_f32 v{lo+2}, v{lo+2}, v{lo+3}
    ds_write_b32 v{aL}, v{lo}
    ds_write_b32 v{aL}, v{lo+2} offset:18432
    """)
    a.wait(lg=0)
    a.nopflush()
    a.raw("s_branch K2_phaseB")
    a.restore("K2_w8", snap8)
    a.raw("s_lshl_b32 s69, s2, 7")
    a.raw(f"s_add_u32 s69, s69, {WS_GO}")
    a.raw("s_mov_b64 exec, 1")
    pollg(8, "s69", 1, 1)
    a("s_barrier")
    a.raw("s_add_u32 s69, s69, 4")
    pollg(8, "s69", 1, 1)
    a.raw("s_mov_b64 exec, -1")
    for i in range(18): wof_ld(i)
    a.nopflush()
    a.raw("K2_phaseB:")
    a("s_barrier")
    stamp(a, 4)
    btg_ld()
    R.put(FA, 16); R.put(FB, 16); R.put(M, 24)
    acc = R.get(8, 4)
    NB = 3
    fa = [R.get(8, 4) for _ in range(NB)]
    ad = [R.get() for _ in range(NB)]
    a(f"v_add_u32 v{t3}, {K2_OF}, v{l16}")
    def ld(i):
        if i >= 18: return
        a(f"v_add_u32 v{ad[i%NB]}, s{40+i}, v{t3}")
        a(f"ds_read_b128 v[{fa[i%NB]}:{fa[i%NB]+3}], v{ad[i%NB]}")
        a(f"ds_read_b128 v[{fa[i%NB]+4}:{fa[i%NB]+7}], v{ad[i%NB]} offset:18432")
    for i in range(NB - 1): ld(i)
    for i in range(18):
        ld(i + NB - 1)
        for mt in range(2):
            c = f"v[{acc+4*mt}:{acc+4*mt+3}]"
            a(f"v_mfma_f32_16x16x32_bf16 {c}, v[{fa[i%NB]+4*mt}:{fa[i%NB]+4*mt+3}], v[{wof+4*i}:{wof+4*i+3}], {c if i else 0}")
    stamp(a, 5)
    bf = R.get(4); o16 = R.get(2)
    a(f"""
    v_lshlrev_b32 v{t0}, 2, v{rq}
    v_mul_u32_u24 v{t0}, 1152, v{t0}
    v_lshl_add_u32 v{t0}, v{col}, 1, v{t0}
    s_mul_i32 s60, s21, {32*1152}
    s_lshl_b32 s61, s26, 5
    s_add_u32 s60, s60, s61
    """)
    for mt in range(2):
        a(f"""
        v_lshlrev_b32 v{bf}, 16, v{bt+2*mt}
        v_and_b32 v{bf+1}, 0xffff0000, v{bt+2*mt}
        v_lshlrev_b32 v{bf+2}, 16, v{bt+2*mt+1}
        v_and_b32 v{bf+3}, 0xffff0000, v{bt+2*mt+1}
        """)
        for j in range(4):
            A = acc + 4*mt + j
            a(f"v_sub_f32 v{A}, v{A}, v{bf+j}")
            a(f"v_fma_f32 v{A}, v{g+4*mt+j}, v{A}, v{bf+j}")
        a(f"""
        v_cvt_pk_bf16_f32 v{o16}, v{acc+4*mt}, v{acc+4*mt+1}
        v_cvt_pk_bf16_f32 v{o16+1}, v{acc+4*mt+2}, v{acc+4*mt+3}
        buffer_store_short v{o16}, v{t0}, s[12:15], s60 offen
        buffer_store_short_d16_hi v{o16}, v{t0}, s[12:15], s60 offen offset:1152
        buffer_store_short v{o16+1}, v{t0}, s[12:15], s60 offen offset:2304
        buffer_store_short_d16_hi v{o16+1}, v{t0}, s[12:15], s60 offen offset:3456
        """)
        if mt == 0:
            a(f"s_add_u32 s60, s60, {16*1152}")
            o16 = R.get(2)
    stamp(a, 6)
    stamp_dump(a, 10, 8, 20, t1, t2)
    a.label("K2_end", flush=False)
    return R.high
```

```python
import sys, os
os.environ["STAMPS"] = "1"
from build import *
import asmlib, k1
a1, hi1 = k1.gen_k1()
asmlib.STAMPS = False
import k2
k2.stamp = lambda *a: None; k2.stamp_dump = lambda *a, **k: None
a2, hi2 = k2.gen_k2()
t2 = "s_memrealtime s[90:91]\n" + a2.text()
post = """s_cmp_lg_u32 s2, 0
s_cbranch_scc1 K2_end
s_cmp_lg_u32 s20, 8
s_cbranch_scc1 K2_end
s_waitcnt vmcnt(0)
s_memrealtime s[72:73]
s_load_dwordx2 s[74:75], s[0:1], 112
s_waitcnt lgkmcnt(0)
s_mov_b32 s76, s74
s_mov_b32 s77, s75
s_mov_b32 s78, 256
s_mov_b32 s79, 0x20000
s_mov_b32 s10, 0x1000000
v_and_b32 v1, 63, v0
v_lshlrev_b32 v2, 2, v1
s_mov_b32 s80, %d
buffer_load_dword v3, v2, s[8:11], s80 offen
s_mov_b32 s80, %d
buffer_load_dword v4, v2, s[8:11], s80 offen
v_mov_b32 v5, s90
v_mov_b32 v6, s72
s_waitcnt vmcnt(0)
s_mov_b64 exec, 0x1ff
buffer_store_dword v3, v2, s[76:79], 0 offen
s_mov_b64 exec, 0xf
buffer_store_dword v4, v2, s[76:79], 0 offen offset:36
s_mov_b64 exec, 1
buffer_store_dword v5, v2, s[76:79], 0 offen offset:52
buffer_store_dword v6, v2, s[76:79], 0 offen offset:56
K2_end:""" % (0x600000 + (0*12+0)*64, 0x600000 + (96*12+0)*64)
t2 = t2.replace("K2_end:", post)
build([("k1_kernel", a1.text(), hi1, 256, 768, 137728), ("k2_kernel", t2, hi2, 256, 576, k2.K2_LDS)], sys.argv[1])
```

```python
from asmlib import *
from layout import *
from touch import *
import os

WARM = int(os.environ.get('WARM', 0))
SCA = ' sc1' if (WARM or MERGE) else ''
def gen_aux(a, R):
    lane = R.get(); t0 = R.get(); t1 = R.get(); t2 = R.get(); l16 = R.get(); aT = R.get(); aL = R.get()
    a(f"""
    s_load_dwordx2 s[6:7], s[0:1], 120
    s_load_dwordx2 s[36:37], s[0:1], 16
    s_load_dwordx4 s[92:95], s[0:1], 0
    v_and_b32 v{lane}, 63, v0
    s_lshl_b32 s21, s16, 1
    s_add_u32 s21, s21, s17
    s_sub_u32 s21, s21, 30
    v_lshlrev_b32 v{l16}, 4, v{lane}
    s_mul_i32 s22, s21, 41472
    s_lshl_b32 s23, s20, 10
    s_add_u32 s22, s22, s23
    v_lshrrev_b32 v{t0}, 2, v{lane}
    v_mul_u32_u24 v{t0}, 1152, v{t0}
    v_and_b32 v{t1}, 3, v{lane}
    v_lshl_add_u32 v{aT}, v{t1}, 3, v{t0}
    s_mul_i32 s24, s20, 96
    v_add_u32 v{aT}, s24, v{aT}
    v_lshrrev_b32 v{t0}, 5, v{lane}
    v_mul_u32_u24 v{t0}, {18*1152}, v{t0}
    v_bfe_u32 v{t1}, v{lane}, 4, 1
    v_mul_u32_u24 v{t1}, 1152, v{t1}
    v_add_u32 v{t0}, v{t0}, v{t1}
    v_and_b32 v{t1}, 15, v{lane}
    v_lshl_add_u32 v{aL}, v{t1}, 1, v{t0}
    v_add_u32 v{aL}, s24, v{aL}
    s_mov_b32 s12, s6
    s_mov_b32 s13, s7
    s_mov_b32 s14, {WS_SIZE}
    s_mov_b32 s15, 0x20000
    s_mov_b32 s40, s36
    s_mov_b32 s41, s37
    s_mov_b32 s42, 663552
    s_mov_b32 s43, 0x20000
    """)
    if os.environ.get("TLBW"):
        dm = R.get(2); ta = R.get()
        a(f"""
        s_load_dwordx2 s[48:49], s[0:1], 104
        v_lshlrev_b32 v{ta}, 16, v{lane}
        buffer_load_dword v{dm}, v{ta}, s[12:15], 0 offen
        s_mov_b32 s30, 0x400000
        buffer_load_dword v{dm}, v{ta}, s[12:15], s30 offen
        s_mov_b32 s50, 2359296
        s_mov_b32 s51, 0x20000
        buffer_load_dword v{dm+1}, v{ta}, s[48:51], 0 offen
        """)
    for i in range(4):
        a(f"""
        s_add_u32 m0, s23, {i*12288}
        s_add_u32 s25, s22, {i*12288}
        buffer_load_dwordx4 v{l16}, s[40:43], s25 offen lds
        """)
    if os.environ.get("TOUCH", "0") == "1":
        vx = R.get(); vw = R.get(); dd = R.get(3)
        a("""
        s_mov_b32 s8, s92
        s_mov_b32 s9, s93
        s_mov_b32 s10, 2359296
        s_mov_b32 s11, 0x20000
        s_mov_b32 s96, s94
        s_mov_b32 s97, s95
        s_mov_b32 s98, 1990656
        s_mov_b32 s99, 0x20000
        s_lshl_b32 s33, s20, 1
        s_add_u32 s33, s33, s17
        s_add_u32 s33, s33, 18
        """)
        touch_setup(a, lane, vx, vw, t0, t1)
        touch_issue(a, 33, vx, vw, dd, 8, 96, "AX_t0")
        a.wait(vm=1)
    else:
        a.wait(vm=0)
    a("s_barrier")
    F = [R.get(4, 4) for _ in range(3)]; H = R.get(3)
    for j in range(3):
        a(f"ds_read_b64_tr_b16 v[{F[j]}:{F[j]+1}], v{aT} offset:{32*j}")
        a(f"ds_read_b64_tr_b16 v[{F[j]+2}:{F[j]+3}], v{aT} offset:{18*1152 + 32*j}")
        a(f"ds_read_u16 v{H+j}, v{aL} offset:{16*1152 + 32*j}")
    a(f"""
    s_mul_i32 s26, s20, {3*18432}
    s_lshl_b32 s27, s21, 10
    s_add_u32 s27, s27, s26
    s_add_u32 s27, s27, {WS_WOF}
    s_lshr_b32 s28, s21, 3
    s_lshl_b32 s28, s28, 10
    s_and_b32 s29, s21, 7
    s_lshl_b32 s29, s29, 1
    s_add_u32 s28, s28, s29
    s_add_u32 s28, s28, s26
    s_add_u32 s28, s28, {WS_WOF + 16*1024}
    """)
    for j in range(3):
        a(f"buffer_store_dwordx4 v[{F[j]}:{F[j]+3}], v{l16}, s[12:15], s27 offen{SCA}")
        a(f"buffer_store_short v{H+j}, v{l16}, s[12:15], s28 offen{SCA}")
        if j < 2:
            a("s_add_u32 s27, s27, 18432"); a("s_add_u32 s28, s28, 18432")
    if os.environ.get("TOUCH", "0") == "1":
        for i in ():
            a("s_add_u32 s33, s33, 24")
            touch_issue(a, 33, vx, vw, dd + i, 8, 96, f"AX_t{i}")
    if MERGE:
        a("s_load_dwordx2 s[44:45], s[0:1], 112")
        a(f"""
        v_lshlrev_b32 v{t0}, 7, v{lane}
        v_mov_b32 v{F[0]}, 0
        v_mov_b32 v{F[0]+1}, 0
        s_lshl_b32 s30, s21, 11
        s_add_u32 s30, s30, {WS_GO}
        s_mov_b64 exec, 0xffff
        buffer_store_dwordx2 v[{F[0]}:{F[0]+1}], v{t0}, s[12:15], s30 offen sc1
        s_mov_b64 exec, -1
        """)
        a.wait(vm=0, lg=0)
        a("s_barrier")
        a(f"""
        s_mov_b32 s46, 256
        s_mov_b32 s47, 0x20000
        s_mov_b32 s19, {D_DUMMY}
        s_mov_b32 s18, -1
        s_cmp_lg_u32 s20, 0
        s_cbranch_scc1 PH2
        s_mov_b64 exec, 1
        v_mov_b32 v{t0}, 1
        buffer_atomic_add v{t0}, off, s[44:47], 0 offset:{D_AUX}
        s_mov_b64 exec, -1
        """)
        a.raw("s_branch PH2")
    elif WARM:
        a("s_load_dwordx2 s[44:45], s[0:1], 112")
        a.wait(vm=0, lg=0)
        a("s_barrier")
        a(f"""
        s_mov_b32 s46, 256
        s_mov_b32 s47, 0x20000
        v_lshlrev_b32 v{t1}, 7, v{lane}
        s_cmp_lg_u32 s20, 0
        """)
        a.raw("s_cbranch_scc1 AX_wait")
        a.raw("s_mov_b64 exec, 1")
        a.raw(f"v_mov_b32 v{t0}, 1")
        a.raw(f"buffer_atomic_add v{t0}, off, s[44:47], 0 offset:{D_AUX}")
        a.raw("AX_poll:")
        a.raw(f"buffer_load_dword v{t2}, off, s[44:47], 0 offset:{D_AUX} sc1")
        a.raw("s_waitcnt vmcnt(0)")
        a.raw(f"v_readfirstlane_b32 s30, v{t2}")
        a.raw("s_nop 1")
        a.raw("s_cmp_eq_u32 s30, 16")
        a.raw("s_cbranch_scc1 AX_ok")
        a.raw("s_sleep 8")
        a.raw("s_branch AX_poll")
        a.raw("AX_ok:")
        a.raw("s_mov_b64 exec, -1")
        a.raw("AX_wait:")
        a.raw("s_barrier")
        a(f"""
        s_sub_u32 s30, s17, 30
        s_mul_i32 s30, s30, {2592*128}
        s_lshl_b32 s31, s20, 13
        s_add_u32 s30, s30, s31
        s_add_u32 s30, s30, {WS_WOF}
        s_mov_b32 s14, {WS_WOF + 663552}
        """)
        for i in range(4):
            a(f"buffer_load_dword v{F[0]+i}, v{t1}, s[12:15], s30 offen")
            if i < 3: a(f"s_add_u32 s30, s30, {12*8192}")
        a.raw("s_endpgm")
    else: a.raw("s_endpgm")
```

```python
from asmlib import *
from layout import *
import struct, os
def fbits(x): return struct.unpack('<I', struct.pack('<f', x))[0]
LOG2E = fbits(1.4426950408889634)
import numpy as np
_c = 1.0/(2*np.pi); C_HI = np.float32(_c); C_LO = np.float32(_c - float(C_HI))
INV2PI_HI = fbits(float(C_HI)); INV2PI_LO = fbits(float(C_LO))

BUF = 4352
SCR0 = 0
SCR1 = 12 * BUF
U_STRIDE = 4608
C_U = 24 * BUF
C_BOX = C_U + 6 * U_STRIDE
C_FL = C_BOX + 2048
C_TAB = C_FL + 256
C_LDS = C_TAB + 3072
L0 = 639; KR_COPY = 1344
GH_COPY = 928
F_P, F_K, F_A, F_M, F_U = 0, 12, 24, 36, 40
SLEEP = int(os.environ.get("CSLEEP", 2))
GATHER_AT = int(os.environ.get("GATHER_AT", 6))
WAITALL = int(os.environ.get("WAITALL", 1))

def cmul(a, d, x, y, t):
    a(f"v_pk_mul_f32 v[{t}:{t+1}], v[{x}:{x+1}], v[{y}:{y+1}] op_sel:[0,0] op_sel_hi:[0,1]")
    a(f"v_pk_fma_f32 v[{d}:{d+1}], v[{x}:{x+1}], v[{y}:{y+1}], v[{t}:{t+1}] op_sel:[1,1,0] op_sel_hi:[1,0,1] neg_lo:[1,0,0]")

def gen_conv(a, R):
    t3 = R.get()
    lane = R.get(4, 2); col = lane + 1; rq = lane + 2; t2 = lane + 3
    aT = R.get(4, 2); aT2 = aT + 1; aKF = aT + 2; aHF = aT + 3
    t0 = R.get(); t1 = R.get()
    own = R.get(); prt = R.get(); aU = R.get(); aS = R.get(); oadr = R.get()
    fad = R.get(); flv = R.get(); one = R.get()
    BX = R.get(12, 2)
    rd = R.get(); p0 = R.get(); p1 = R.get(); p3 = R.get(); dt = R.get(); dsk = R.get()
    stamp(a, 0)
    a(f"""
    s_setprio 3
    s_load_dwordx16 s[36:51], s[0:1], 32
    s_load_dwordx2 s[4:5], s[0:1], 0
    s_load_dwordx2 s[6:7], s[0:1], 120
    v_and_b32 v{lane}, 63, v0
    s_lshr_b32 s22, s20, 1
    s_and_b32 s23, s20, 1
    s_mul_i32 s24, s21, 6
    s_add_u32 s24, s24, s22
    s_lshl_b32 s25, s24, 8
    s_lshl_b32 s26, s23, 7
    s_add_u32 s27, s25, s26
    s_xor_b32 s26, s26, 128
    s_add_u32 s28, s25, s26
    v_lshlrev_b32 v{p0}, 1, v{lane}
    v_add_u32 v{p1}, s28, v{p0}
    v_add_u32 v{p0}, s27, v{p0}
    s_lshl_b32 s25, s24, 1
    v_mov_b32 v{p3}, s25
    v_and_b32 v{col}, 15, v0
    v_lshrrev_b32 v{rq}, 4, v{lane}
    v_lshlrev_b32 v{fad}, 2, v{lane}
    v_add_u32 v{fad}, {C_FL}, v{fad}
    v_mov_b32 v{one}, 0
    s_mul_i32 s56, s20, {BUF}
    s_mov_b32 m0, s56
    s_xor_b32 s57, s20, 1
    s_and_b32 s60, s20, 14
    s_mul_i32 s60, s60, {BUF}
    s_add_u32 s60, s60, {SCR1}
    s_add_u32 s61, s60, {BUF}
    s_lshl_b32 s62, s23, 6
    s_mul_i32 s64, s22, {U_STRIDE}
    s_add_u32 s64, s64, {C_U + 512}
    """)
    par = R.get(10)
    a(f"global_load_ushort v{dt}, v{p3}, s[48:49]")
    a(f"global_load_ushort v{dsk}, v{p3}, s[50:51]")
    for i in range(6):
        a(f"global_load_ushort v{par+i}, v{p0}, s[{36+2*i}:{37+2*i}]")
    for i in range(4):
        a(f"global_load_ushort v{par+6+i}, v{p1}, s[{40+2*i}:{41+2*i}]")
    R.put(p0); R.put(p1); R.put(p3)
    a(f"""
    s_mov_b32 s8, s4
    s_mov_b32 s9, s5
    s_mov_b32 s10, 2359296
    s_mov_b32 s11, 0x20000
    s_mov_b32 s12, s6
    s_mov_b32 s13, s7
    s_mov_b32 s14, {WS_SIZE}
    s_mov_b32 s15, 0x20000
    """)
    xrow = [R.get(4, 2) for _ in range(8)]
    gad = R.get(); uad = R.get()
    a("s_cmp_lt_u32 s20, 4")
    snG2 = a.branch("s_cbranch_scc1 CV_g2pre")
    a(f"""
    s_sub_u32 s32, s22, 1
    s_sub_u32 s33, s32, s23
    s_sub_u32 s33, s33, 64
    s_lshl_b32 s32, s32, 1
    v_lshl_add_u32 v{t3}, v{lane}, 1, s33
    v_cmp_ge_u32 vcc, s32, v{t3}
    v_mov_b32 v{t0}, 0x3c00
    v_cndmask_b32 v{t2}, 0, v{t0}, vcc
    v_add_u32 v{t3}, 1, v{t3}
    v_cmp_ge_u32 vcc, s32, v{t3}
    v_mov_b32 v{t0}, 0x3c000000
    v_cndmask_b32 v{t3}, 0, v{t0}, vcc
    v_or_b32 v{t2}, v{t2}, v{t3}
    s_lshl_b32 s32, s20, 8
    s_sub_u32 s32, s32, 3072
    v_add_u32 v{t0}, s32, v{fad}
    ds_write_b32 v{t0}, v{t2}
    """)
    pieces = {}
    pieces[0] = f"""
    v_lshrrev_b32 v{t1}, 1, v{rq}
    v_lshlrev_b32 v{t1}, 5, v{t1}
    v_and_b32 v{t2}, 1, v{rq}
    v_lshlrev_b32 v{t2}, 4, v{t2}
    v_sub_u32 v{t3}, v{t2}, v{t1}
    v_lshlrev_b32 v{t1}, 1, v{col}
    v_sub_u32 v{t3}, v{t3}, v{t1}
    v_and_b32 v{t2}, 1, v{col}
    v_cmp_eq_u32 vcc, 0, v{t2}
    v_mov_b32 v{t0}, {KR_COPY + 2}
    v_cndmask_b32 v{t0}, 0, v{t0}, vcc
    v_add_u32 v{t0}, v{t3}, v{t0}
    ds_write_b32 v{fad}, v{one}
    """
    pieces[1] = f"""
    v_lshrrev_b32 v{t1}, 1, v{rq}
    v_lshlrev_b32 v{t1}, 5, v{t1}
    v_and_b32 v{t2}, 1, v{rq}
    v_lshlrev_b32 v{t2}, 4, v{t2}
    v_sub_u32 v{t3}, v{t2}, v{t1}
    v_lshl_add_u32 v{t0}, v{col}, 5, v{t3}
    """
    pieces[2] = f"""
    v_lshlrev_b32 v{t0}, 4, v{rq}
    v_lshlrev_b32 v{t1}, 1, v{col}
    v_sub_u32 v{t0}, v{t0}, v{t1}
    v_and_b32 v{t2}, 1, v{col}
    v_mul_u32_u24 v{t2}, 258, v{t2}
    v_add_u32 v{t0}, v{t0}, v{t2}
    v_add_u32 v{t0}, {C_BOX + 128 - 24}, v{t0}
    """
    pieces[3] = f"""
    v_add_u32 v{t0}, 1, v{col}
    v_and_b32 v{t0}, 3, v{t0}
    v_mul_u32_u24 v{t0}, {GH_COPY + 2}, v{t0}
    v_lshlrev_b32 v{t1}, 1, v{col}
    v_sub_u32 v{t0}, v{t0}, v{t1}
    v_lshl_add_u32 v{t0}, v{rq}, 3, v{t0}
    """
    pieces[4] = f"""
    v_add_u32 v{t1}, 1, v{col}
    v_cmp_eq_u32 vcc, 15, v{col}
    v_cndmask_b32 v{t1}, v{t1}, 32, vcc
    v_add_u32 v{t2}, 16, v{lane}
    v_cmp_eq_u32 vcc, 0, v{rq}
    v_cndmask_b32 v{t1}, v{t1}, v{t2}, vcc
    v_lshlrev_b32 v{t0}, 2, v{t1}
    """
    pieces[5] = f"""
    v_cmp_eq_u32 vcc, 32, v{lane}
    v_lshl_add_u32 v{t1}, v{col}, 1, v{rq}
    v_cndmask_b32 v{t1}, v{t1}, 32, vcc
    v_lshlrev_b32 v{t0}, 4, v{t1}
    """
    pieces[6] = f"""
    v_and_b32 v{t1}, 3, v{col}
    v_mul_u32_u24 v{t1}, 144, v{t1}
    v_lshrrev_b32 v{t2}, 2, v{col}
    v_lshlrev_b32 v{t2}, 5, v{t2}
    v_sub_u32 v{t1}, v{t1}, v{t2}
    v_add_u32 v{t1}, 88, v{t1}
    v_and_b32 v{t2}, 1, v{col}
    v_mul_u32_u24 v{t2}, 176, v{t2}
    v_lshrrev_b32 v{t3}, 1, v{col}
    v_lshlrev_b32 v{t3}, 5, v{t3}
    v_sub_u32 v{t2}, v{t2}, v{t3}
    v_add_u32 v{t2}, {576 + 120 + 128}, v{t2}
    v_cmp_gt_u32 vcc, 8, v{col}
    v_cndmask_b32 v{t1}, v{t2}, v{t1}, vcc
    v_lshlrev_b32 v{t2}, 3, v{rq}
    v_sub_u32 v{t0}, v{t1}, v{t2}
    """
    for i in range(7):
        a(f"s_cmp_lg_u32 s20, {i+4}")
        a.nopflush(); a.raw(f"s_cbranch_scc1 CV_pc{i}")
        a(pieces[i])
        a(f"ds_write_b32 v{fad}, v{t0} offset:{256 + 256*i}")
        a.nopflush(); a.raw("s_branch CV_pre_done")
        a.raw(f"CV_pc{i}:")
    a.raw("s_branch CV_pre_done")
    a.restore("CV_g2pre", snG2)
    a(f"""
    s_mov_b32 s34, s20
    s_add_u32 s32, s20, s17
    s_and_b32 s32, s32, 3
    v_lshl_add_u32 v{gad}, s32, 6, v{lane}
    v_lshlrev_b32 v{uad}, 4, v{gad}
    v_add_u32 v{uad}, {C_U + 512}, v{uad}
    v_mul_u32_u24 v{gad}, 9216, v{gad}
    s_mul_i32 s31, s21, 12
    s_add_u32 s35, s31, 4608
    s_lshr_b32 s33, s17, 2
    """)
    z4 = BX
    a(f"""
    v_mov_b32 v{z4}, 0
    v_mov_b32 v{z4+1}, 0
    v_mov_b32 v{z4+2}, 0
    v_mov_b32 v{z4+3}, 0
    v_lshrrev_b32 v{t0}, 5, v{lane}
    s_min_u32 s32, s34, 2
    s_lshl_b32 s32, s32, 1
    v_add_u32 v{t0}, s32, v{t0}
    v_mul_u32_u24 v{t0}, {U_STRIDE}, v{t0}
    v_and_b32 v{t1}, 31, v{lane}
    v_lshl_add_u32 v{t0}, v{t1}, 4, v{t0}
    v_add_u32 v{t0}, {C_U}, v{t0}
    ds_write_b128 v{t0}, v[{z4}:{z4+3}]
    """)
    a.nopflush()
    a.raw("CV_pre_done:")
    a.last = {}
    a(f"""
    v_mul_u32_u24 v{rd}, 272, v{col}
    v_lshl_add_u32 v{rd}, v{rq}, 4, v{rd}
    v_add_u32 v{rd}, s56, v{rd}
    v_lshlrev_b32 v{t0}, 4, v{lane}
    v_add_u32 v{own}, s56, v{t0}
    s_mul_i32 s58, s57, {BUF}
    v_add_u32 v{prt}, s58, v{t0}
    v_mov_b32 v{one}, 1
    s_lshl_b32 s58, s20, 2
    s_add_u32 s58, s58, {C_FL}
    v_mov_b32 v{oadr}, s58
    """)
    a.wait(lg=0)
    a("s_barrier")
    pollc = [0]
    def poll(mask_sg):
        n = pollc[0]; pollc[0] += 1
        a.nopflush()
        a.raw(f"CV_poll{n}:")
        a.raw(f"ds_read_b32 v{flv}, v{fad}")
        a.raw("s_waitcnt lgkmcnt(0)")
        a.raw(f"v_cmp_eq_u32 vcc, 0, v{flv}")
        a.raw("s_nop 1")
        a.raw(f"s_and_b64 vcc, vcc, s[{mask_sg}:{mask_sg+1}]")
        a.raw(f"s_cbranch_scc0 CV_poll{n}_ok")
        a.raw(f"s_sleep {SLEEP}")
        a.raw(f"s_branch CV_poll{n}")
        a.raw(f"CV_poll{n}_ok:")
        a.lgq = []
    def scale_from_flags():
        a(f"""
        v_readlane_b32 s58, v{flv}, {F_M}
        v_readlane_b32 s59, v{flv}, {F_M+1}
        v_readlane_b32 s68, v{flv}, {F_M+2}
        v_readlane_b32 s69, v{flv}, {F_M+3}
        s_max_u32 s58, s58, s59
        s_max_u32 s68, s68, s69
        s_max_u32 s59, s58, s68
        s_lshr_b32 s59, s59, 23
        s_max_u32 s59, s59, 11
        s_min_u32 s59, s59, 254
        """)
    gcnt = [0]
    def gather1():
        k = gcnt[0]; gcnt[0] += 1
        if k >= 8: return
        a.raw("s_cmp_ge_u32 s20, 4")
        a.raw(f"s_cbranch_scc1 CV_g{k}_d")
        for r in range(3):
            i = (k + 3 * r) & 7
            if r < 2:
                a.raw(f"s_cmp_lg_u32 s33, {r}")
                a.raw(f"s_cbranch_scc1 CV_g{k}_{r}")
            a.raw(f"buffer_load_dwordx3 v[{xrow[i]}:{xrow[i]+2}], v{gad}, s[8:11], {'s31' if i < 4 else 's35'} offen offset:{(i%4)*1152}")
            if r < 2:
                a.raw(f"s_branch CV_g{k}_d")
                a.raw(f"CV_g{k}_{r}:")
        a.raw(f"CV_g{k}_d:")
    NG0 = int(os.environ.get("NG0", 2))
    for _ in range(NG0): gather1()
    a.raw("s_cmp_ge_u32 s20, 4")
    a.raw("s_cbranch_scc1 CV_g12")
    a.raw(f"s_waitcnt vmcnt({NG0})")
    a.raw("s_branch CV_kgen")
    a.raw("CV_g12:")
    a.raw("s_waitcnt vmcnt(0)")
    a.vmq = []
    a.raw("s_setprio 2")
    a.raw("s_cmp_lt_u32 s20, 8")
    a.raw("s_cbranch_scc1 CV_kgen")
    a.raw("s_setprio 1")
    a.raw("CV_kgen:")
    def xstage():
        a("s_cmp_ge_u32 s20, 4")
        snX = a.branch("s_cbranch_scc1 CV_nox")
        a(f"""
        s_mov_b32 s58, 0x7fff7fff
        s_mov_b32 s70, 0
        s_mov_b32 s71, 0xf0
        """)
        a.raw("s_waitcnt vmcnt(0)")
        stamp(a, 3)
        m = R.get(4)
        regs = [xrow[i] + p for i in range(8) for p in range(3)]
        for i in range(3): a(f"v_and_b32 v{m+i}, s58, v{regs[i]}")
        for i in range(3, 24):
            a(f"v_and_b32 v{m+3}, s58, v{regs[i]}")
            a(f"v_pk_max_u16 v{m+i%3}, v{m+i%3}, v{m+3}")
        a(f"""
        v_pk_max_u16 v{m}, v{m}, v{m+1}
        v_pk_max_u16 v{m}, v{m}, v{m+2}
        v_lshlrev_b32 v{m+1}, 16, v{m}
        v_max_u32 v{m}, v{m}, v{m+1}
        v_max_u32_dpp v{m}, v{m}, v{m} row_ror:1 row_mask:0xf bank_mask:0xf
        v_max_u32_dpp v{m}, v{m}, v{m} row_ror:2 row_mask:0xf bank_mask:0xf
        v_max_u32_dpp v{m}, v{m}, v{m} row_ror:4 row_mask:0xf bank_mask:0xf
        v_max_u32_dpp v{m}, v{m}, v{m} row_ror:8 row_mask:0xf bank_mask:0xf
        v_readlane_b32 s58, v{m}, 0
        v_readlane_b32 s59, v{m}, 16
        v_readlane_b32 s68, v{m}, 32
        v_readlane_b32 s69, v{m}, 48
        s_max_u32 s58, s58, s59
        s_max_u32 s68, s68, s69
        s_max_u32 s58, s58, s68
        s_or_b32 s58, s58, 1
        v_mov_b32 v{m}, s58
        ds_write_b32 v{oadr}, v{m} offset:{4*F_M}
        """)
        R.put(m, 4)
        poll(70)
        scale_from_flags()
        a("s_sub_u32 s58, 264, s59")
        a("s_lshl_b32 s58, s58, 23")
        f = R.get(8); o2 = R.get(8, 2)
        for c in range(6):
            p = c >> 1; o = o2 + 4 * (c & 1)
            for i in range(8):
                if c & 1: a(f"v_and_b32 v{f+i}, 0xffff0000, v{xrow[i]+p}")
                else: a(f"v_lshlrev_b32 v{f+i}, 16, v{xrow[i]+p}")
            for i in range(4): a(f"v_fma_mixlo_f16 v{o+i}, v{f+2*i}, s58, 0")
            for i in range(4): a(f"v_fma_mixhi_f16 v{o+i}, v{f+2*i+1}, s58, 0")
            a(f"ds_write_b128 v{uad}, v[{o}:{o+3}] offset:{c*U_STRIDE}")
        a(f"ds_write_b32 v{oadr}, v{one} offset:{4*F_U}")
        R.put(f, 8); R.put(o2, 8)
        stamp(a, 4)
        a.nopflush()
        a.raw("CV_nox:")
        a.last = {}
        for x in xrow: R.put(x, 4)
        R.put(gad); R.put(uad)
    a(f"""
    v_lshlrev_b32 v{dt}, 16, v{dt}
    v_mul_f32 v{dt}, {LOG2E}, v{dt}
    v_exp_f32 v{dt}, v{dt}
    v_lshlrev_b32 v{dsk}, 16, v{dsk}
    v_cvt_pk_bf16_f32 v{dt}, v{dt}, v{dt}
    v_readfirstlane_b32 s30, v{dsk}
    v_lshlrev_b32 v{dt}, 16, v{dt}
    """)
    R.put(dsk)
    pp = R.get(8, 2)
    stamp(a, 1)
    for i in range(8): a(f"v_lshlrev_b32 v{pp+i}, 16, v{par+2+i}")
    are = R.get(); aim = R.get()
    W = R.get(2); W2 = R.get(2); tp = R.get(2)
    a(f"""
    v_lshlrev_b32 v{are}, 16, v{par}
    v_lshlrev_b32 v{aim}, 16, v{par+1}
    v_mul_f32 v{are}, v{dt}, v{are}
    v_mul_f32 v{aim}, v{dt}, v{aim}
    v_mul_f32 v{are}, {LOG2E}, v{are}
    """)
    cmul(a, W, pp+2, pp, tp)
    cmul(a, W2, pp+6, pp+4, tp)
    a(f"""
    v_max_f32 v{t0}, |v{W}|, |v{W+1}|
    v_max3_f32 v{t0}, |v{W2}|, |v{W2+1}|, v{t0}
    v_mul_f32 v{t0}, v{dt}, v{t0}
    s_mov_b32 s54, {INV2PI_HI}
    s_mov_b32 s55, {INV2PI_LO}
    v_max_u32_dpp v{t0}, v{t0}, v{t0} row_ror:1 row_mask:0xf bank_mask:0xf
    v_max_u32_dpp v{t0}, v{t0}, v{t0} row_ror:2 row_mask:0xf bank_mask:0xf
    v_max_u32_dpp v{t0}, v{t0}, v{t0} row_ror:4 row_mask:0xf bank_mask:0xf
    v_max_u32_dpp v{t0}, v{t0}, v{t0} row_ror:8 row_mask:0xf bank_mask:0xf
    v_readlane_b32 s52, v{t0}, 0
    v_readlane_b32 s53, v{t0}, 16
    v_readlane_b32 s68, v{t0}, 32
    v_readlane_b32 s69, v{t0}, 48
    s_max_u32 s52, s52, s53
    s_max_u32 s68, s68, s69
    s_max_u32 s52, s52, s68
    s_lshr_b32 s52, s52, 23
    s_add_u32 s52, s52, 8
    s_bfe_u32 s53, s30, 0x80017
    s_max_u32 s52, s52, s53
    s_max_u32 s52, s52, 14
    s_min_u32 s52, s52, 262
    s_sub_u32 s53, 267, s52
    s_lshl_b32 s53, s53, 23
    """)
    R.put(par, 10); R.put(W2, 2); R.put(pp, 8)
    Y0 = R.get(2); Y1 = R.get(2)
    Yk = {0: Y0}
    Yh = {h: R.get() for h in (0, 2, 4, 6, 8, 10, 12, 14, 16)}
    E = {}
    e3 = R.get()
    for p in (1, 16, 256):
        e = R.get(2); E[p] = e
        if p == 1:
            a(f"v_exp_f32 v{t0}, v{are}"); th = aim
        else:
            a(f"v_mul_f32 v{t0}, {fbits(float(p))}, v{are}")
            a(f"v_mul_f32 v{t1}, {fbits(float(p))}, v{aim}")
            a(f"v_exp_f32 v{t0}, v{t0}"); th = t1
        a(f"""
        v_mul_f32 v{t2}, s54, v{th}
        v_fma_f32 v{e3}, v{th}, s54, -v{t2}
        v_fma_f32 v{e3}, v{th}, s55, v{e3}
        v_fract_f32 v{t2}, v{t2}
        v_add_f32 v{t2}, v{t2}, v{e3}
        v_cos_f32 v{e}, v{t2}
        v_sin_f32 v{e+1}, v{t2}
        v_mul_f32 v{e}, v{e}, v{t0}
        v_mul_f32 v{e+1}, v{e+1}, v{t0}
        """)
    a(f"""
    v_mul_f32 v{W}, v{dt}, v{W}
    v_mul_f32 v{W+1}, v{dt}, v{W+1}
    v_mul_f32 v{Yk[0]}, s53, v{W}
    v_mul_f32 v{Yk[0]+1}, s53, v{W+1}
    """)
    R.put(W, 2); R.put(are); R.put(aim); R.put(dt); R.put(e3)
    gather1()
    pk = [R.get() for _ in range(4)]; pki = [0]
    def put_row(buf, row, x, neg, keep=None):
        if keep is None:
            p = pk[pki[0] % 4]; pki[0] += 1
        else: p = keep
        a(f"v_cvt_pk_f16_f32 v{p}, v{x}, {'-' if neg else ''}v{x+1}")
        if row is not None: a(f"ds_write_addtid_b32 v{p} offset:{buf*SCR1 + row*272}")
    def get_frags(buf, dst):
        for ks in range(4):
            a(f"ds_read_b128 v[{dst+4*ks}:{dst+4*ks+3}], v{rd} offset:{buf*SCR1 + ks*64}")
    Z = [R.get(2), R.get(2)]
    Pf = [R.get(2), R.get(2)]
    Ph = {i: R.get() for i in range(1, 8)}
    tq = R.get(2)
    a(f"v_mov_b32 v{pk[3]}, 0x3c00")
    a(f"ds_write_addtid_b32 v{pk[3]} offset:0")
    put_row(0, 1, E[16], False)
    put_row(1, 0, Y0, True, keep=Yh[0])
    put_row(0, None, E[256], True, keep=Ph[1])
    zprev = E[16]; yprev = Y0; pprev = E[256]
    for h in range(1, 17):
        yd = Y1 if h % 2 else Y0
        cmul(a, yd, yprev, E[1], tp)
        if h + 1 <= 15:
            zd = Z[h % 2]
            cmul(a, zd, zprev, E[16], tq)
        if 1 <= h <= 6:
            pd = Pf[h % 2]
            cmul(a, pd, pprev, E[256], pd)
        put_row(1, h if h <= 15 else None, yd, True, keep=Yh.get(h))
        if h + 1 <= 15:
            put_row(0, h + 1, zd, False); zprev = zd
        if 1 <= h <= 6:
            put_row(0, None, pd, True, keep=Ph[h+1]); pprev = pd
        yprev = yd
        if h in (1, 5, 9, 13): gather1()
    for x in (Z[0], Z[1], E[1], E[16], E[256], Pf[0], Pf[1], Y0, Y1, tq): R.put(x, 2)
    ZF = R.get(16, 2); AF = R.get(16, 2)
    D = R.get(12, 2)
    get_frags(0, ZF)
    get_frags(1, AF)
    def prod_row(buf, row, y, p):
        d = pk[pki[0] % 4]; pki[0] += 1
        a(f"v_pk_mul_f16 v{d}, v{y}, v{p} op_sel:[0,0] op_sel_hi:[0,1]")
        a(f"v_pk_fma_f16 v{d}, v{y}, v{p}, v{d} op_sel:[1,1,0] op_sel_hi:[1,0,1] neg_lo:[1,0,0]")
        a(f"ds_write_addtid_b32 v{d} offset:{buf*SCR1 + row*272}")
    for h in range(8): prod_row(0, h, Yh[2*h], Ph[1])
    prod_row(0, 8, Yh[0], Ph[2]); prod_row(0, 9, Yh[0], Ph[4])
    gather1()
    for ks in range(4):
        a(f"v_mfma_f32_16x16x32_f16 v[{D}:{D+3}], v[{AF+4*ks}:{AF+4*ks+3}], v[{ZF+4*ks}:{ZF+4*ks+3}], {f'v[{D}:{D+3}]' if ks else 0}")
    get_frags(0, AF)
    for i in range(2):
        for mu in range(1, 5): prod_row(1, 4*i + mu - 1, Yh[4*mu], Ph[2+i])
    for ks in range(4):
        a(f"v_mfma_f32_16x16x32_f16 v[{D+4}:{D+7}], v[{AF+4*ks}:{AF+4*ks+3}], v[{ZF+4*ks}:{ZF+4*ks+3}], {f'v[{D+4}:{D+7}]' if ks else 0}")
    for i in range(4):
        for mu in (1, 2): prod_row(1, 8 + 2*i + mu - 1, Yh[8*mu], Ph[4+i])
    get_frags(1, AF)
    for h in Yh.values(): R.put(h)
    for i in Ph.values(): R.put(i)
    Z4 = R.get(4, 2)
    TB = R.get(7)
    for j in range(4): a(f"v_mov_b32 v{Z4+j}, 0")
    for i in range(4):
        a(f"ds_write_b128 v{own}, v[{Z4}:{Z4+3}] offset:{SCR1 + i*1024}")
    a(f"ds_write_addtid_b32 v{Z4} offset:{SCR1 + 4096}")
    a(f"ds_write_b128 v{own}, v[{D}:{D+3}]")
    a(f"ds_write_b128 v{own}, v[{D+4}:{D+7}] offset:1024")
    for ks in range(4):
        a(f"v_mfma_f32_16x16x32_f16 v[{D+8}:{D+11}], v[{ZF+4*ks}:{ZF+4*ks+3}], v[{AF+4*ks}:{AF+4*ks+3}], {f'v[{D+8}:{D+11}]' if ks else 0}")
    for i in range(7): a(f"ds_read_b32 v{TB+i}, v{fad} offset:{256 + 256*i}")
    R.put(ZF, 16); R.put(AF, 16); R.put(Z4, 4)
    kA = R.get(); kB = R.get(); kC = R.get(); aB2 = R.get()
    a(f"""
    s_lshl_b64 s[66:67], 1, s57
    s_sub_u32 s63, s60, s62
    s_add_u32 s63, s63, {2*L0 - 9*128}
    s_sub_u32 s65, s64, s62
    s_sub_u32 s65, s65, 384
    s_lshl_b32 s58, s23, 10
    v_add_u32 v{t2}, s58, v{prt}
    ds_write_b128 v{own}, v[{D+8}:{D+11}] offset:2048
    ds_write_b32 v{oadr}, v{one} offset:{4*F_P}
    v_add_u32 v{aT}, s63, v{TB}
    v_add_u32 v{aT2}, 640, v{aT}
    v_add_u32 v{aU}, s65, v{TB+1}
    s_lshl_b32 s65, s23, 9
    s_add_u32 s65, s65, {1024 + 8}
    v_add_u32 v{aB2}, s65, v{TB+2}
    s_mul_i32 s65, s23, 288
    s_add_u32 s65, s65, s61
    v_add_u32 v{aKF}, s65, v{TB+3}
    s_mul_i32 s65, s23, 176
    s_add_u32 s65, s65, s61
    v_add_u32 v{aHF}, s65, v{TB+3}
    v_lshlrev_b32 v{t3}, 5, v{col}
    v_lshl_add_u32 v{aS}, v{rq}, 4, v{t3}
    s_lshl_b32 s65, s23, 4
    s_sub_u32 s65, s64, s65
    s_sub_u32 s65, s65, 32
    v_add_u32 v{aS}, s65, v{aS}
    v_lshl_add_u32 v{t3}, v{rq}, 3, v{t3}
    """)
    def rd16(dst, base, byteoff):
        o = byteoff // 4
        a(f"ds_read2_b32 v[{dst}:{dst+1}], v{base} offset0:{o} offset1:{o+1}")
        a(f"ds_read2_b32 v[{dst+2}:{dst+3}], v{base} offset0:{o+2} offset1:{o+3}")
    rd16(BX, TB+2, 0); rd16(BX+4, TB+2, 520); rd16(BX+8, aB2, 0)
    R.put(aB2)
    stamp(a, 2)
    while gcnt[0] < 8: gather1()
    poll(66)
    PD = R.get(8, 2)
    a(f"ds_read_b128 v[{PD}:{PD+3}], v{t2}")
    a(f"ds_read_b128 v[{PD+4}:{PD+7}], v{t2} offset:1024")
    q = R.get(8, 2)
    a("s_cmp_eq_u32 s23, 1")
    snapK = a.branch("s_cbranch_scc1 CV_kfin1")
    a(f"""
    v_sub_u32 v{kA}, s60, v{t3}
    v_mov_b32 v{t1}, s30
    v_mul_f32 v{t1}, s53, v{t1}
    v_cmp_eq_u32 vcc, 0, v{lane}
    v_cndmask_b32 v{t1}, 0, v{t1}, vcc
    v_add_f32 v{D}, v{D}, v{t1}
    v_pk_add_f32 v[{D}:{D+1}], v[{D}:{D+1}], v[{PD}:{PD+1}]
    v_pk_add_f32 v[{D+2}:{D+3}], v[{D+2}:{D+3}], v[{PD+2}:{PD+3}]
    v_cvt_pk_f16_f32 v{q}, v{D+3}, v{D+2}
    v_cvt_pk_f16_f32 v{q+1}, v{D+1}, v{D}
    v_cvt_pk_f16_f32 v{q+2}, v{D+2}, v{D+1}
    ds_write_b64 v{kA}, v[{q}:{q+1}] offset:{2*(L0-3)}
    ds_write_b16 v{kA}, v{q} offset:{KR_COPY + 2*(L0-3) + 2}
    ds_write_b32 v{kA}, v{q+2} offset:{KR_COPY + 2*(L0-3) + 4}
    ds_write_b16_d16_hi v{kA}, v{q+1} offset:{KR_COPY + 2*(L0-3) + 8}
    """)
    a.nopflush()
    a.raw("s_branch CV_kfin_done")
    a.restore("CV_kfin1", snapK)
    a(f"""
    v_sub_u32 v{kB}, s60, v{TB+5}
    v_add_u32 v{kC}, s61, v{TB+6}
    v_cmp_eq_u32 s[68:69], 32, v{lane}
    """)
    for j in range(0, 8, 2): a(f"v_pk_add_f32 v[{D+4+j}:{D+5+j}], v[{D+4+j}:{D+5+j}], v[{PD+j}:{PD+j+1}]")
    c0, c2, c4, c6 = D+4, D+5, D+6, D+7
    c8 = PD
    T2 = D + 8
    a(f"""
    ds_bpermute_b32 v{c8}, v{TB+4}, v{c0}
    v_cvt_pk_f16_f32 v{q}, v{T2+3}, v{T2+2}
    v_cvt_pk_f16_f32 v{q+1}, v{T2+1}, v{T2}
    v_cvt_pk_f16_f32 v{q+2}, v{T2+2}, v{T2+1}
    ds_write_b64 v{kC}, v[{q}:{q+1}]
    ds_write_b16 v{kC}, v{q} offset:{GH_COPY + 2}
    ds_write_b32 v{kC}, v{q+2} offset:{GH_COPY + 4}
    ds_write_b16_d16_hi v{kC}, v{q+1} offset:{GH_COPY + 8}
    ds_write_b32 v{kC}, v{q} offset:{2*GH_COPY + 4}
    ds_write_b32 v{kC}, v{q+1} offset:{2*GH_COPY + 8}
    ds_write_b16 v{kC}, v{q} offset:{3*GH_COPY + 6}
    ds_write_b32 v{kC}, v{q+2} offset:{3*GH_COPY + 8}
    ds_write_b16_d16_hi v{kC}, v{q+1} offset:{3*GH_COPY + 12}
    v_cvt_pk_f16_f32 v{q+7}, v{c2}, v{c2}
    v_cndmask_b32 v{c2}, v{c2}, v{c0}, s[68:69]
    v_cndmask_b32 v{c4}, v{c4}, 0, s[68:69]
    v_cndmask_b32 v{c6}, v{c6}, 0, s[68:69]
    v_cndmask_b32 v{c8}, v{c8}, 0, s[68:69]
    v_cvt_pk_f16_f32 v{T2}, v{c8}, v{c6}
    v_cvt_pk_f16_f32 v{T2+1}, v{c4}, v{c4}
    v_cvt_pk_f16_f32 v{T2+2}, v{c4}, v{c2}
    v_cvt_pk_f16_f32 v{T2+3}, v{c0}, v{c0}
    v_mov_b32 v{q+4}, v{T2+1}
    v_cvt_pk_f16_f32 v{q+5}, v{c2}, v{c0}
    v_cvt_pk_f16_f32 v{q+6}, v{c6}, v{c4}
    v_mov_b32 v{t2}, s60
    s_mov_b32 exec_hi, 1
    ds_write_b128 v{kB}, v[{T2}:{T2+3}] offset:{2*(L0-256-7)}
    ds_write_b16 v{kB}, v{T2} offset:{KR_COPY + 2*(L0-256-7) + 2}
    ds_write_b32 v{kB}, v{q+6} offset:{KR_COPY + 2*(L0-256-7) + 4}
    ds_write_b64 v{kB}, v[{q+4}:{q+5}] offset:{KR_COPY + 2*(L0-256-7) + 8}
    ds_write_b16 v{kB}, v{T2+3} offset:{KR_COPY + 2*(L0-256-7) + 16}
    s_mov_b32 exec_lo, 0
    ds_write_b16 v{t2}, v{q+7} offset:{2*(L0-580)}
    ds_write_b16 v{t2}, v{q+7} offset:{2*(L0-579)}
    ds_write_b32 v{t2}, v{q+7} offset:{KR_COPY + 2*(L0-580) + 2}
    s_mov_b64 exec, -1
    """)
    a.nopflush()
    a.raw("CV_kfin_done:")
    a.last = {}
    a(f"""
    ds_write_b32 v{oadr}, v{one} offset:{4*F_K}
    s_lshl_b64 s[66:67], s[66:67], {F_K}
    """)
    R.put(q, 8); R.put(D, 12); R.put(PD, 8); R.put(TB, 7)
    for p in pk: R.put(p)
    R.put(rd); R.put(tp, 2); R.put(kA); R.put(kB); R.put(kC)
    xstage()
    poll(66)
    TK = R.get(40, 2); KF = R.get(12, 2); HF = R.get(10, 2)
    acc = R.get(32, 2)
    NU = 6
    UF = [R.get(4, 2) for _ in range(4)] + [aT, lane]
    US = R.get(4, 2)
    S1 = R.get(12, 2)
    W2f = R.get(4, 2); W3f = R.get(4, 2)
    gam = list(range(-3, 29))
    def ldU(i):
        if i < len(gam):
            a(f"ds_read_b128 v[{UF[i%NU]}:{UF[i%NU]+3}], v{aU} offset:{(gam[i]+3)*128}")
    for sg in range(10):
        o = (9 - sg) * 32; base = aT
        if o >= 160: base = aT2; o -= 160
        a(f"ds_read2_b32 v[{TK+4*sg}:{TK+4*sg+1}], v{base} offset0:{o} offset1:{o+1}")
        a(f"ds_read2_b32 v[{TK+4*sg+2}:{TK+4*sg+3}], v{base} offset0:{o+2} offset1:{o+3}")
    for ai, aa in enumerate((2, 3, 4)):
        a(f"ds_read_b64 v[{KF+4*ai}:{KF+4*ai+1}], v{aKF} offset:{2*(79 - 16*aa)}")
        a(f"ds_read_b64 v[{KF+4*ai+2}:{KF+4*ai+3}], v{aKF} offset:{144 + 2*(79 - 16*aa)}")
    for aa in (7, 6, 5, 4):
        a(f"ds_read_b64 v[{HF+2*(7-aa)}:{HF+2*(7-aa)+1}], v{aHF} offset:{576 + 2*(127 - 16*aa)}")
    a(f"v_mov_b32 v{HF+8}, 0"); a(f"v_mov_b32 v{HF+9}, 0")
    a(f"s_mov_b32 s66, {0xfff if WAITALL else 0}")
    a("s_mov_b32 s67, 0xf00")
    poll(66)
    stamp(a, 5)
    a(f"ds_read_b128 v[{US}:{US+3}], v{aS}")
    for i in range(NU - 1): ldU(i)
    scale_from_flags()
    a(f"""
    s_add_u32 s59, s59, s52
    s_sub_u32 s59, s59, 277
    s_lshl_b64 s[66:67], 1, s57
    s_lshl_b64 s[66:67], s[66:67], {F_A}
    """)
    fillers = []
    inited = set()
    def fill(n):
        for _ in range(n):
            if fillers: a(fillers.pop(0))
    def mm(J, A, B, nf=1):
        c = f"v[{acc+4*J}:{acc+4*J+3}]"
        a(f"v_mfma_f32_16x16x32_f16 {c}, v[{A}:{A+3}], v[{B}:{B+3}], {c if J in inited else 0}")
        inited.add(J)
        fill(nf)
    def direct(i, nf=1):
        g = gam[i]
        ldU(i + NU - 1)
        for J in range(8):
            sg = 4*J - g
            if 0 <= sg <= 8: mm(J, TK + 4*sg, UF[i % NU], nf)
            if sg == 16: mm(J, TK + 36, UF[i % NU], nf)
    di = 0
    for b in range(6):
        nf0 = 4 if b == 0 else 1
        a(f"v_mfma_f32_16x16x32_f16 v[{S1}:{S1+3}], v[{US}:{US+3}], v[{BX}:{BX+3}], 0"); fill(nf0)
        a(f"v_mfma_f32_16x16x32_f16 v[{S1+4}:{S1+7}], v[{US}:{US+3}], v[{BX+4}:{BX+7}], 0"); fill(nf0)
        if b < 4:
            a(f"v_mfma_f32_16x16x32_f16 v[{S1+8}:{S1+11}], v[{US}:{US+3}], v[{BX+8}:{BX+11}], 0"); fill(nf0)
        if b < 5: a(f"ds_read_b128 v[{US}:{US+3}], v{aS} offset:{512*(b+1)}")
        for _ in range(2): direct(di, 3 if b == 0 else 1); di += 1
        fill(len(fillers))
        cv = [f"v_cvt_pk_f16_f32 v{W2f+j}, v{S1+2*j}, v{S1+2*j+1}" for j in range(4)]
        if b < 4:
            cv += [f"v_cvt_pk_f16_f32 v{W3f+2*(b&1)}, v{S1+8}, v{S1+9}", f"v_cvt_pk_f16_f32 v{W3f+2*(b&1)+1}, v{S1+10}, v{S1+11}"]
        fillers.extend(cv)
        for _ in range(3): direct(di); di += 1
        fill(len(fillers))
        for ai, aa in enumerate((2, 3, 4)):
            if b + aa <= 7: mm(b + aa, W2f, KF + 4*ai)
        if b in (1, 3):
            Bq = b >> 1
            for aa in (4, 5, 6, 7):
                if aa + 2*Bq <= 7: mm(aa + 2*Bq, W3f, HF + 2*(7-aa))
    while di < len(gam): direct(di); di += 1
    assert len(inited) == 8
    for x in UF[:4]: R.put(x, 4)
    R.put(US, 4); R.put(S1, 12); R.put(W2f, 4); R.put(W3f, 4); R.put(TK, 40); R.put(BX, 12); R.put(KF, 12); R.put(HF, 10)
    stamp(a, 6)
    a(f"""
    s_lshl_b32 s65, s23, 11
    s_lshl_b32 s63, s24, 12
    s_add_u32 s63, s63, s65
    s_add_u32 s63, s63, {WS_BT}
    """)
    PA = R.get(16, 2)
    def tail(w):
        keep = acc + 16*w; send = acc + 16*(1-w)
        for j in range(4):
            a(f"ds_write_b128 v{own}, v[{send+4*j}:{send+4*j+3}] offset:{j*1024}")
        a(f"ds_write_b32 v{oadr}, v{one} offset:{4*F_A}")
        poll(66)
        stamp(a, 7)
        for j in range(4):
            a(f"ds_read_b128 v[{PA+4*j}:{PA+4*j+3}], v{prt} offset:{j*1024}")
        for j in range(4):
            k = keep + 4*j
            for e in range(4): a(f"v_add_f32 v{k+e}, v{k+e}, v{PA+4*j+e}")
            for e in range(4): a(f"v_ldexp_f32 v{k+e}, v{k+e}, s59")
            a(f"""
            v_cvt_pk_bf16_f32 v{k}, v{k}, v{k+1}
            v_cvt_pk_bf16_f32 v{k+1}, v{k+2}, v{k+3}
            buffer_store_dwordx2 v[{k}:{k+1}], v{t3}, s[12:15], s63 offen offset:{512*j}{SC}
            """)
        stamp(a, 8)
        stamp_dump(a, 9, 12, 20, t0, t1)
        if MERGE:
            a("s_mul_hi_u32 s19, s21, 178956971")
            a("s_lshl_b32 s19, s19, 2"); a(f"s_add_u32 s19, s19, {D_CONV}"); a("s_mov_b32 s18, 23"); a.raw("s_branch PH2")
        else: a.raw("s_endpgm")
    a("s_cmp_eq_u32 s23, 1")
    snapE = a.branch("s_cbranch_scc1 CV_tail1")
    tail(0)
    a.restore("CV_tail1", snapE)
    tail(1)
```

```python
from asmlib import *
import os
from layout import *
from k1_conv import LOG2E

ASLOT = 16384
BSLOT = 24576
BRING = 3 * ASLOT
G_KVI = BRING + 3 * BSLOT
KVI_H = 6144
G_LDS = G_KVI + 2 * KVI_H
EPS = 0x358637bd

def lanemask(f):
    m = 0
    for l in range(64):
        if f(l & 15, l >> 4): m |= 1 << l
    return m
MASKS = {}
def set_exec(a, m):
    if m in MASKS:
        a(f"s_mov_b64 exec, s[{MASKS[m]}:{MASKS[m]+1}]"); return
    a(f"s_mov_b32 exec_lo, {m & 0xffffffff:#x}")
    a(f"s_mov_b32 exec_hi, {m >> 32:#x}")
def preload_masks(a, ms, base):
    for i, m in enumerate(ms):
        MASKS[m] = base + 2*i
        a(f"s_mov_b32 s{base+2*i}, {m & 0xffffffff:#x}")
        a(f"s_mov_b32 s{base+2*i+1}, {m >> 32:#x}")

def gen_gemm(a, R):
    a(f"s_cmp_ge_u32 s20, {9 if MERGE else 8}")
    a("s_cbranch_scc1 GM_exit")
    if MERGE:
        a("s_cmp_lg_u32 s20, 8")
        a("s_cbranch_scc1 GM_not8")
        for _ in range(11): a.raw("s_barrier")
        a.raw("s_branch PH2")
        a.raw("GM_not8:")
    lane = R.get(); t0 = R.get(); t1 = R.get(); t2 = R.get(); t3 = R.get()
    stamp(a, 0)
    a(f"""
    s_load_dwordx4 s[4:7], s[0:1], 0
    s_load_dwordx4 s[36:39], s[0:1], 112
    v_and_b32 v{lane}, 63, v0
    s_sub_u32 s21, s17, 12
    s_and_b32 s22, s16, 3
    s_lshl_b32 s22, s22, 2
    s_lshr_b32 s23, s16, 2
    s_and_b32 s24, s21, 3
    s_lshr_b32 s25, s21, 2
    s_lshl_b32 s26, s23, 1
    s_add_u32 s26, s26, s24
    s_mul_i32 s27, s23, 5
    s_add_u32 s27, s27, s25
    s_cmp_ge_u32 s21, 16
    s_cselect_b32 s24, s26, s24
    s_cselect_b32 s27, 4, s27
    s_add_u32 s28, s22, s24
    s_add_u32 s29, s24, s25
    s_lshl_b32 s29, s29, 1
    s_cmp_ge_u32 s29, 9
    s_cselect_b32 s30, 9, 0
    s_sub_u32 s29, s29, s30
    """)
    NP = int(os.environ.get("NP", 0)); NR = 9 - NP
    if NP: a(f"""
    s_mul_i32 s29, s24, 3
    s_lshr_b32 s29, s29, 1
    s_add_u32 s29, s29, s25
    s_cmp_ge_u32 s29, {NR}
    s_cselect_b32 s30, {NR}, 0
    s_sub_u32 s29, s29, s30
    """)
    def st_calc(s):
        if s < NP: return f"s_mov_b32 s56, {s}"
        return f"""s_add_u32 s56, s29, {s - NP}
        s_cmp_ge_u32 s56, {NR}
        s_cselect_b32 s60, {NR}, 0
        s_sub_u32 s56, s56, s60
        s_add_u32 s56, s56, {NP}"""
    def srd_setup():
        a(f"""
    s_mov_b32 s8, s4
    s_mov_b32 s9, s5
    s_mov_b32 s10, 2359296
    s_mov_b32 s11, 0x20000
    s_mov_b32 s12, s6
    s_mov_b32 s13, s7
    s_mov_b32 s14, 1990656
    s_mov_b32 s15, 0x20000
    s_mov_b32 s40, s38
    s_mov_b32 s41, s39
    s_mov_b32 s42, {WS_SIZE}
    s_mov_b32 s43, 0x20000
    s_mov_b32 s44, s36
    s_mov_b32 s45, s37
    s_mov_b32 s46, 256
    s_mov_b32 s47, 0x20000
    """)
    a("s_cmp_lt_u32 s20, 4")
    snapC = a.branch("s_cbranch_scc1 GM_cons")
    vA = R.get(4); vB = R.get(6)
    a(f"""
    s_sub_u32 s48, s20, 4
    v_lshrrev_b32 v{t0}, 3, v{lane}
    v_mul_u32_u24 v{t0}, 1152, v{t0}
    v_and_b32 v{t1}, 7, v{lane}
    v_bfe_u32 v{t2}, v{lane}, 4, 1
    v_xor_b32 v{t1}, v{t1}, v{t2}
    v_lshl_add_u32 v{vA}, v{t1}, 4, v{t0}
    v_xor_b32 v{vA+1}, 32, v{vA}
    v_xor_b32 v{vA+2}, 64, v{vA}
    v_xor_b32 v{vA+3}, 0x60, v{vA}
    s_lshl_b32 s49, s28, 7
    s_lshl_b32 s50, s48, 5
    s_add_u32 s49, s49, s50
    s_mul_i32 s49, s49, 1152
    s_lshl_b32 s50, s48, 12
    s_mul_i32 s51, s48, {16*3456}
    s_mul_i32 s52, s48, {16*384}
    s_add_u32 s52, s52, {BRING}
    """)
    a(f"""
    s_mul_i32 s53, s27, 144
    s_add_u32 s54, s53, {2304 - 144}
    s_add_u32 s53, s53, 1152
    s_mul_i32 s55, s27, 96
    s_sub_u32 s55, s55, 288
    s_cmp_eq_u32 s27, 8
    s_cselect_b32 s53, 768, s53
    s_cselect_b32 s54, 768, s54
    s_cselect_b32 s55, 768, s55
    """)
    def stage_st(s):
        a(st_calc(s))
        a(f"""
        s_lshl_b32 s57, s56, 7
        s_add_u32 s57, s57, s49
        s_mul_i32 s58, s56, {64*3456}
        s_add_u32 s58, s58, s51
        """)
    def issueA(s):
        for i in range(4):
            a(f"""
            s_add_u32 s59, s57, {8*i*1152}
            s_add_u32 m0, s50, {(s % 3)*ASLOT + i*1024}
            buffer_load_dwordx4 v{vA + i}, s[8:11], s59 offen lds
            """)
    def issueB(s, i):
        a(f"""
        s_add_u32 m0, s52, {(s % 3)*BSLOT + i*1024}
        buffer_load_dwordx4 v{vB + i}, s[12:15], s58 offen lds
        """)
    stage_st(0)
    a("s_mov_b32 s60, 2731")
    def calcB(i):
        a(f"""
        v_add_u32 v{t0}, {64*i}, v{lane}
        v_mul_lo_u32 v{t1}, v{t0}, s60
        v_lshrrev_b32 v{t1}, 16, v{t1}
        v_mul_u32_u24 v{t2}, 24, v{t1}
        v_sub_u32 v{t0}, v{t0}, v{t2}
        v_and_b32 v{t2}, 2, v{t1}
        v_lshrrev_b32 v{t3}, 1, v{t1}
        v_and_b32 v{t3}, 4, v{t3}
        v_or_b32 v{t2}, v{t2}, v{t3}
        v_xor_b32 v{t0}, v{t0}, v{t2}
        v_mov_b32 v{t2}, s53
        v_mov_b32 v{t3}, s54
        v_cmp_lt_u32 vcc, 8, v{t0}
        v_cndmask_b32 v{t2}, v{t2}, v{t3}, vcc
        v_mov_b32 v{t3}, s55
        v_cmp_lt_u32 vcc, 17, v{t0}
        v_cndmask_b32 v{t2}, v{t2}, v{t3}, vcc
        v_lshl_add_u32 v{t2}, v{t0}, 4, v{t2}
        v_mul_u32_u24 v{t1}, 3456, v{t1}
        v_add_u32 v{vB+i}, v{t1}, v{t2}
        """)
    calcB(0); calcB(1)
    srd_setup()
    issueA(0)
    issueB(0, 0); issueB(0, 1)
    for i in range(2, 6):
        calcB(i); issueB(0, i)
    stamp(a, 1)
    a("s_barrier")
    for s in (1,):
        stage_st(s); issueA(s)
        for i in range(6): issueB(s, i)
    gA = R.get(); gacc = R.get(2); gx = R.get(32, 4); ga = R.get(8)
    a(f"""
    s_load_dwordx2 s[62:63], s[0:1], 96
    s_cmp_eq_u32 s27, 8
    s_cselect_b32 s61, s48, 9
    v_bfe_u32 v{t0}, v{lane}, 1, 1
    v_lshrrev_b32 v{t1}, 2, v{lane}
    v_and_b32 v{t1}, 6, v{t1}
    v_or_b32 v{t0}, v{t0}, v{t1}
    v_lshlrev_b32 v{t0}, 4, v{t0}
    v_lshl_add_u32 v{gA}, v{lane}, 7, v{t0}
    s_lshl_b32 s60, s48, 13
    v_add_u32 v{gA}, s60, v{gA}
    v_mov_b32 v{gacc}, 0
    v_mov_b32 v{gacc+1}, 0
    """)
    a.wait(lg=0)
    def gate_ld(s):
        for l in st_calc(s).split("\n"): a.raw(l.strip())
        for l in f"""s_lshl_b32 s56, s56, 7
        s_load_dwordx16 s[64:79], s[62:63], s56
        s_add_u32 s56, s56, 64
        s_load_dwordx16 s[80:95], s[62:63], s56""".split("\n"): a.raw(l.strip())
    def gate(s):
        a("s_cmp_ge_u32 s61, 2")
        sn = a.branch(f"s_cbranch_scc1 GM_nogate{s}")
        a(f"v_add_u32 v{ga}, {(s % 3)*ASLOT}, v{gA}")
        for c in range(1, 8): a(f"v_xor_b32 v{ga+c}, {16*c}, v{ga}")
        for c in range(8): a(f"ds_read_b128 v[{gx+4*c}:{gx+4*c+3}], v{ga+c}")
        a.wait(lg=0)
        for i in range(32): a(f"v_dot2c_f32_bf16 v{gacc+(i&1)}, s{64+i}, v{gx+i}")
        if s < 8: gate_ld(s + 1)
        a.merge(f"GM_nogate{s}", sn)
    stamp(a, 2)
    a.wait(vm=10)
    stamp(a, 3)
    if STAMPS: stamp_dump(a, 4, 40, 20, t0, t1); a.raw("s_mov_b64 exec, -1")
    gate_ld(0)
    a("s_barrier")
    stage_st(2); issueA(2)
    for i in range(6): issueB(2, i)
    for s in range(8):
        gate(s)
        a.wait(vm=10 if s + 2 <= 8 else 0)
        a("s_barrier")
        if s + 3 <= 8 and not os.environ.get("NOLOAD"):
            stage_st(s + 3); issueA(s + 3)
            for i in range(6): issueB(s + 3, i)
    gate(8)
    a("s_cmp_ge_u32 s61, 2")
    a(f"s_cbranch_scc1 {'GM_ld_end' if MERGE else 'GM_exit'}")
    a("s_nop 3")
    a(f"""
    v_add_f32 v{gacc}, v{gacc}, v{gacc+1}
    v_cvt_pk_bf16_f32 v{gacc}, v{gacc}, v{gacc}
    v_lshlrev_b32 v{gacc}, 16, v{gacc}
    v_mul_f32 v{gacc}, {LOG2E}, v{gacc}
    v_exp_f32 v{gacc}, -v{gacc}
    v_add_f32 v{gacc}, 1.0, v{gacc}
    v_rcp_f32 v{gacc}, v{gacc}
    v_cvt_pk_bf16_f32 v{gacc}, v{gacc}, v{gacc}
    v_lshlrev_b32 v{gacc}, 16, v{gacc}
    v_lshlrev_b32 v{t0}, 2, v{lane}
    s_lshl_b32 s56, s28, 9
    s_lshl_b32 s60, s48, 8
    s_add_u32 s56, s56, s60
    s_add_u32 s56, s56, {WS_G}
    buffer_store_dword v{gacc}, v{t0}, s[40:43], s56 offen{SC}
    """)
    if MERGE:
        a.raw("GM_ld_end:")
        a.raw("s_barrier")
        a.raw("s_branch PH2")
    else: a.raw("s_endpgm")
    R.put(gA); R.put(gacc, 2); R.put(gx, 32); R.put(ga, 8)
    R.put(vA, 4); R.put(vB, 6)
    a.restore("GM_cons", snapC)
    col = R.get(); rq = R.get()
    acc = R.get(96, 4)
    AF = [R.get(16, 4), R.get(16, 4)]
    BF = R.get(24, 4)
    aA = R.get(2); aB = R.get(6)
    ac = lambda mt, T: acc + 4 * (mt * 6 + T)
    srd_setup()
    tk = AF[1]
    a(f"""
    s_mov_b32 s61, 1
    s_lshl_b32 s31, s27, 2
    v_mov_b32 v{tk}, 1
    v_mov_b32 v{tk+1}, 0
    s_cmp_eq_u32 s27, 8
    s_cselect_b32 s62, 1, s20
    s_cmp_lg_u32 s62, 0
    """)
    snapT = a.branch("s_cbranch_scc1 GM_notick")
    a.raw("s_mov_b64 exec, 1")
    a.raw(f"buffer_atomic_add v{tk}, v{tk+1}, s[44:47], s31 offen sc0")
    a.raw("s_mov_b64 exec, -1")
    a.merge("GM_notick", snapT)
    zz = AF[0]
    for j in range(4): a(f"v_mov_b32 v{zz+j}, 0")
    a(f"v_lshlrev_b32 v{t0}, 4, v0")
    a(f"v_add_u32 v{t0}, {G_KVI}, v{t0}")
    for i in range(3): a(f"ds_write_b128 v{t0}, v[{zz}:{zz+3}] offset:{4096*i}")
    a(f"""
    s_and_b32 s48, s20, 1
    s_lshr_b32 s49, s20, 1
    v_and_b32 v{col}, 15, v{lane}
    v_lshrrev_b32 v{rq}, 4, v{lane}
    v_lshrrev_b32 v{t0}, 1, v{col}
    v_xor_b32 v{t0}, v{t0}, v{rq}
    v_lshlrev_b32 v{t0}, 4, v{t0}
    v_and_b32 v{t1}, 12, v{col}
    v_add_u32 v{t1}, v{t1}, v{col}
    v_lshl_add_u32 v{t0}, v{t1}, 7, v{t0}
    s_lshl_b32 s50, s48, 13
    v_add_u32 v{aA}, s50, v{t0}
    v_xor_b32 v{aA+1}, 64, v{aA}
    """)
    rr = BF; cc = BF + 1; gg = BF + 2
    a(f"""
    v_lshrrev_b32 v{rr}, 2, v{lane}
    v_and_b32 v{rr}, 3, v{rr}
    v_and_b32 v{cc}, 3, v{lane}
    v_and_b32 v{gg}, 2, v{rr}
    v_and_b32 v{t0}, 1, v{rq}
    v_lshl_or_b32 v{gg}, v{t0}, 2, v{gg}
    v_lshl_add_u32 v{rr}, v{rq}, 3, v{rr}
    v_mul_u32_u24 v{rr}, 384, v{rr}
    v_add_u32 v{rr}, {BRING}, v{rr}
    s_mul_i32 s51, s49, 9
    s_mul_i32 s52, s49, 6
    s_mul_i32 s53, s49, 24
    s_cmp_eq_u32 s27, 8
    s_cselect_b64 s[54:55], -1, 0
    """)
    for T in range(6):
        if T < 4:
            a(f"v_add_u32 v{t0}, s51, v{cc}")
            k = [0, 5, 18, 23][T]
            if k: a(f"v_add_u32 v{t0}, {k}, v{t0}")
        elif T == 5:
            a(f"v_add_u32 v{t0}, s52, v{cc}"); a(f"v_add_u32 v{t0}, 38, v{t0}")
        else:
            a(f"""
            v_mul_u32_u24 v{t0}, 18, v{cc}
            v_add_u32 v{t0}, s51, v{t0}
            v_add_u32 v{t0}, 4, v{t0}
            v_add_u32 v{t1}, s52, v{cc}
            v_add_u32 v{t1}, 34, v{t1}
            v_cmp_lt_u32 vcc, 1, v{cc}
            v_cndmask_b32 v{t0}, v{t0}, v{t1}, vcc
            """)
        a(f"""
        v_add_u32 v{t1}, s53, v{cc}
        v_add_u32 v{t1}, {4*T}, v{t1}
        v_cndmask_b32 v{t0}, v{t0}, v{t1}, s[54:55]
        v_lshrrev_b32 v{t1}, 1, v{t0}
        v_xor_b32 v{t1}, v{t1}, v{gg}
        v_and_b32 v{t0}, 1, v{t0}
        v_lshlrev_b32 v{t0}, 3, v{t0}
        v_lshl_add_u32 v{t0}, v{t1}, 4, v{t0}
        v_add_u32 v{aB+T}, v{rr}, v{t0}
        """)
    a(f"""
    v_mov_b32 v{t2}, {EPS:#x}
    v_cndmask_b32 v{t0}, 0, v{t2}, s[54:55]
    v_lshrrev_b32 v{t3}, 2, v{col}
    v_cmp_eq_u32 vcc, 1, v{t3}
    v_cndmask_b32 v{t1}, v{t2}, v{t0}, vcc
    """)
    for mt in range(4):
        for T in range(6):
            src = t0 if T in (2, 3) else (t1 if T == 4 else t2)
            for j in range(4): a(f"v_mov_b32 v{ac(mt,T)+j}, v{src}")
    if not STAMPS:
        preload_masks(a, [lanemask(f) for f in (lambda c, r: (c >> 2) != 1, lambda c, r: r == 1, lambda c, r: r == 2, lambda c, r: c < 2, lambda c, r: c in (2, 3),
            lambda c, r: r == 1 and c < 2, lambda c, r: r == 1 and c in (2, 3), lambda c, r: r == 2 and c < 2, lambda c, r: r == 2 and c in (2, 3), lambda c, r: c >= 8)], 66)
    a.raw("s_barrier")
    a.raw("s_waitcnt vmcnt(0)")
    a(f"v_readfirstlane_b32 s61, v{tk}")
    a("s_cmp_lg_u32 s61, 0")
    snapZ = a.branch("s_cbranch_scc1 GM_nozero")
    Z4 = BF
    for j in range(4): a(f"v_mov_b32 v{Z4+j}, 0")
    a(f"""
    v_lshlrev_b32 v{Z4+4}, 4, v{lane}
    s_mul_i32 s33, s27, 6080
    s_add_u32 s33, s33, {WS_KVS}
    """)
    for i in range(5):
        a.raw(f"buffer_store_dwordx4 v[{Z4}:{Z4+3}], v{Z4+4}, s[40:43], s33 offen sc1")
        a.raw("s_add_u32 s33, s33, 1024")
    a.raw("s_mov_b32 exec_hi, 0x0fffffff")
    a.raw(f"buffer_store_dwordx4 v[{Z4}:{Z4+3}], v{Z4+4}, s[40:43], s33 offen sc1")
    a.raw("s_mov_b64 exec, -1")
    a.raw("s_nop 2")
    a.merge("GM_nozero", snapZ)
    def setflag():
        a("s_cmp_lg_u32 s61, 0")
        sn = a.branch("s_cbranch_scc1 GM_noflag", rawblock=True)
        a.raw("s_waitcnt vmcnt(0)")
        a.raw("s_mov_b64 exec, 1")
        a.raw(f"v_mov_b32 v{t0}, 1")
        a.raw(f"v_mov_b32 v{t1}, 0")
        a.raw(f"buffer_atomic_add v{t0}, v{t1}, s[44:47], s31 offen offset:64")
        a.raw("s_mov_b64 exec, -1")
        a.merge("GM_noflag", sn, rawblock=True)
    def ldA1(t, mt):
        f = AF[t & 1]
        return f"ds_read_b128 v[{f+4*mt}:{f+4*mt+3}], v{aA + (t & 1)} offset:{((t>>1)%3)*ASLOT + (mt>>1)*4096 + (mt&1)*512}"
    def ldB1(t, T, h):
        o = ((t >> 1) % 3) * BSLOT + (t & 1) * 32 * 384 + h * 4 * 384
        return f"ds_read_b64_tr_b16 v[{BF+4*T+2*h}:{BF+4*T+2*h+1}], v{aB+T} offset:{o}"
    a.wait(lg=0)
    a("s_barrier")
    stamp(a, 1)
    for mt in range(4): a(ldA1(0, mt))
    for T in range(6):
        a(ldB1(0, T, 0)); a(ldB1(0, T, 1))
    for t in range(18):
        f = AF[t & 1]
        if t == 4: stamp(a, 6)
        if t == 10: stamp(a, 7)
        fill = {g: [] for g in range(24)}
        if t > 0:
            fill[0].append(ldB1(t, 5, 0)); fill[1].append(ldB1(t, 5, 1))
        if t < 17:
            n = t + 1
            if t & 1 == 0:
                for T in range(5):
                    fill[4*(T+1)].append(ldB1(n, T, 0)); fill[4*(T+1)+1].append(ldB1(n, T, 1))
                for mt in range(4): fill[6 + 4*mt].append(ldA1(n, mt))
            else:
                fill[7].append("BAR")
                seq = [ldB1(n, 0, 0), ldB1(n, 0, 1), ldA1(n, 0), ldA1(n, 1), ldB1(n, 1, 0), ldB1(n, 1, 1), ldA1(n, 2), ldA1(n, 3),
                       ldB1(n, 2, 0), ldB1(n, 2, 1), ldB1(n, 3, 0), ldB1(n, 3, 1), ldB1(n, 4, 0), ldB1(n, 4, 1)]
                for i, x in enumerate(seq): fill[8 + i].append(x)
        for T in range(6):
            for mt in range(4):
                c = f"v[{ac(mt,T)}:{ac(mt,T)+3}]"
                a(f"v_mfma_f32_16x16x32_bf16 {c}, v[{f+4*mt}:{f+4*mt+3}], v[{BF+4*T}:{BF+4*T+3}], {c}")
                for x in fill[4*T + mt]:
                    if x == "BAR":
                        a.wait(lg=0)
                        a("s_barrier")
                        if t == 3: setflag()
                    else: a(x)
    stamp(a, 2)
    R.put(AF[0], 16); R.put(AF[1], 16); R.put(BF, 24); R.put(aA, 2); R.put(aB, 6)
    tm = R.get(4, 2); L2 = R.get(2); fl = R.get(); zr = R.get()
    a(f"""
    v_mov_b32 v{zr}, 0
    buffer_load_dword v{fl}, v{zr}, s[44:47], s31 offen offset:64 sc1
    v_mov_b32 v{L2}, {LOG2E:#x}
    v_mov_b32 v{L2+1}, {LOG2E:#x}
    s_mov_b32 s56, {EPS:#x}
    """)
    def phi(r, keepmask=None):
        a(f"v_pk_mul_f32 v[{tm}:{tm+1}], v[{r}:{r+1}], v[{L2}:{L2+1}]")
        a(f"v_pk_mul_f32 v[{tm+2}:{tm+3}], v[{r+2}:{r+3}], v[{L2}:{L2+1}]")
        for j in range(4): a(f"v_exp_f32_e64 v{tm+j}, v{tm+j} clamp")
        if keepmask is not None: set_exec(a, keepmask)
        for j in range(4): a(f"v_max_f32 v{r+j}, s56, v{r+j}")
        a(f"v_pk_add_f32 v[{r}:{r+1}], v[{r}:{r+1}], v[{tm}:{tm+1}]")
        a(f"v_pk_add_f32 v[{r+2}:{r+3}], v[{r+2}:{r+3}], v[{tm+2}:{tm+3}]")
        if keepmask is not None: a("s_mov_b64 exec, -1")
    def pack(d, r):
        a(f"v_cvt_pk_bf16_f32 v{d}, v{r}, v{r+1}")
        a(f"v_cvt_pk_bf16_f32 v{d+1}, v{r+2}, v{r+3}")
    vq = R.get()
    a(f"""
    v_lshlrev_b32 v{vq}, 12, v{col}
    v_lshl_add_u32 v{vq}, v{rq}, 4, v{vq}
    s_lshl_b32 s57, s28, 8
    s_lshl_b32 s58, s48, 7
    s_add_u32 s57, s57, s58
    """)
    a("s_cmp_eq_u32 s27, 8")
    snapQ = a.branch("s_cbranch_scc1 GM_epi_q")
    F = {(T, p): R.get(4, 4) for T in range(5) for p in range(2)}
    AL = [R.get(4, 4) for p in range(2)]
    m_nv = lanemask(lambda c, r: (c >> 2) != 1)
    KVt = [ac(0, 0), ac(0, 1), ac(0, 2), ac(0, 3), ac(0, 4), ac(1, 0), ac(1, 1)]
    prods = [(('F', 2), 0), (('F', 3), 1), (('L', 0), 0), (('L', 0), 1), (('F', 2), 4), (('F', 3), 4), (('L', 0), 4)]
    a(f"v_cmp_eq_u32 s[64:65], 1, v{t3}")
    a(f"v_mov_b32 v{t1}, 0x3f803f80")
    for p in range(2):
        for mt in (2*p, 2*p+1):
            for T in (0, 1, 4, 2, 3):
                r = ac(mt, T)
                if T in (0, 1): phi(r)
                if T == 4: phi(r, m_nv)
                pack(F[(T, p)] + 2 * (mt & 1), r)
        for j in range(4): a(f"v_cndmask_b32 v{AL[p]+j}, v{t1}, v{F[(4,p)]+j}, s[64:65]")
        for i, (A_, B_) in enumerate(prods):
            Ar = F[(A_[1], p)] if A_[0] == 'F' else AL[p]
            Br = F[(B_, p)]
            c = f"v[{KVt[i]}:{KVt[i]+3}]"
            a(f"v_mfma_f32_16x16x32_bf16 {c}, v[{Ar}:{Ar+3}], v[{Br}:{Br+3}], {c if p else 0}")
    stamp(a, 4)
    b1 = AL[0]; b2 = AL[0] + 1; b3 = AL[0] + 2
    a(f"""
    s_mul_i32 s63, s48, {KVI_H}
    s_mul_i32 s60, s49, {2*380*4}
    s_add_u32 s60, s60, s63
    s_add_u32 s60, s60, {G_KVI}
    v_mul_u32_u24 v{b1}, {4*20*4}, v{rq}
    v_lshl_add_u32 v{b1}, v{col}, 2, v{b1}
    v_add_u32 v{b1}, s60, v{b1}
    v_lshlrev_b32 v{b2}, 2, v{col}
    v_add_u32 v{b2}, s60, v{b2}
    s_mul_i32 s58, s27, 48
    s_mul_i32 s59, s49, 24
    s_add_u32 s58, s58, s59
    s_lshl_b32 s58, s58, 12
    s_add_u32 s58, s58, s57
    s_add_u32 s59, s58, {8*4096}
    s_sub_u32 s58, s58, {8*4096}
    """)
    def add(base, reg, off): a(f"ds_write_b32 v{base}, v{reg} offset:{4*off}")
    K = KVt
    RS = 20; HS = 380
    for j in range(4): add(b1, K[0] + j, j * RS)
    for j in range(4): add(b1, K[1] + j, HS + (2 + j) * RS + 2)
    set_exec(a, lanemask(lambda c, r: r == 1))
    add(b2, K[2], 16 * RS); add(b2, K[2] + 1, 17 * RS)
    add(b2, K[3] + 2, HS + 2); add(b2, K[3] + 3, HS + RS + 2)
    set_exec(a, lanemask(lambda c, r: r == 2))
    add(b2, K[2], 18 * RS); add(b2, K[3], HS + 18 * RS + 2)
    set_exec(a, lanemask(lambda c, r: c < 2))
    for j in range(4): add(b1, K[4] + j, j * RS + 16)
    set_exec(a, lanemask(lambda c, r: c in (2, 3)))
    for j in range(4): add(b1, K[5] + j, HS + (2 + j) * RS - 2)
    set_exec(a, lanemask(lambda c, r: r == 1 and c < 2))
    add(b2, K[6], 16 * RS + 16); add(b2, K[6] + 1, 17 * RS + 16)
    set_exec(a, lanemask(lambda c, r: r == 1 and c in (2, 3)))
    add(b2, K[6] + 2, HS - 2); add(b2, K[6] + 3, HS + RS - 2)
    set_exec(a, lanemask(lambda c, r: r == 2 and c < 2))
    add(b2, K[6], 18 * RS + 16)
    set_exec(a, lanemask(lambda c, r: r == 2 and c in (2, 3)))
    add(b2, K[6], HS + 18 * RS - 2)
    a("s_mov_b64 exec, -1")
    a(f"v_add_u32 v{t0}, s58, v{vq}")
    set_exec(a, lanemask(lambda c, r: c >= 8))
    for p in range(2):
        d = F[(4, p)]
        a(f"buffer_store_dwordx4 v[{d}:{d+3}], v{t0}, s[40:43], 0 offen offset:{64*p}{SC}")
    a("s_mov_b64 exec, -1")
    a.wait(lg=0)
    a("s_barrier")
    stamp(a, 5)
    V6 = ac(2, 0); V7 = ac(3, 0)
    a(f"""
    v_lshlrev_b32 v{t0}, 2, v0
    v_add_u32 v{t1}, {G_KVI}, v{t0}
    """)
    for i in range(6): a(f"ds_read_b32 v{V6+i}, v{t1} offset:{1024*i}")
    for i in range(6): a(f"ds_read_b32 v{V7+i}, v{t1} offset:{KVI_H + 1024*i}")
    a(f"""
    s_mul_i32 s33, s27, 6080
    s_add_u32 s33, s33, {WS_KVS}
    v_mov_b32 v{t2}, 0x7f000000
    v_cmp_gt_u32 vcc, 240, v0
    v_cndmask_b32 v{t1}, v{t2}, v{t0}, vcc
    """)
    for i in range(6): a(f"v_add_f32 v{V6+i}, v{V6+i}, v{V7+i}")
    a(f"v_readfirstlane_b32 s32, v{fl}")
    a("s_cmp_lg_u32 s32, 0")
    sn = a.branch("s_cbranch_scc1 GM_flagok")
    a.raw("GM_poll:")
    a.raw(f"buffer_load_dword v{fl}, v{zr}, s[44:47], s31 offen offset:64 sc1")
    a.raw("s_waitcnt vmcnt(0)")
    a.raw(f"v_readfirstlane_b32 s32, v{fl}")
    a.raw("s_nop 1")
    a.raw("s_cmp_eq_u32 s32, 0")
    a.raw("s_cbranch_scc1 GM_poll")
    a.merge("GM_flagok", sn)
    for i in range(4):
        a(f"buffer_atomic_add_f32 v{V6+i}, v{t0}, s[40:43], s33 offen offset:{1024*i}")
    a(f"""
    s_add_u32 s33, s33, 4096
    buffer_atomic_add_f32 v{V6+4}, v{t0}, s[40:43], s33 offen
    buffer_atomic_add_f32 v{V6+5}, v{t1}, s[40:43], s33 offen offset:1024
    """)
    for p in range(2):
        d = F[(0, p)]
        for mt in (2*p, 2*p+1):
            r = ac(mt, 5); phi(r); pack(d + 2 * (mt & 1), r)
        a(f"buffer_store_dwordx4 v[{d}:{d+3}], v{vq}, s[40:43], s59 offen offset:{64*p}{SC}")
    stamp(a, 3)
    stamp_dump(a, 8, 40, 20, t0, t1)
    if MERGE:
        a(f"s_mov_b32 s19, {D_GEMM}"); a("s_mov_b32 s18, 143"); a.raw("s_branch PH2")
    else: a.raw("s_endpgm")
    a.restore("GM_epi_q", snapQ)
    if MERGE: a("s_barrier")
    a(f"""
    s_mul_i32 s58, s49, 96
    s_add_u32 s58, s58, 384
    s_lshl_b32 s58, s58, 12
    s_add_u32 s58, s58, s57
    """)
    k = 0
    for T in range(6):
        for p in range(2):
            d = list(F.values())[k % 10]; k += 1
            for mt in (2*p, 2*p+1):
                r = ac(mt, T); phi(r); pack(d + 2 * (mt & 1), r)
            a(f"buffer_store_dwordx4 v[{d}:{d+3}], v{vq}, s[40:43], s58 offen offset:{64*p}{SC}")
        a(f"s_add_u32 s58, s58, {16*4096}")
    stamp(a, 3)
    stamp_dump(a, 8, 40, 20, t0, t1)
    if MERGE:
        a(f"s_mov_b32 s19, {D_GEMM}"); a("s_mov_b32 s18, 143"); a.raw("s_branch PH2")
    a.label("GM_exit", flush=False)
    a.raw("s_endpgm")
```

```python
from asmlib import *
from layout import *

K2_PQ = 0
K2_KV = 49152
K2_OF = K2_KV + 30720
K2_LDS = K2_OF + 36864
K2_GRID = 256; K2_BLOCK = 576
import os
EARLYBAR = int(os.environ.get('EARLYBAR', 0))
PREF = int(os.environ.get('PREF', 0))
WL = int(os.environ.get('WL', 1))

def gen_k2():
    a = Asm()
    R = VAlloc(1, 168)
    a("""
    s_cmp_ge_u32 s2, 256
    s_cbranch_scc1 K2_end
    s_load_dwordx2 s[4:5], s[0:1], 104
    s_load_dwordx2 s[6:7], s[0:1], 120
    """)
    lane = R.get(); t0 = R.get(); t1 = R.get(); t2 = R.get(); t3 = R.get()
    col = R.get(); rq = R.get(); l16 = R.get()
    aB = R.get(); aM = R.get(); aX0 = R.get(); aX1 = R.get(); aO = R.get(); aL = R.get(); _pad = R.get()
    lo = R.get(4, 2); r0 = R.get(2); r1 = R.get(2)
    stamp(a, 0)
    a(f"""
    v_lshrrev_b32 v{t0}, 6, v0
    v_and_b32 v{lane}, 63, v0
    v_readfirstlane_b32 s20, v{t0}
    s_and_b32 s21, s2, 7
    s_lshr_b32 s22, s2, 3
    s_lshl_b32 s21, s21, 3
    s_lshr_b32 s23, s22, 2
    s_add_u32 s21, s21, s23
    s_and_b32 s22, s22, 3
    s_lshl_b32 s23, s23, 1
    v_and_b32 v{col}, 15, v{lane}
    v_lshrrev_b32 v{rq}, 4, v{lane}
    v_lshlrev_b32 v{l16}, 4, v{lane}
    v_lshrrev_b32 v{t1}, 2, v{lane}
    v_lshlrev_b32 v{t1}, 12, v{t1}
    v_and_b32 v{t2}, 3, v{lane}
    v_lshl_add_u32 v{t1}, v{t2}, 4, v{t1}
    s_mul_i32 s24, s20, 6080
    s_add_u32 s24, s24, {WS_KVS}
    s_mul_i32 s25, s20, {72*4096}
    s_lshl_b32 s26, s21, 6
    s_add_u32 s25, s25, s26
    s_mul_i32 s27, s20, 6144
    s_mul_i32 s26, s22, 9
    s_add_u32 s26, s26, s20
    s_mul_i32 s28, s26, 18432
    s_add_u32 s28, s28, {WS_WOF}
    """)
    a(f"""
    s_mov_b32 s8, s6
    s_mov_b32 s9, s7
    s_mov_b32 s10, {WS_SIZE}
    s_mov_b32 s11, 0x20000
    s_mov_b32 s12, s4
    s_mov_b32 s13, s5
    s_mov_b32 s14, 2359296
    s_mov_b32 s15, 0x20000
    """)
    wof = R.get(72, 4); bt = R.get(4, 2); g = R.get(8, 4)
    def wof_ld(i):
        a(f"""
        s_add_u32 s30, s23, {i}
        s_cmp_ge_u32 s30, 18
        s_cselect_b32 s31, 18, 0
        s_sub_u32 s30, s30, s31
        s_lshl_b32 s{40+i}, s30, 10
        s_add_u32 s31, s{40+i}, s28
        buffer_load_dwordx4 v[{wof+4*i}:{wof+4*i+3}], v{l16}, s[8:11], s31 offen
        """)
    def btg_ld():
        a(f"""
        v_lshlrev_b32 v{t2}, 12, v{col}
        v_lshl_add_u32 v{t2}, v{rq}, 3, v{t2}
        s_lshl_b32 s29, s26, 16
        s_lshl_b32 s30, s21, 6
        s_add_u32 s29, s29, s30
        s_add_u32 s29, s29, {WS_BT}
        buffer_load_dwordx2 v[{bt}:{bt+1}], v{t2}, s[8:11], s29 offen
        buffer_load_dwordx2 v[{bt+2}:{bt+3}], v{t2}, s[8:11], s29 offen offset:32
        v_lshlrev_b32 v{t3}, 4, v{rq}
        s_lshl_b32 s30, s21, 7
        s_add_u32 s30, s30, {WS_G}
        buffer_load_dwordx4 v[{g}:{g+3}], v{t3}, s[8:11], s30 offen
        buffer_load_dwordx4 v[{g+4}:{g+7}], v{t3}, s[8:11], s30 offen offset:64
        """)
    if PREF:
        a(f"""
        s_lshr_b32 s62, s2, 3
        s_and_b32 s63, s2, 7
        v_lshrrev_b32 v{t0}, 5, v{lane}
        v_lshlrev_b32 v{t0}, 12, v{t0}
        v_and_b32 v{t2}, 31, v{lane}
        v_lshl_add_u32 v{t0}, v{t2}, 4, v{t0}
        s_mul_i32 s64, s62, 18
        s_lshl_b32 s65, s20, 1
        s_add_u32 s64, s64, s65
        s_lshl_b32 s64, s64, 12
        s_lshl_b32 s65, s63, 9
        s_add_u32 s64, s64, s65
        s_mul_i32 s66, s62, 1536
        s_lshl_b32 s65, s20, 10
        s_add_u32 s66, s66, s65
        s_add_u32 s66, s66, {WS_KVS}
        s_cmp_ge_u32 s20, 2
        s_cselect_b32 s66, 0x7f000000, s66
        s_mul_i32 s67, s62, 20736
        s_add_u32 s67, s67, s65
        s_add_u32 s67, s67, {WS_WOF}
        """)
        d = wof + 56
        a.raw(f"buffer_load_dwordx4 v[{d}:{d+3}], v{t0}, s[8:11], s64 offen")
        a.raw(f"buffer_load_dwordx4 v[{d+4}:{d+7}], v{l16}, s[8:11], s66 offen")
        def pref2():
            a.raw(f"buffer_load_dwordx4 v[{d+8}:{d+11}], v{l16}, s[8:11], s67 offen")
            a.raw("s_add_u32 s67, s67, 9216")
            a.raw(f"buffer_load_dwordx4 v[{d+12}:{d+15}], v{l16}, s[8:11], s67 offen")
            a.raw("s_add_u32 s67, s67, 9216")
            a.raw("s_cmp_ge_u32 s20, 3")
            a.raw("s_cselect_b32 s67, 0x7f000000, s67")
            a.raw(f"buffer_load_dwordx4 v[{d}:{d+3}], v{l16}, s[8:11], s67 offen")
            a.raw(f"s_add_u32 s64, s64, {WS_BT}")
            a.raw(f"buffer_load_dwordx4 v[{d+4}:{d+7}], v{t0}, s[8:11], s64 offen")
        pref2()
    a("s_cmp_eq_u32 s20, 8")
    snap8 = a.branch("s_cbranch_scc1 K2_w8")
    kv = R.get(24, 4)
    for i in range(6):
        if i == 4: a("s_add_u32 s24, s24, 4096")
        a(f"buffer_load_dwordx4 v[{kv+4*i}:{kv+4*i+3}], v{l16}, s[8:11], s24 offen offset:{(i%4)*1024}")
    for i in range(5):
        a(f"""
        s_add_u32 s29, s25, {WS_PQT + i*65536}
        s_add_u32 m0, s27, {K2_PQ + i*1024}
        buffer_load_dwordx4 v{t1}, s[8:11], s29 offen lds
        """)
    if EARLYBAR: a("s_barrier")
    z4 = R.get(4, 4); ka = R.get(6)
    for j in range(4): a(f"v_mov_b32 v{z4+j}, 0")
    a(f"""
    s_mul_i32 s34, s20, 3840
    s_add_u32 s34, s34, {K2_KV}
    v_add_u32 v{t0}, s34, v{l16}
    ds_write_b128 v{t0}, v[{z4}:{z4+3}]
    ds_write_b128 v{t0}, v[{z4}:{z4+3}] offset:1024
    ds_write_b128 v{t0}, v[{z4}:{z4+3}] offset:2048
    s_mov_b32 exec_hi, 0xffff
    ds_write_b128 v{t0}, v[{z4}:{z4+3}] offset:3072
    s_mov_b64 exec, -1
    s_mov_b32 s31, 13108
    s_mov_b32 s32, 3450
    """)
    R.put(z4, 4)
    for i in range(6):
        a(f"""
        v_add_u32 v{t0}, {64*i}, v{lane}
        v_mul_lo_u32 v{t2}, v{t0}, s31
        v_lshrrev_b32 v{t2}, 16, v{t2}
        v_mul_lo_u32 v{t3}, v{t2}, s32
        v_lshrrev_b32 v{t3}, 16, v{t3}
        v_add_u32 v{t3}, v{t3}, v{t2}
        v_mul_u32_u24 v{t3}, 48, v{t3}
        v_mul_u32_u24 v{t2}, 40, v{t2}
        v_lshlrev_b32 v{t0}, 3, v{t0}
        v_sub_u32 v{t0}, v{t0}, v{t2}
        v_add3_u32 v{ka+i}, v{t0}, v{t3}, s34
        """)
    a(f"""
    v_lshrrev_b32 v{t0}, 2, v{lane}
    v_and_b32 v{t0}, 3, v{t0}
    v_min_u32 v{t2}, 2, v{rq}
    v_lshl_add_u32 v{t0}, v{t2}, 3, v{t0}
    v_lshlrev_b32 v{t0}, 6, v{t0}
    v_and_b32 v{t2}, 3, v{lane}
    v_lshl_add_u32 v{t0}, v{t2}, 3, v{t0}
    v_add_u32 v{aB}, s27, v{t0}
    v_mul_u32_u24 v{t0}, 48, v{col}
    v_lshl_add_u32 v{t0}, v{rq}, 4, v{t0}
    v_mov_b32 v{t2}, {19*48}
    v_cmp_gt_u32 vcc, 3, v{rq}
    v_cndmask_b32 v{t0}, v{t2}, v{t0}, vcc
    v_add_u32 v{aM}, s34, v{t0}
    """)
    jq = aO; rr = aL
    a(f"v_and_b32 v{jq}, 3, v{col}"); a(f"v_lshrrev_b32 v{rr}, 2, v{col}")
    for p, aX in ((0, aX0), (1, aX1)):
        a(f"""
        v_mov_b32 v{t0}, 19
        v_cmp_eq_u32 vcc, {p}, v{jq}
        v_cndmask_b32 v{t0}, v{t0}, 18, vcc
        v_and_b32 v{t2}, 1, v{rr}
        v_add_u32 v{t2}, 16, v{t2}
        v_lshrrev_b32 v{t3}, 1, v{rr}
        v_lshlrev_b32 v{t3}, 2, v{t3}
        v_add_u32 v{t3}, v{t3}, v{jq}
        v_cmp_eq_u32 vcc, {4*p+2}, v{t3}
        v_cndmask_b32 v{t0}, v{t0}, v{t2}, vcc
        v_cmp_gt_u32 vcc, 3, v{rq}
        v_cndmask_b32 v{t0}, 19, v{t0}, vcc
        v_mul_u32_u24 v{t0}, 48, v{t0}
        v_min_u32 v{t2}, 2, v{rq}
        v_lshl_add_u32 v{t0}, v{t2}, 4, v{t0}
        v_add_u32 v{aX}, s34, v{t0}
        """)
    a(f"""
    v_cmp_lt_u32 s[36:37], 1, v{rq}
    s_lshl_b32 s38, s20, 11
    s_add_u32 s38, s38, {K2_OF}
    v_add_u32 v{aO}, s38, v{l16}
    s_lshr_b32 s38, s20, 2
    s_lshl_b32 s38, s38, 10
    s_and_b32 s39, s20, 3
    s_lshl_b32 s39, s39, 2
    s_add_u32 s38, s38, s39
    s_add_u32 s38, s38, {K2_OF + 16*1024}
    v_add_u32 v{aL}, s38, v{l16}
    """)
    stamp(a, 1)
    for i in range(6):
        a(f"v_cvt_pk_bf16_f32 v{kv+4*i}, v{kv+4*i}, v{kv+4*i+1}")
        a(f"v_cvt_pk_bf16_f32 v{kv+4*i+1}, v{kv+4*i+2}, v{kv+4*i+3}")
        if i == 5: a("s_mov_b32 exec_hi, 0x0fffffff")
        a(f"ds_write_b64 v{ka+i}, v[{kv+4*i}:{kv+4*i+1}]")
    a("s_mov_b64 exec, -1")
    R.put(kv, 24); R.put(ka, 6)
    stamp(a, 2)
    FA = R.get(16, 4); FB = R.get(16, 4); M = R.get(24, 4)
    def ldA(p):
        for hh in range(2):
            h = 2*p + hh
            a(f"ds_read_b128 v[{FA+8*hh}:{FA+8*hh+3}], v{aM} offset:{h*960}")
            a(f"ds_read_b128 v[{FA+8*hh+4}:{FA+8*hh+7}], v{aX0 if hh == 0 else aX1} offset:{h*960}")
    def ldB(p):
        for mt in range(2):
            for hh in range(2):
                h = 2*p + hh; b = FB + 8*mt + 4*hh
                a(f"ds_read_b64_tr_b16 v[{b}:{b+1}], v{aB} offset:{h*1152 + 32*mt}")
                a(f"ds_read_b64_tr_b16 v[{b+2}:{b+3}], v{aB} offset:{h*1152 + 256 + 32*mt}")
    ldA(0)
    N0 = 0 if WL else 4
    for i in range(N0): wof_ld(i)
    a.wait(vm=N0)
    stamp(a, 3)
    ldB(0)
    wi = N0
    for p in range(2):
        for mt in range(2):
            m = M + 12*mt; b = FB + 8*mt
            a(f"""
            v_mfma_f32_16x16x32_bf16 v[{m+8}:{m+11}], v[{FA+4}:{FA+7}], v[{b}:{b+3}], 0
            v_mfma_f32_16x16x32_bf16 v[{m}:{m+3}], v[{FA}:{FA+3}], v[{b}:{b+3}], 0
            v_mfma_f32_16x16x32_bf16 v[{m+8}:{m+11}], v[{FA+12}:{FA+15}], v[{b+4}:{b+7}], v[{m+8}:{m+11}]
            v_mfma_f32_16x16x32_bf16 v[{m+4}:{m+7}], v[{FA+8}:{FA+11}], v[{b+4}:{b+7}], 0
            """)
        if p == 0:
            ldA(1); ldB(1)
        for _ in range(0 if (WL and p == 0) else 3): wof_ld(wi); wi += 1
        for mt in range(2):
            m = M + 12*mt
            a(f"""
            v_add_f32 v{r0}, 0x358637bd, v{m+8}
            v_add_f32 v{r1}, 0x358637bd, v{m+9}
            v_rcp_f32 v{r0}, v{r0}
            v_rcp_f32 v{r1}, v{r1}
            v_pk_mul_f32 v[{m}:{m+1}], v[{m}:{m+1}], v[{r0}:{r0+1}] op_sel_hi:[1,0]
            v_pk_mul_f32 v[{m+2}:{m+3}], v[{m+2}:{m+3}], v[{r0}:{r0+1}] op_sel_hi:[1,0]
            v_pk_mul_f32 v[{m+4}:{m+5}], v[{m+4}:{m+5}], v[{r1}:{r1+1}] op_sel_hi:[1,0]
            v_pk_mul_f32 v[{m+6}:{m+7}], v[{m+6}:{m+7}], v[{r1}:{r1+1}] op_sel_hi:[1,0]
            v_cndmask_b32 v{r0}, v{r0}, v{r1}, s[36:37]
            v_mul_f32 v{lo+2*mt+p}, v{m+10}, v{r0}
            v_cvt_pk_bf16_f32 v{m+8}, v{m}, v{m+1}
            v_cvt_pk_bf16_f32 v{m+9}, v{m+2}, v{m+3}
            v_cvt_pk_bf16_f32 v{m+10}, v{m+4}, v{m+5}
            v_cvt_pk_bf16_f32 v{m+11}, v{m+6}, v{m+7}
            ds_write_b128 v{aO}, v[{m+8}:{m+11}] offset:{mt*18432 + p*1024}
            """)
            for _ in range(0 if (WL and p == 0) else 2): wof_ld(wi); wi += 1
    a(f"""
    v_cvt_pk_bf16_f32 v{lo}, v{lo}, v{lo+1}
    v_cvt_pk_bf16_f32 v{lo+2}, v{lo+2}, v{lo+3}
    ds_write_b32 v{aL}, v{lo}
    ds_write_b32 v{aL}, v{lo+2} offset:18432
    """)
    wi_bar = wi
    a.wait(lg=0)
    a.nopflush()
    final_q = [set(x) for x in a.vmq]
    a.raw("s_branch K2_phaseB")
    a.restore("K2_w8", snap8)
    if WL:
        a(f"buffer_load_dword v{t0}, v{l16}, s[8:11], s28 offen")
        a.wait(vm=0)
    for i in range(wi_bar): wof_ld(i)
    a.nopflush()
    assert [sorted(x) for x in a.vmq] == [sorted(x) for x in final_q], (len(a.vmq), len(final_q))
    a.raw("K2_phaseB:")
    a("s_barrier")
    btg_ld()
    stamp(a, 4)
    R.put(FA, 16); R.put(FB, 16); R.put(M, 24)
    acc = R.get(8, 4)
    NB = 3
    fa = [R.get(8, 4) for _ in range(NB)]
    ad = [R.get() for _ in range(NB)]
    a(f"v_add_u32 v{t3}, {K2_OF}, v{l16}")
    def ld(i):
        if i >= 18: return
        a(f"v_add_u32 v{ad[i%NB]}, s{40+i}, v{t3}")
        a(f"ds_read_b128 v[{fa[i%NB]}:{fa[i%NB]+3}], v{ad[i%NB]}")
        a(f"ds_read_b128 v[{fa[i%NB]+4}:{fa[i%NB]+7}], v{ad[i%NB]} offset:18432")
    for i in range(NB - 1): ld(i)
    wq = list(range(wi_bar, 18))
    k_off_done = set(range(wi_bar))
    for i in range(18):
        for _ in range(2):
            if wq: wof_ld(wq.pop(0))
        ld(i + NB - 1)
        for mt in range(2):
            c = f"v[{acc+4*mt}:{acc+4*mt+3}]"
            a(f"v_mfma_f32_16x16x32_bf16 {c}, v[{fa[i%NB]+4*mt}:{fa[i%NB]+4*mt+3}], v[{wof+4*i}:{wof+4*i+3}], {c if i else 0}")
    stamp(a, 5)
    bf = R.get(4); o16 = R.get(2)
    a(f"""
    v_lshlrev_b32 v{t0}, 2, v{rq}
    v_mul_u32_u24 v{t0}, 1152, v{t0}
    v_lshl_add_u32 v{t0}, v{col}, 1, v{t0}
    s_mul_i32 s60, s21, {32*1152}
    s_lshl_b32 s61, s26, 5
    s_add_u32 s60, s60, s61
    """)
    for mt in range(2):
        a(f"""
        v_lshlrev_b32 v{bf}, 16, v{bt+2*mt}
        v_and_b32 v{bf+1}, 0xffff0000, v{bt+2*mt}
        v_lshlrev_b32 v{bf+2}, 16, v{bt+2*mt+1}
        v_and_b32 v{bf+3}, 0xffff0000, v{bt+2*mt+1}
        """)
        for j in range(4):
            A = acc + 4*mt + j
            a(f"v_sub_f32 v{A}, v{A}, v{bf+j}")
            a(f"v_fma_f32 v{A}, v{g+4*mt+j}, v{A}, v{bf+j}")
        a(f"""
        v_cvt_pk_bf16_f32 v{o16}, v{acc+4*mt}, v{acc+4*mt+1}
        v_cvt_pk_bf16_f32 v{o16+1}, v{acc+4*mt+2}, v{acc+4*mt+3}
        buffer_store_short v{o16}, v{t0}, s[12:15], s60 offen
        buffer_store_short_d16_hi v{o16}, v{t0}, s[12:15], s60 offen offset:1152
        buffer_store_short v{o16+1}, v{t0}, s[12:15], s60 offen offset:2304
        buffer_store_short_d16_hi v{o16+1}, v{t0}, s[12:15], s60 offen offset:3456
        """)
        if mt == 0:
            a(f"s_add_u32 s60, s60, {16*1152}")
            o16 = R.get(2)
    stamp(a, 6)
    stamp_dump(a, 7, 8, 20, t1, t2)
    a.label("K2_end", flush=False)
    return a, R.high
```

```python
from asmlib import *
from layout import *
import struct, os
def fbits(x): return struct.unpack('<I', struct.pack('<f', x))[0]
LOG2E = fbits(1.4426950408889634)
import numpy as np
_c = 1.0/(2*np.pi); C_HI = np.float32(_c); C_LO = np.float32(_c - float(C_HI))
INV2PI_HI = fbits(float(C_HI)); INV2PI_LO = fbits(float(C_LO))

BUF = 4352
SCR0 = 0
SCR1 = 12 * BUF
U_STRIDE = 4608
C_U = 24 * BUF
C_BOX = C_U + 6 * U_STRIDE
C_FL = C_BOX + 2048
C_TAB = C_FL + 256
C_LDS = C_TAB + 3072
L0 = 639; KR_COPY = 1344
GH_COPY = 928
F_P, F_K, F_A, F_M, F_U = 0, 12, 24, 36, 40
SLEEP = int(os.environ.get("CSLEEP", 2))
GATHER_AT = int(os.environ.get("GATHER_AT", 6))
WAITALL = int(os.environ.get("WAITALL", 1))

def cmul(a, d, x, y, t):
    a(f"v_pk_mul_f32 v[{t}:{t+1}], v[{x}:{x+1}], v[{y}:{y+1}] op_sel:[0,0] op_sel_hi:[0,1]")
    a(f"v_pk_fma_f32 v[{d}:{d+1}], v[{x}:{x+1}], v[{y}:{y+1}], v[{t}:{t+1}] op_sel:[1,1,0] op_sel_hi:[1,0,1] neg_lo:[1,0,0]")

def gen_conv(a, R):
    t3 = R.get()
    lane = R.get(4, 2); col = lane + 1; rq = lane + 2; t2 = lane + 3
    aT = R.get(4, 2); aT2 = aT + 1; aKF = aT + 2; aHF = aT + 3
    t0 = R.get(); t1 = R.get()
    own = R.get(); prt = R.get(); aU = R.get(); aS = R.get(); oadr = R.get()
    fad = R.get(); flv = R.get(); one = R.get()
    BX = R.get(12, 2)
    rd = R.get(); p0 = R.get(); p1 = R.get(); p3 = R.get(); dt = R.get(); dsk = R.get()
    stamp(a, 0)
    a(f"""
    s_setprio 3
    s_load_dwordx16 s[36:51], s[0:1], 32
    s_load_dwordx2 s[4:5], s[0:1], 0
    s_load_dwordx2 s[6:7], s[0:1], 120
    v_and_b32 v{lane}, 63, v0
    s_lshr_b32 s22, s20, 1
    s_and_b32 s23, s20, 1
    s_mul_i32 s24, s21, 6
    s_add_u32 s24, s24, s22
    s_lshl_b32 s25, s24, 8
    s_lshl_b32 s26, s23, 7
    s_add_u32 s27, s25, s26
    s_xor_b32 s26, s26, 128
    s_add_u32 s28, s25, s26
    v_lshlrev_b32 v{p0}, 1, v{lane}
    v_add_u32 v{p1}, s28, v{p0}
    v_add_u32 v{p0}, s27, v{p0}
    s_lshl_b32 s25, s24, 1
    v_mov_b32 v{p3}, s25
    v_and_b32 v{col}, 15, v0
    v_lshrrev_b32 v{rq}, 4, v{lane}
    v_lshlrev_b32 v{fad}, 2, v{lane}
    v_add_u32 v{fad}, {C_FL}, v{fad}
    v_mov_b32 v{one}, 0
    s_mul_i32 s56, s20, {BUF}
    s_mov_b32 m0, s56
    s_xor_b32 s57, s20, 1
    s_and_b32 s60, s20, 14
    s_mul_i32 s60, s60, {BUF}
    s_add_u32 s60, s60, {SCR1}
    s_add_u32 s61, s60, {BUF}
    s_lshl_b32 s62, s23, 6
    s_mul_i32 s64, s22, {U_STRIDE}
    s_add_u32 s64, s64, {C_U + 512}
    """)
    par = R.get(10)
    a(f"global_load_ushort v{dt}, v{p3}, s[48:49]")
    a(f"global_load_ushort v{dsk}, v{p3}, s[50:51]")
    for i in range(6):
        a(f"global_load_ushort v{par+i}, v{p0}, s[{36+2*i}:{37+2*i}]")
    for i in range(4):
        a(f"global_load_ushort v{par+6+i}, v{p1}, s[{40+2*i}:{41+2*i}]")
    R.put(p0); R.put(p1); R.put(p3)
    a(f"""
    s_mov_b32 s8, s4
    s_mov_b32 s9, s5
    s_mov_b32 s10, 2359296
    s_mov_b32 s11, 0x20000
    s_mov_b32 s12, s6
    s_mov_b32 s13, s7
    s_mov_b32 s14, {WS_SIZE}
    s_mov_b32 s15, 0x20000
    """)
    xrow = [R.get(4, 2) for _ in range(8)]
    gad = R.get(); uad = R.get()
    a("s_cmp_lt_u32 s20, 4")
    snG2 = a.branch("s_cbranch_scc1 CV_g2pre")
    a(f"""
    s_sub_u32 s32, s22, 1
    s_sub_u32 s33, s32, s23
    s_sub_u32 s33, s33, 64
    s_lshl_b32 s32, s32, 1
    v_lshl_add_u32 v{t3}, v{lane}, 1, s33
    v_cmp_ge_u32 vcc, s32, v{t3}
    v_mov_b32 v{t0}, 0x3c00
    v_cndmask_b32 v{t2}, 0, v{t0}, vcc
    v_add_u32 v{t3}, 1, v{t3}
    v_cmp_ge_u32 vcc, s32, v{t3}
    v_mov_b32 v{t0}, 0x3c000000
    v_cndmask_b32 v{t3}, 0, v{t0}, vcc
    v_or_b32 v{t2}, v{t2}, v{t3}
    s_lshl_b32 s32, s20, 8
    s_sub_u32 s32, s32, 3072
    v_add_u32 v{t0}, s32, v{fad}
    ds_write_b32 v{t0}, v{t2}
    """)
    pieces = {}
    pieces[0] = f"""
    v_lshrrev_b32 v{t1}, 1, v{rq}
    v_lshlrev_b32 v{t1}, 5, v{t1}
    v_and_b32 v{t2}, 1, v{rq}
    v_lshlrev_b32 v{t2}, 4, v{t2}
    v_sub_u32 v{t3}, v{t2}, v{t1}
    v_lshlrev_b32 v{t1}, 1, v{col}
    v_sub_u32 v{t3}, v{t3}, v{t1}
    v_and_b32 v{t2}, 1, v{col}
    v_cmp_eq_u32 vcc, 0, v{t2}
    v_mov_b32 v{t0}, {KR_COPY + 2}
    v_cndmask_b32 v{t0}, 0, v{t0}, vcc
    v_add_u32 v{t0}, v{t3}, v{t0}
    ds_write_b32 v{fad}, v{one}
    """
    pieces[1] = f"""
    v_lshrrev_b32 v{t1}, 1, v{rq}
    v_lshlrev_b32 v{t1}, 5, v{t1}
    v_and_b32 v{t2}, 1, v{rq}
    v_lshlrev_b32 v{t2}, 4, v{t2}
    v_sub_u32 v{t3}, v{t2}, v{t1}
    v_lshl_add_u32 v{t0}, v{col}, 5, v{t3}
    """
    pieces[2] = f"""
    v_lshlrev_b32 v{t0}, 4, v{rq}
    v_lshlrev_b32 v{t1}, 1, v{col}
    v_sub_u32 v{t0}, v{t0}, v{t1}
    v_and_b32 v{t2}, 1, v{col}
    v_mul_u32_u24 v{t2}, 258, v{t2}
    v_add_u32 v{t0}, v{t0}, v{t2}
    v_add_u32 v{t0}, {C_BOX + 128 - 24}, v{t0}
    """
    pieces[3] = f"""
    v_add_u32 v{t0}, 1, v{col}
    v_and_b32 v{t0}, 3, v{t0}
    v_mul_u32_u24 v{t0}, {GH_COPY + 2}, v{t0}
    v_lshlrev_b32 v{t1}, 1, v{col}
    v_sub_u32 v{t0}, v{t0}, v{t1}
    v_lshl_add_u32 v{t0}, v{rq}, 3, v{t0}
    """
    pieces[4] = f"""
    v_add_u32 v{t1}, 1, v{col}
    v_cmp_eq_u32 vcc, 15, v{col}
    v_cndmask_b32 v{t1}, v{t1}, 32, vcc
    v_add_u32 v{t2}, 16, v{lane}
    v_cmp_eq_u32 vcc, 0, v{rq}
    v_cndmask_b32 v{t1}, v{t1}, v{t2}, vcc
    v_lshlrev_b32 v{t0}, 2, v{t1}
    """
    pieces[5] = f"""
    v_cmp_eq_u32 vcc, 32, v{lane}
    v_lshl_add_u32 v{t1}, v{col}, 1, v{rq}
    v_cndmask_b32 v{t1}, v{t1}, 32, vcc
    v_lshlrev_b32 v{t0}, 4, v{t1}
    """
    pieces[6] = f"""
    v_and_b32 v{t1}, 3, v{col}
    v_mul_u32_u24 v{t1}, 144, v{t1}
    v_lshrrev_b32 v{t2}, 2, v{col}
    v_lshlrev_b32 v{t2}, 5, v{t2}
    v_sub_u32 v{t1}, v{t1}, v{t2}
    v_add_u32 v{t1}, 88, v{t1}
    v_and_b32 v{t2}, 1, v{col}
    v_mul_u32_u24 v{t2}, 176, v{t2}
    v_lshrrev_b32 v{t3}, 1, v{col}
    v_lshlrev_b32 v{t3}, 5, v{t3}
    v_sub_u32 v{t2}, v{t2}, v{t3}
    v_add_u32 v{t2}, {576 + 120 + 128}, v{t2}
    v_cmp_gt_u32 vcc, 8, v{col}
    v_cndmask_b32 v{t1}, v{t2}, v{t1}, vcc
    v_lshlrev_b32 v{t2}, 3, v{rq}
    v_sub_u32 v{t0}, v{t1}, v{t2}
    """
    for i in range(7):
        a(f"s_cmp_lg_u32 s20, {i+4}")
        a.nopflush(); a.raw(f"s_cbranch_scc1 CV_pc{i}")
        a(pieces[i])
        a(f"ds_write_b32 v{fad}, v{t0} offset:{256 + 256*i}")
        a.nopflush(); a.raw("s_branch CV_pre_done")
        a.raw(f"CV_pc{i}:")
    a.raw("s_branch CV_pre_done")
    a.restore("CV_g2pre", snG2)
    a(f"""
    s_mov_b32 s34, s20
    s_add_u32 s32, s20, s17
    s_and_b32 s32, s32, 3
    v_lshl_add_u32 v{gad}, s32, 6, v{lane}
    v_lshlrev_b32 v{uad}, 4, v{gad}
    v_add_u32 v{uad}, {C_U + 512}, v{uad}
    v_mul_u32_u24 v{gad}, 9216, v{gad}
    s_mul_i32 s31, s21, 12
    s_add_u32 s35, s31, 4608
    s_lshr_b32 s33, s17, 2
    """)
    z4 = BX
    a(f"""
    v_mov_b32 v{z4}, 0
    v_mov_b32 v{z4+1}, 0
    v_mov_b32 v{z4+2}, 0
    v_mov_b32 v{z4+3}, 0
    v_lshrrev_b32 v{t0}, 5, v{lane}
    s_min_u32 s32, s34, 2
    s_lshl_b32 s32, s32, 1
    v_add_u32 v{t0}, s32, v{t0}
    v_mul_u32_u24 v{t0}, {U_STRIDE}, v{t0}
    v_and_b32 v{t1}, 31, v{lane}
    v_lshl_add_u32 v{t0}, v{t1}, 4, v{t0}
    v_add_u32 v{t0}, {C_U}, v{t0}
    ds_write_b128 v{t0}, v[{z4}:{z4+3}]
    """)
    a.nopflush()
    a.raw("CV_pre_done:")
    a.last = {}
    a(f"""
    v_mul_u32_u24 v{rd}, 272, v{col}
    v_lshl_add_u32 v{rd}, v{rq}, 4, v{rd}
    v_add_u32 v{rd}, s56, v{rd}
    v_lshlrev_b32 v{t0}, 4, v{lane}
    v_add_u32 v{own}, s56, v{t0}
    s_mul_i32 s58, s57, {BUF}
    v_add_u32 v{prt}, s58, v{t0}
    v_mov_b32 v{one}, 1
    s_lshl_b32 s58, s20, 2
    s_add_u32 s58, s58, {C_FL}
    v_mov_b32 v{oadr}, s58
    """)
    a.wait(lg=0)
    a("s_barrier")
    pollc = [0]
    def poll(mask_sg):
        n = pollc[0]; pollc[0] += 1
        a.nopflush()
        a.raw(f"CV_poll{n}:")
        a.raw(f"ds_read_b32 v{flv}, v{fad}")
        a.raw("s_waitcnt lgkmcnt(0)")
        a.raw(f"v_cmp_eq_u32 vcc, 0, v{flv}")
        a.raw("s_nop 1")
        a.raw(f"s_and_b64 vcc, vcc, s[{mask_sg}:{mask_sg+1}]")
        a.raw(f"s_cbranch_scc0 CV_poll{n}_ok")
        a.raw(f"s_sleep {SLEEP}")
        a.raw(f"s_branch CV_poll{n}")
        a.raw(f"CV_poll{n}_ok:")
        a.lgq = []
    def scale_from_flags():
        a(f"""
        v_readlane_b32 s58, v{flv}, {F_M}
        v_readlane_b32 s59, v{flv}, {F_M+1}
        v_readlane_b32 s68, v{flv}, {F_M+2}
        v_readlane_b32 s69, v{flv}, {F_M+3}
        s_max_u32 s58, s58, s59
        s_max_u32 s68, s68, s69
        s_max_u32 s59, s58, s68
        s_lshr_b32 s59, s59, 23
        s_max_u32 s59, s59, 11
        s_min_u32 s59, s59, 254
        """)
    gcnt = [0]
    def gather1():
        k = gcnt[0]; gcnt[0] += 1
        if k >= 8: return
        a.raw("s_cmp_ge_u32 s20, 4")
        a.raw(f"s_cbranch_scc1 CV_g{k}_d")
        for r in range(3):
            i = (k + 3 * r) & 7
            if r < 2:
                a.raw(f"s_cmp_lg_u32 s33, {r}")
                a.raw(f"s_cbranch_scc1 CV_g{k}_{r}")
            a.raw(f"buffer_load_dwordx3 v[{xrow[i]}:{xrow[i]+2}], v{gad}, s[8:11], {'s31' if i < 4 else 's35'} offen offset:{(i%4)*1152}")
            if r < 2:
                a.raw(f"s_branch CV_g{k}_d")
                a.raw(f"CV_g{k}_{r}:")
        a.raw(f"CV_g{k}_d:")
    NG0 = int(os.environ.get("NG0", 2))
    for _ in range(NG0): gather1()
    a.raw("s_cmp_ge_u32 s20, 4")
    a.raw("s_cbranch_scc1 CV_g12")
    a.raw(f"s_waitcnt vmcnt({NG0})")
    a.raw("s_branch CV_kgen")
    a.raw("CV_g12:")
    a.raw("s_waitcnt vmcnt(0)")
    a.vmq = []
    a.raw("s_setprio 2")
    a.raw("s_cmp_lt_u32 s20, 8")
    a.raw("s_cbranch_scc1 CV_kgen")
    a.raw("s_setprio 1")
    a.raw("CV_kgen:")
    def xstage():
        a("s_cmp_ge_u32 s20, 4")
        snX = a.branch("s_cbranch_scc1 CV_nox")
        a(f"""
        s_mov_b32 s58, 0x7fff7fff
        s_mov_b32 s70, 0
        s_mov_b32 s71, 0xf0
        """)
        a.raw("s_waitcnt vmcnt(0)")
        stamp(a, 3)
        m = R.get(2); lo = R.get(24)
        regs = [xrow[i] + p for p in range(3) for i in range(8)]
        a(f"v_max_f32 v{m}, |v{regs[0]}|, |v{regs[1]}|")
        for i in range(2, 24, 2): a(f"v_max3_f32 v{m}, |v{regs[i]}|, |v{regs[i+1]}|, v{m}")
        for i in range(24): a(f"v_lshlrev_b32 v{lo+i}, 16, v{regs[i]}")
        a(f"v_max_f32 v{m+1}, |v{lo}|, |v{lo+1}|")
        for i in range(2, 24, 2): a(f"v_max3_f32 v{m+1}, |v{lo+i}|, |v{lo+i+1}|, v{m+1}")
        a(f"""
        v_max_u32 v{m}, v{m}, v{m+1}
        v_max_u32_dpp v{m}, v{m}, v{m} row_ror:1 row_mask:0xf bank_mask:0xf
        v_max_u32_dpp v{m}, v{m}, v{m} row_ror:2 row_mask:0xf bank_mask:0xf
        v_max_u32_dpp v{m}, v{m}, v{m} row_ror:4 row_mask:0xf bank_mask:0xf
        v_max_u32_dpp v{m}, v{m}, v{m} row_ror:8 row_mask:0xf bank_mask:0xf
        v_readlane_b32 s58, v{m}, 0
        v_readlane_b32 s59, v{m}, 16
        v_readlane_b32 s68, v{m}, 32
        v_readlane_b32 s69, v{m}, 48
        s_max_u32 s58, s58, s59
        s_max_u32 s68, s68, s69
        s_max_u32 s58, s58, s68
        s_or_b32 s58, s58, 1
        v_mov_b32 v{m}, s58
        ds_write_b32 v{oadr}, v{m} offset:{4*F_M}
        """)
        R.put(m, 2)
        poll(70)
        scale_from_flags()
        a("s_sub_u32 s58, 264, s59")
        a("s_lshl_b32 s58, s58, 23")
        f = R.get(8); o2 = R.get(8, 2)
        for c in range(6):
            p = c >> 1; o = o2 + 4 * (c & 1)
            if c & 1:
                for i in range(8): a(f"v_and_b32 v{f+i}, 0xffff0000, v{xrow[i]+p}")
                src = f
            else: src = lo + 8 * p
            for i in range(4): a(f"v_fma_mixlo_f16 v{o+i}, v{src+2*i}, s58, 0")
            for i in range(4): a(f"v_fma_mixhi_f16 v{o+i}, v{src+2*i+1}, s58, 0")
            a(f"ds_write_b128 v{uad}, v[{o}:{o+3}] offset:{c*U_STRIDE}")
        a(f"ds_write_b32 v{oadr}, v{one} offset:{4*F_U}")
        R.put(f, 8); R.put(o2, 8); R.put(lo, 24)
        stamp(a, 4)
        a.nopflush()
        a.raw("CV_nox:")
        a.last = {}
        for x in xrow: R.put(x, 4)
        R.put(gad); R.put(uad)
    a(f"""
    v_lshlrev_b32 v{dt}, 16, v{dt}
    v_mul_f32 v{dt}, {LOG2E}, v{dt}
    v_exp_f32 v{dt}, v{dt}
    v_lshlrev_b32 v{dsk}, 16, v{dsk}
    v_cvt_pk_bf16_f32 v{dt}, v{dt}, v{dt}
    v_readfirstlane_b32 s30, v{dsk}
    v_lshlrev_b32 v{dt}, 16, v{dt}
    """)
    R.put(dsk)
    pp = R.get(8, 2)
    stamp(a, 1)
    for i in range(8): a(f"v_lshlrev_b32 v{pp+i}, 16, v{par+2+i}")
    are = R.get(); aim = R.get()
    W = R.get(2); W2 = R.get(2); tp = R.get(2)
    a(f"""
    v_lshlrev_b32 v{are}, 16, v{par}
    v_lshlrev_b32 v{aim}, 16, v{par+1}
    v_mul_f32 v{are}, v{dt}, v{are}
    v_mul_f32 v{aim}, v{dt}, v{aim}
    v_mul_f32 v{are}, {LOG2E}, v{are}
    """)
    cmul(a, W, pp+2, pp, tp)
    cmul(a, W2, pp+6, pp+4, tp)
    a(f"""
    v_max_f32 v{t0}, |v{W}|, |v{W+1}|
    v_max3_f32 v{t0}, |v{W2}|, |v{W2+1}|, v{t0}
    v_mul_f32 v{t0}, v{dt}, v{t0}
    s_mov_b32 s54, {INV2PI_HI}
    s_mov_b32 s55, {INV2PI_LO}
    v_max_u32_dpp v{t0}, v{t0}, v{t0} row_ror:1 row_mask:0xf bank_mask:0xf
    v_max_u32_dpp v{t0}, v{t0}, v{t0} row_ror:2 row_mask:0xf bank_mask:0xf
    v_max_u32_dpp v{t0}, v{t0}, v{t0} row_ror:4 row_mask:0xf bank_mask:0xf
    v_max_u32_dpp v{t0}, v{t0}, v{t0} row_ror:8 row_mask:0xf bank_mask:0xf
    v_readlane_b32 s52, v{t0}, 0
    v_readlane_b32 s53, v{t0}, 16
    v_readlane_b32 s68, v{t0}, 32
    v_readlane_b32 s69, v{t0}, 48
    s_max_u32 s52, s52, s53
    s_max_u32 s68, s68, s69
    s_max_u32 s52, s52, s68
    s_lshr_b32 s52, s52, 23
    s_add_u32 s52, s52, 8
    s_bfe_u32 s53, s30, 0x80017
    s_max_u32 s52, s52, s53
    s_max_u32 s52, s52, 14
    s_min_u32 s52, s52, 262
    s_sub_u32 s53, 267, s52
    s_lshl_b32 s53, s53, 23
    """)
    R.put(par, 10); R.put(W2, 2); R.put(pp, 8)
    Y0 = R.get(2); Y1 = R.get(2)
    Yk = {0: Y0}
    Yh = {h: R.get() for h in (0, 2, 4, 6, 8, 10, 12, 14, 16)}
    E = {}
    e3 = R.get()
    for p in (1, 16, 256):
        e = R.get(2); E[p] = e
        if p == 1:
            a(f"v_exp_f32 v{t0}, v{are}"); th = aim
        else:
            a(f"v_mul_f32 v{t0}, {fbits(float(p))}, v{are}")
            a(f"v_mul_f32 v{t1}, {fbits(float(p))}, v{aim}")
            a(f"v_exp_f32 v{t0}, v{t0}"); th = t1
        a(f"""
        v_mul_f32 v{t2}, s54, v{th}
        v_fma_f32 v{e3}, v{th}, s54, -v{t2}
        v_fma_f32 v{e3}, v{th}, s55, v{e3}
        v_fract_f32 v{t2}, v{t2}
        v_add_f32 v{t2}, v{t2}, v{e3}
        v_cos_f32 v{e}, v{t2}
        v_sin_f32 v{e+1}, v{t2}
        v_mul_f32 v{e}, v{e}, v{t0}
        v_mul_f32 v{e+1}, v{e+1}, v{t0}
        """)
    a(f"""
    v_mul_f32 v{W}, v{dt}, v{W}
    v_mul_f32 v{W+1}, v{dt}, v{W+1}
    v_mul_f32 v{Yk[0]}, s53, v{W}
    v_mul_f32 v{Yk[0]+1}, s53, v{W+1}
    """)
    R.put(W, 2); R.put(are); R.put(aim); R.put(dt); R.put(e3)
    gather1()
    pk = [R.get() for _ in range(4)]; pki = [0]
    def put_row(buf, row, x, neg, keep=None):
        if keep is None:
            p = pk[pki[0] % 4]; pki[0] += 1
        else: p = keep
        a(f"v_cvt_pk_f16_f32 v{p}, v{x}, {'-' if neg else ''}v{x+1}")
        if row is not None: a(f"ds_write_addtid_b32 v{p} offset:{buf*SCR1 + row*272}")
    def get_frags(buf, dst):
        for ks in range(4):
            a(f"ds_read_b128 v[{dst+4*ks}:{dst+4*ks+3}], v{rd} offset:{buf*SCR1 + ks*64}")
    Z = [R.get(2), R.get(2)]
    Pf = [R.get(2), R.get(2)]
    Ph = {i: R.get() for i in range(1, 8)}
    tq = R.get(2)
    a(f"v_mov_b32 v{pk[3]}, 0x3c00")
    a(f"ds_write_addtid_b32 v{pk[3]} offset:0")
    put_row(0, 1, E[16], False)
    put_row(1, 0, Y0, True, keep=Yh[0])
    put_row(0, None, E[256], True, keep=Ph[1])
    zprev = E[16]; yprev = Y0; pprev = E[256]
    for h in range(1, 17):
        yd = Y1 if h % 2 else Y0
        cmul(a, yd, yprev, E[1], tp)
        if h + 1 <= 15:
            zd = Z[h % 2]
            cmul(a, zd, zprev, E[16], tq)
        if 1 <= h <= 6:
            pd = Pf[h % 2]
            cmul(a, pd, pprev, E[256], pd)
        put_row(1, h if h <= 15 else None, yd, True, keep=Yh.get(h))
        if h + 1 <= 15:
            put_row(0, h + 1, zd, False); zprev = zd
        if 1 <= h <= 6:
            put_row(0, None, pd, True, keep=Ph[h+1]); pprev = pd
        yprev = yd
        if h in (1, 5, 9, 13): gather1()
    for x in (Z[0], Z[1], E[1], E[16], E[256], Pf[0], Pf[1], Y0, Y1, tq): R.put(x, 2)
    ZF = R.get(16, 2); AF = R.get(16, 2)
    D = R.get(12, 2)
    get_frags(0, ZF)
    get_frags(1, AF)
    def prod_row(buf, row, y, p):
        d = pk[pki[0] % 4]; pki[0] += 1
        a(f"v_pk_mul_f16 v{d}, v{y}, v{p} op_sel:[0,0] op_sel_hi:[0,1]")
        a(f"v_pk_fma_f16 v{d}, v{y}, v{p}, v{d} op_sel:[1,1,0] op_sel_hi:[1,0,1] neg_lo:[1,0,0]")
        a(f"ds_write_addtid_b32 v{d} offset:{buf*SCR1 + row*272}")
    for h in range(8): prod_row(0, h, Yh[2*h], Ph[1])
    prod_row(0, 8, Yh[0], Ph[2]); prod_row(0, 9, Yh[0], Ph[4])
    gather1()
    for ks in range(4):
        a(f"v_mfma_f32_16x16x32_f16 v[{D}:{D+3}], v[{AF+4*ks}:{AF+4*ks+3}], v[{ZF+4*ks}:{ZF+4*ks+3}], {f'v[{D}:{D+3}]' if ks else 0}")
    get_frags(0, AF)
    for i in range(2):
        for mu in range(1, 5): prod_row(1, 4*i + mu - 1, Yh[4*mu], Ph[2+i])
    for ks in range(4):
        a(f"v_mfma_f32_16x16x32_f16 v[{D+4}:{D+7}], v[{AF+4*ks}:{AF+4*ks+3}], v[{ZF+4*ks}:{ZF+4*ks+3}], {f'v[{D+4}:{D+7}]' if ks else 0}")
    for i in range(4):
        for mu in (1, 2): prod_row(1, 8 + 2*i + mu - 1, Yh[8*mu], Ph[4+i])
    get_frags(1, AF)
    for h in Yh.values(): R.put(h)
    for i in Ph.values(): R.put(i)
    Z4 = R.get(4, 2)
    TB = R.get(7)
    for j in range(4): a(f"v_mov_b32 v{Z4+j}, 0")
    for i in range(4):
        a(f"ds_write_b128 v{own}, v[{Z4}:{Z4+3}] offset:{SCR1 + i*1024}")
    a(f"ds_write_addtid_b32 v{Z4} offset:{SCR1 + 4096}")
    a(f"ds_write_b128 v{own}, v[{D}:{D+3}]")
    a(f"ds_write_b128 v{own}, v[{D+4}:{D+7}] offset:1024")
    for ks in range(4):
        a(f"v_mfma_f32_16x16x32_f16 v[{D+8}:{D+11}], v[{ZF+4*ks}:{ZF+4*ks+3}], v[{AF+4*ks}:{AF+4*ks+3}], {f'v[{D+8}:{D+11}]' if ks else 0}")
    for i in range(7): a(f"ds_read_b32 v{TB+i}, v{fad} offset:{256 + 256*i}")
    R.put(ZF, 16); R.put(AF, 16); R.put(Z4, 4)
    kA = R.get(); kB = R.get(); kC = R.get(); aB2 = R.get()
    a(f"""
    s_lshl_b64 s[66:67], 1, s57
    s_sub_u32 s63, s60, s62
    s_add_u32 s63, s63, {2*L0 - 9*128}
    s_sub_u32 s65, s64, s62
    s_sub_u32 s65, s65, 384
    s_lshl_b32 s58, s23, 10
    v_add_u32 v{t2}, s58, v{prt}
    ds_write_b128 v{own}, v[{D+8}:{D+11}] offset:2048
    ds_write_b32 v{oadr}, v{one} offset:{4*F_P}
    v_add_u32 v{aT}, s63, v{TB}
    v_add_u32 v{aT2}, 640, v{aT}
    v_add_u32 v{aU}, s65, v{TB+1}
    s_lshl_b32 s65, s23, 9
    s_add_u32 s65, s65, {1024 + 8}
    v_add_u32 v{aB2}, s65, v{TB+2}
    s_mul_i32 s65, s23, 288
    s_add_u32 s65, s65, s61
    v_add_u32 v{aKF}, s65, v{TB+3}
    s_mul_i32 s65, s23, 176
    s_add_u32 s65, s65, s61
    v_add_u32 v{aHF}, s65, v{TB+3}
    v_lshlrev_b32 v{t3}, 5, v{col}
    v_lshl_add_u32 v{aS}, v{rq}, 4, v{t3}
    s_lshl_b32 s65, s23, 4
    s_sub_u32 s65, s64, s65
    s_sub_u32 s65, s65, 32
    v_add_u32 v{aS}, s65, v{aS}
    v_lshl_add_u32 v{t3}, v{rq}, 3, v{t3}
    """)
    def rd16(dst, base, byteoff):
        o = byteoff // 4
        a(f"ds_read2_b32 v[{dst}:{dst+1}], v{base} offset0:{o} offset1:{o+1}")
        a(f"ds_read2_b32 v[{dst+2}:{dst+3}], v{base} offset0:{o+2} offset1:{o+3}")
    rd16(BX, TB+2, 0); rd16(BX+4, TB+2, 520); rd16(BX+8, aB2, 0)
    R.put(aB2)
    stamp(a, 2)
    while gcnt[0] < 8: gather1()
    poll(66)
    PD = R.get(8, 2)
    a(f"ds_read_b128 v[{PD}:{PD+3}], v{t2}")
    a(f"ds_read_b128 v[{PD+4}:{PD+7}], v{t2} offset:1024")
    q = R.get(8, 2)
    a("s_cmp_eq_u32 s23, 1")
    snapK = a.branch("s_cbranch_scc1 CV_kfin1")
    a(f"""
    v_sub_u32 v{kA}, s60, v{t3}
    v_mov_b32 v{t1}, s30
    v_mul_f32 v{t1}, s53, v{t1}
    v_cmp_eq_u32 vcc, 0, v{lane}
    v_cndmask_b32 v{t1}, 0, v{t1}, vcc
    v_add_f32 v{D}, v{D}, v{t1}
    v_pk_add_f32 v[{D}:{D+1}], v[{D}:{D+1}], v[{PD}:{PD+1}]
    v_pk_add_f32 v[{D+2}:{D+3}], v[{D+2}:{D+3}], v[{PD+2}:{PD+3}]
    v_cvt_pk_f16_f32 v{q}, v{D+3}, v{D+2}
    v_cvt_pk_f16_f32 v{q+1}, v{D+1}, v{D}
    v_cvt_pk_f16_f32 v{q+2}, v{D+2}, v{D+1}
    ds_write_b64 v{kA}, v[{q}:{q+1}] offset:{2*(L0-3)}
    ds_write_b16 v{kA}, v{q} offset:{KR_COPY + 2*(L0-3) + 2}
    ds_write_b32 v{kA}, v{q+2} offset:{KR_COPY + 2*(L0-3) + 4}
    ds_write_b16_d16_hi v{kA}, v{q+1} offset:{KR_COPY + 2*(L0-3) + 8}
    """)
    a.nopflush()
    a.raw("s_branch CV_kfin_done")
    a.restore("CV_kfin1", snapK)
    a(f"""
    v_sub_u32 v{kB}, s60, v{TB+5}
    v_add_u32 v{kC}, s61, v{TB+6}
    v_cmp_eq_u32 s[68:69], 32, v{lane}
    """)
    for j in range(0, 8, 2): a(f"v_pk_add_f32 v[{D+4+j}:{D+5+j}], v[{D+4+j}:{D+5+j}], v[{PD+j}:{PD+j+1}]")
    c0, c2, c4, c6 = D+4, D+5, D+6, D+7
    c8 = PD
    T2 = D + 8
    a(f"""
    ds_bpermute_b32 v{c8}, v{TB+4}, v{c0}
    v_cvt_pk_f16_f32 v{q}, v{T2+3}, v{T2+2}
    v_cvt_pk_f16_f32 v{q+1}, v{T2+1}, v{T2}
    v_cvt_pk_f16_f32 v{q+2}, v{T2+2}, v{T2+1}
    ds_write_b64 v{kC}, v[{q}:{q+1}]
    ds_write_b16 v{kC}, v{q} offset:{GH_COPY + 2}
    ds_write_b32 v{kC}, v{q+2} offset:{GH_COPY + 4}
    ds_write_b16_d16_hi v{kC}, v{q+1} offset:{GH_COPY + 8}
    ds_write_b32 v{kC}, v{q} offset:{2*GH_COPY + 4}
    ds_write_b32 v{kC}, v{q+1} offset:{2*GH_COPY + 8}
    ds_write_b16 v{kC}, v{q} offset:{3*GH_COPY + 6}
    ds_write_b32 v{kC}, v{q+2} offset:{3*GH_COPY + 8}
    ds_write_b16_d16_hi v{kC}, v{q+1} offset:{3*GH_COPY + 12}
    v_cvt_pk_f16_f32 v{q+7}, v{c2}, v{c2}
    v_cndmask_b32 v{c2}, v{c2}, v{c0}, s[68:69]
    v_cndmask_b32 v{c4}, v{c4}, 0, s[68:69]
    v_cndmask_b32 v{c6}, v{c6}, 0, s[68:69]
    v_cndmask_b32 v{c8}, v{c8}, 0, s[68:69]
    v_cvt_pk_f16_f32 v{T2}, v{c8}, v{c6}
    v_cvt_pk_f16_f32 v{T2+1}, v{c4}, v{c4}
    v_cvt_pk_f16_f32 v{T2+2}, v{c4}, v{c2}
    v_cvt_pk_f16_f32 v{T2+3}, v{c0}, v{c0}
    v_mov_b32 v{q+4}, v{T2+1}
    v_cvt_pk_f16_f32 v{q+5}, v{c2}, v{c0}
    v_cvt_pk_f16_f32 v{q+6}, v{c6}, v{c4}
    v_mov_b32 v{t2}, s60
    s_mov_b32 exec_hi, 1
    ds_write_b128 v{kB}, v[{T2}:{T2+3}] offset:{2*(L0-256-7)}
    ds_write_b16 v{kB}, v{T2} offset:{KR_COPY + 2*(L0-256-7) + 2}
    ds_write_b32 v{kB}, v{q+6} offset:{KR_COPY + 2*(L0-256-7) + 4}
    ds_write_b64 v{kB}, v[{q+4}:{q+5}] offset:{KR_COPY + 2*(L0-256-7) + 8}
    ds_write_b16 v{kB}, v{T2+3} offset:{KR_COPY + 2*(L0-256-7) + 16}
    s_mov_b32 exec_lo, 0
    ds_write_b16 v{t2}, v{q+7} offset:{2*(L0-580)}
    ds_write_b16 v{t2}, v{q+7} offset:{2*(L0-579)}
    ds_write_b32 v{t2}, v{q+7} offset:{KR_COPY + 2*(L0-580) + 2}
    s_mov_b64 exec, -1
    """)
    a.nopflush()
    a.raw("CV_kfin_done:")
    a.last = {}
    a(f"""
    ds_write_b32 v{oadr}, v{one} offset:{4*F_K}
    s_lshl_b64 s[66:67], s[66:67], {F_K}
    """)
    R.put(q, 8); R.put(D, 12); R.put(PD, 8); R.put(TB, 7)
    for p in pk: R.put(p)
    R.put(rd); R.put(tp, 2); R.put(kA); R.put(kB); R.put(kC)
    xstage()
    poll(66)
    TK = R.get(40, 2); KF = R.get(12, 2); HF = R.get(10, 2)
    acc = R.get(32, 2)
    NU = 6
    UF = [R.get(4, 2) for _ in range(4)] + [aT, lane]
    US = R.get(4, 2)
    S1 = R.get(12, 2)
    W2f = R.get(4, 2); W3f = R.get(4, 2)
    gam = list(range(-3, 29))
    def ldU(i):
        if i < len(gam):
            a(f"ds_read_b128 v[{UF[i%NU]}:{UF[i%NU]+3}], v{aU} offset:{(gam[i]+3)*128}")
    for sg in range(10):
        o = (9 - sg) * 32; base = aT
        if o >= 160: base = aT2; o -= 160
        a(f"ds_read2_b32 v[{TK+4*sg}:{TK+4*sg+1}], v{base} offset0:{o} offset1:{o+1}")
        a(f"ds_read2_b32 v[{TK+4*sg+2}:{TK+4*sg+3}], v{base} offset0:{o+2} offset1:{o+3}")
    for ai, aa in enumerate((2, 3, 4)):
        a(f"ds_read_b64 v[{KF+4*ai}:{KF+4*ai+1}], v{aKF} offset:{2*(79 - 16*aa)}")
        a(f"ds_read_b64 v[{KF+4*ai+2}:{KF+4*ai+3}], v{aKF} offset:{144 + 2*(79 - 16*aa)}")
    for aa in (7, 6, 5, 4):
        a(f"ds_read_b64 v[{HF+2*(7-aa)}:{HF+2*(7-aa)+1}], v{aHF} offset:{576 + 2*(127 - 16*aa)}")
    a(f"v_mov_b32 v{HF+8}, 0"); a(f"v_mov_b32 v{HF+9}, 0")
    a(f"s_mov_b32 s66, {0xfff if WAITALL else 0}")
    a("s_mov_b32 s67, 0xf00")
    poll(66)
    stamp(a, 5)
    if os.environ.get("MPRIO"): a(f"s_setprio {os.environ['MPRIO']}")
    a(f"ds_read_b128 v[{US}:{US+3}], v{aS}")
    for i in range(NU - 1): ldU(i)
    scale_from_flags()
    a(f"""
    s_add_u32 s59, s59, s52
    s_sub_u32 s59, s59, 277
    s_lshl_b64 s[66:67], 1, s57
    s_lshl_b64 s[66:67], s[66:67], {F_A}
    """)
    fillers = []
    inited = set()
    def fill(n):
        for _ in range(n):
            if fillers: a(fillers.pop(0))
    def mm(J, A, B, nf=1):
        c = f"v[{acc+4*J}:{acc+4*J+3}]"
        a(f"v_mfma_f32_16x16x32_f16 {c}, v[{A}:{A+3}], v[{B}:{B+3}], {c if J in inited else 0}")
        inited.add(J)
        fill(nf)
    def direct(i, nf=1):
        g = gam[i]
        ldU(i + NU - 1)
        for J in range(8):
            sg = 4*J - g
            if 0 <= sg <= 8: mm(J, TK + 4*sg, UF[i % NU], nf)
            if sg == 16: mm(J, TK + 36, UF[i % NU], nf)
    di = 0
    for b in range(6):
        nf0 = 4 if b == 0 else 1
        a(f"v_mfma_f32_16x16x32_f16 v[{S1}:{S1+3}], v[{US}:{US+3}], v[{BX}:{BX+3}], 0"); fill(nf0)
        a(f"v_mfma_f32_16x16x32_f16 v[{S1+4}:{S1+7}], v[{US}:{US+3}], v[{BX+4}:{BX+7}], 0"); fill(nf0)
        if b < 4:
            a(f"v_mfma_f32_16x16x32_f16 v[{S1+8}:{S1+11}], v[{US}:{US+3}], v[{BX+8}:{BX+11}], 0"); fill(nf0)
        if b < 5: a(f"ds_read_b128 v[{US}:{US+3}], v{aS} offset:{512*(b+1)}")
        for _ in range(2): direct(di, 3 if b == 0 else 1); di += 1
        fill(len(fillers))
        cv = [f"v_cvt_pk_f16_f32 v{W2f+j}, v{S1+2*j}, v{S1+2*j+1}" for j in range(4)]
        if b < 4:
            cv += [f"v_cvt_pk_f16_f32 v{W3f+2*(b&1)}, v{S1+8}, v{S1+9}", f"v_cvt_pk_f16_f32 v{W3f+2*(b&1)+1}, v{S1+10}, v{S1+11}"]
        fillers.extend(cv)
        for _ in range(3): direct(di); di += 1
        fill(len(fillers))
        for ai, aa in enumerate((2, 3, 4)):
            if b + aa <= 7: mm(b + aa, W2f, KF + 4*ai)
        if b in (1, 3):
            Bq = b >> 1
            for aa in (4, 5, 6, 7):
                if aa + 2*Bq <= 7: mm(aa + 2*Bq, W3f, HF + 2*(7-aa))
    while di < len(gam): direct(di); di += 1
    assert len(inited) == 8
    for x in UF[:4]: R.put(x, 4)
    R.put(US, 4); R.put(S1, 12); R.put(W2f, 4); R.put(W3f, 4); R.put(TK, 40); R.put(BX, 12); R.put(KF, 12); R.put(HF, 10)
    stamp(a, 6)
    a(f"""
    s_mul_i32 s65, s23, {32*36864}
    s_lshl_b32 s63, s24, 6
    s_add_u32 s63, s63, s65
    s_add_u32 s63, s63, {WS_BT}
    v_lshrrev_b32 v{t0}, 6, v{t3}
    v_mul_u32_u24 v{t0}, 36800, v{t0}
    v_add_u32 v{t3}, v{t3}, v{t0}
    """)
    PA = R.get(16, 2)
    def tail(w):
        keep = acc + 16*w; send = acc + 16*(1-w)
        for j in range(4):
            a(f"ds_write_b128 v{own}, v[{send+4*j}:{send+4*j+3}] offset:{j*1024}")
        a(f"ds_write_b32 v{oadr}, v{one} offset:{4*F_A}")
        poll(66)
        stamp(a, 7)
        for j in range(4):
            a(f"ds_read_b128 v[{PA+4*j}:{PA+4*j+3}], v{prt} offset:{j*1024}")
        for j in range(4):
            k = keep + 4*j
            for e in range(4): a(f"v_add_f32 v{k+e}, v{k+e}, v{PA+4*j+e}")
            for e in range(4): a(f"v_ldexp_f32 v{k+e}, v{k+e}, s59")
            a(f"""
            v_cvt_pk_bf16_f32 v{k}, v{k}, v{k+1}
            v_cvt_pk_bf16_f32 v{k+1}, v{k+2}, v{k+3}
            buffer_store_dwordx2 v[{k}:{k+1}], v{t3}, s[12:15], s63 offen{SC}
            s_add_u32 s63, s63, {8*36864}
            """)
        stamp(a, 8)
        stamp_dump(a, 9, 12, 20, t0, t1)
        if MERGE:
            a("s_mul_hi_u32 s19, s21, 178956971")
            a("s_lshl_b32 s19, s19, 2"); a(f"s_add_u32 s19, s19, {D_CONV}"); a("s_mov_b32 s18, 23"); a.raw("s_branch PH2")
        else: a.raw("s_endpgm")
    a("s_cmp_eq_u32 s23, 1")
    snapE = a.branch("s_cbranch_scc1 CV_tail1")
    tail(0)
    a.restore("CV_tail1", snapE)
    tail(1)
```

```python
from asmlib import *
import os
from layout import *
from k1_conv import LOG2E

ASLOT = 16384
BSLOT = 24576
BRING = 3 * ASLOT
G_KVI = BRING + 3 * BSLOT
KVI_H = 7424
G_LDS = G_KVI + 2 * KVI_H
EPS = 0x358637bd

def lanemask(f):
    m = 0
    for l in range(64):
        if f(l & 15, l >> 4): m |= 1 << l
    return m
MASKS = {}
def set_exec(a, m):
    if m in MASKS:
        a(f"s_mov_b64 exec, s[{MASKS[m]}:{MASKS[m]+1}]"); return
    a(f"s_mov_b32 exec_lo, {m & 0xffffffff:#x}")
    a(f"s_mov_b32 exec_hi, {m >> 32:#x}")
def preload_masks(a, ms, base):
    for i, m in enumerate(ms):
        MASKS[m] = base + 2*i
        a(f"s_mov_b32 s{base+2*i}, {m & 0xffffffff:#x}")
        a(f"s_mov_b32 s{base+2*i+1}, {m >> 32:#x}")

def gen_gemm(a, R):
    a(f"s_cmp_ge_u32 s20, {9 if MERGE else 8}")
    a("s_cbranch_scc1 GM_exit")
    if MERGE:
        a("s_cmp_lg_u32 s20, 8")
        a("s_cbranch_scc1 GM_not8")
        for _ in range(11): a.raw("s_barrier")
        a.raw("s_branch PH2")
        a.raw("GM_not8:")
    lane = R.get(); t0 = R.get(); t1 = R.get(); t2 = R.get(); t3 = R.get()
    stamp(a, 0)
    a(f"""
    s_load_dwordx4 s[4:7], s[0:1], 0
    s_load_dwordx4 s[36:39], s[0:1], 112
    v_and_b32 v{lane}, 63, v0
    s_sub_u32 s21, s17, 12
    s_and_b32 s22, s16, 3
    s_lshl_b32 s22, s22, 2
    s_lshr_b32 s23, s16, 2
    s_and_b32 s24, s21, 3
    s_lshr_b32 s25, s21, 2
    s_lshl_b32 s26, s23, 1
    s_add_u32 s26, s26, s24
    s_mul_i32 s27, s23, 5
    s_add_u32 s27, s27, s25
    s_cmp_ge_u32 s21, 16
    s_cselect_b32 s24, s26, s24
    s_cselect_b32 s27, 4, s27
    s_add_u32 s28, s22, s24
    s_add_u32 s29, s24, s25
    s_lshl_b32 s29, s29, 1
    s_cmp_ge_u32 s29, 9
    s_cselect_b32 s30, 9, 0
    s_sub_u32 s29, s29, s30
    """)
    NP = int(os.environ.get("NP", 0)); NR = 9 - NP
    if NP: a(f"""
    s_mul_i32 s29, s24, 3
    s_lshr_b32 s29, s29, 1
    s_add_u32 s29, s29, s25
    s_cmp_ge_u32 s29, {NR}
    s_cselect_b32 s30, {NR}, 0
    s_sub_u32 s29, s29, s30
    """)
    def st_calc(s):
        if s < NP: return f"s_mov_b32 s56, {s}"
        return f"""s_add_u32 s56, s29, {s - NP}
        s_cmp_ge_u32 s56, {NR}
        s_cselect_b32 s60, {NR}, 0
        s_sub_u32 s56, s56, s60
        s_add_u32 s56, s56, {NP}"""
    def srd_setup():
        a(f"""
    s_mov_b32 s8, s4
    s_mov_b32 s9, s5
    s_mov_b32 s10, 2359296
    s_mov_b32 s11, 0x20000
    s_mov_b32 s12, s6
    s_mov_b32 s13, s7
    s_mov_b32 s14, 1990656
    s_mov_b32 s15, 0x20000
    s_mov_b32 s40, s38
    s_mov_b32 s41, s39
    s_mov_b32 s42, {WS_SIZE}
    s_mov_b32 s43, 0x20000
    s_mov_b32 s44, s36
    s_mov_b32 s45, s37
    s_mov_b32 s46, 256
    s_mov_b32 s47, 0x20000
    """)
    a("s_cmp_lt_u32 s20, 4")
    snapC = a.branch("s_cbranch_scc1 GM_cons")
    vA = R.get(4); vB = R.get(6)
    a(f"""
    s_sub_u32 s48, s20, 4
    v_lshrrev_b32 v{t0}, 3, v{lane}
    v_mul_u32_u24 v{t0}, 1152, v{t0}
    v_and_b32 v{t1}, 7, v{lane}
    v_bfe_u32 v{t2}, v{lane}, 4, 1
    v_xor_b32 v{t1}, v{t1}, v{t2}
    v_lshl_add_u32 v{vA}, v{t1}, 4, v{t0}
    v_xor_b32 v{vA+1}, 32, v{vA}
    v_xor_b32 v{vA+2}, 64, v{vA}
    v_xor_b32 v{vA+3}, 0x60, v{vA}
    s_lshl_b32 s49, s28, 7
    s_lshl_b32 s50, s48, 5
    s_add_u32 s49, s49, s50
    s_mul_i32 s49, s49, 1152
    s_lshl_b32 s50, s48, 12
    s_mul_i32 s51, s48, {16*3456}
    s_mul_i32 s52, s48, {16*384}
    s_add_u32 s52, s52, {BRING}
    """)
    a(f"""
    s_mul_i32 s53, s27, 144
    s_add_u32 s54, s53, {2304 - 144}
    s_add_u32 s53, s53, 1152
    s_mul_i32 s55, s27, 96
    s_sub_u32 s55, s55, 288
    s_cmp_eq_u32 s27, 8
    s_cselect_b32 s53, 768, s53
    s_cselect_b32 s54, 768, s54
    s_cselect_b32 s55, 768, s55
    """)
    def stage_st(s):
        a(st_calc(s))
        a(f"""
        s_lshl_b32 s57, s56, 7
        s_add_u32 s57, s57, s49
        s_mul_i32 s58, s56, {64*3456}
        s_add_u32 s58, s58, s51
        """)
    def issueA(s):
        for i in range(4):
            a(f"""
            s_add_u32 s59, s57, {8*i*1152}
            s_add_u32 m0, s50, {(s % 3)*ASLOT + i*1024}
            buffer_load_dwordx4 v{vA + i}, s[8:11], s59 offen lds
            """)
    def issueB(s, i):
        a(f"""
        s_add_u32 m0, s52, {(s % 3)*BSLOT + i*1024}
        buffer_load_dwordx4 v{vB + i}, s[12:15], s58 offen lds
        """)
    stage_st(0)
    a("s_mov_b32 s60, 2731")
    def calcB(i):
        a(f"""
        v_add_u32 v{t0}, {64*i}, v{lane}
        v_mul_lo_u32 v{t1}, v{t0}, s60
        v_lshrrev_b32 v{t1}, 16, v{t1}
        v_mul_u32_u24 v{t2}, 24, v{t1}
        v_sub_u32 v{t0}, v{t0}, v{t2}
        v_and_b32 v{t2}, 2, v{t1}
        v_lshrrev_b32 v{t3}, 1, v{t1}
        v_and_b32 v{t3}, 4, v{t3}
        v_or_b32 v{t2}, v{t2}, v{t3}
        v_xor_b32 v{t0}, v{t0}, v{t2}
        v_mov_b32 v{t2}, s53
        v_mov_b32 v{t3}, s54
        v_cmp_lt_u32 vcc, 8, v{t0}
        v_cndmask_b32 v{t2}, v{t2}, v{t3}, vcc
        v_mov_b32 v{t3}, s55
        v_cmp_lt_u32 vcc, 17, v{t0}
        v_cndmask_b32 v{t2}, v{t2}, v{t3}, vcc
        v_lshl_add_u32 v{t2}, v{t0}, 4, v{t2}
        v_mul_u32_u24 v{t1}, 3456, v{t1}
        v_add_u32 v{vB+i}, v{t1}, v{t2}
        """)
    calcB(0); calcB(1)
    srd_setup()
    issueA(0)
    issueB(0, 0); issueB(0, 1)
    for i in range(2, 6):
        calcB(i); issueB(0, i)
    stamp(a, 1)
    a("s_barrier")
    for s in (1,):
        stage_st(s); issueA(s)
        for i in range(6): issueB(s, i)
    gA = R.get(); gacc = R.get(2); gx = R.get(32, 4); ga = R.get(8)
    a(f"""
    s_load_dwordx2 s[62:63], s[0:1], 96
    s_cmp_eq_u32 s27, 8
    s_cselect_b32 s61, s48, 9
    v_bfe_u32 v{t0}, v{lane}, 1, 1
    v_lshrrev_b32 v{t1}, 2, v{lane}
    v_and_b32 v{t1}, 6, v{t1}
    v_or_b32 v{t0}, v{t0}, v{t1}
    v_lshlrev_b32 v{t0}, 4, v{t0}
    v_lshl_add_u32 v{gA}, v{lane}, 7, v{t0}
    s_lshl_b32 s60, s48, 13
    v_add_u32 v{gA}, s60, v{gA}
    v_mov_b32 v{gacc}, 0
    v_mov_b32 v{gacc+1}, 0
    """)
    a.wait(lg=0)
    def gate_ld(s):
        for l in st_calc(s).split("\n"): a.raw(l.strip())
        for l in f"""s_lshl_b32 s56, s56, 7
        s_load_dwordx16 s[64:79], s[62:63], s56
        s_add_u32 s56, s56, 64
        s_load_dwordx16 s[80:95], s[62:63], s56""".split("\n"): a.raw(l.strip())
    def gate(s):
        a("s_cmp_ge_u32 s61, 2")
        sn = a.branch(f"s_cbranch_scc1 GM_nogate{s}")
        a(f"v_add_u32 v{ga}, {(s % 3)*ASLOT}, v{gA}")
        for c in range(1, 8): a(f"v_xor_b32 v{ga+c}, {16*c}, v{ga}")
        for c in range(8): a(f"ds_read_b128 v[{gx+4*c}:{gx+4*c+3}], v{ga+c}")
        a.wait(lg=0)
        for i in range(32): a(f"v_dot2c_f32_bf16 v{gacc+(i&1)}, s{64+i}, v{gx+i}")
        if s < 8: gate_ld(s + 1)
        a.merge(f"GM_nogate{s}", sn)
    stamp(a, 2)
    a.wait(vm=10)
    stamp(a, 3)
    if STAMPS: stamp_dump(a, 4, 40, 20, t0, t1); a.raw("s_mov_b64 exec, -1")
    gate_ld(0)
    a("s_barrier")
    stage_st(2); issueA(2)
    for i in range(6): issueB(2, i)
    for s in range(8):
        gate(s)
        a.wait(vm=10 if s + 2 <= 8 else 0)
        a("s_barrier")
        if s + 3 <= 8 and not os.environ.get("NOLOAD"):
            stage_st(s + 3); issueA(s + 3)
            for i in range(6): issueB(s + 3, i)
    gate(8)
    a("s_cmp_ge_u32 s61, 2")
    a(f"s_cbranch_scc1 {'GM_ld_end' if MERGE else 'GM_exit'}")
    a("s_nop 3")
    a(f"""
    v_add_f32 v{gacc}, v{gacc}, v{gacc+1}
    v_cvt_pk_bf16_f32 v{gacc}, v{gacc}, v{gacc}
    v_lshlrev_b32 v{gacc}, 16, v{gacc}
    v_mul_f32 v{gacc}, {LOG2E}, v{gacc}
    v_exp_f32 v{gacc}, -v{gacc}
    v_add_f32 v{gacc}, 1.0, v{gacc}
    v_rcp_f32 v{gacc}, v{gacc}
    v_cvt_pk_bf16_f32 v{gacc}, v{gacc}, v{gacc}
    v_lshlrev_b32 v{gacc}, 16, v{gacc}
    v_lshlrev_b32 v{t0}, 2, v{lane}
    s_lshl_b32 s56, s28, 9
    s_lshl_b32 s60, s48, 8
    s_add_u32 s56, s56, s60
    s_add_u32 s56, s56, {WS_G}
    buffer_store_dword v{gacc}, v{t0}, s[40:43], s56 offen{SC}
    """)
    if MERGE:
        a.raw("GM_ld_end:")
        a.raw("s_barrier")
        a.raw("s_branch PH2")
    else: a.raw("s_endpgm")
    R.put(gA); R.put(gacc, 2); R.put(gx, 32); R.put(ga, 8)
    R.put(vA, 4); R.put(vB, 6)
    a.restore("GM_cons", snapC)
    col = R.get(); rq = R.get()
    acc = R.get(96, 4)
    AF = [R.get(16, 4), R.get(16, 4)]
    BF = R.get(24, 4)
    aA = R.get(2); aB = R.get(6)
    ac = lambda mt, T: acc + 4 * (mt * 6 + T)
    srd_setup()
    tk = AF[1]
    a(f"""
    s_mov_b32 s61, 1
    s_lshl_b32 s31, s27, 2
    v_mov_b32 v{tk}, 1
    v_mov_b32 v{tk+1}, 0
    s_cmp_eq_u32 s27, 8
    s_cselect_b32 s62, 1, s20
    s_cmp_lg_u32 s62, 0
    """)
    snapT = a.branch("s_cbranch_scc1 GM_notick")
    a.raw("s_mov_b64 exec, 1")
    a.raw(f"buffer_atomic_add v{tk}, v{tk+1}, s[44:47], s31 offen sc0")
    a.raw("s_mov_b64 exec, -1")
    a.merge("GM_notick", snapT)
    zz = AF[0]
    for j in range(4): a(f"v_mov_b32 v{zz+j}, 0")
    a(f"v_lshlrev_b32 v{t0}, 4, v0")
    a(f"v_add_u32 v{t0}, {G_KVI}, v{t0}")
    for i in range(3): a(f"ds_write_b128 v{t0}, v[{zz}:{zz+3}] offset:{4096*i}")
    a("v_cmp_gt_u32 vcc, 160, v0")
    a("s_and_saveexec_b64 s[32:33], vcc")
    a(f"ds_write_b128 v{t0}, v[{zz}:{zz+3}] offset:12288")
    a("s_mov_b64 exec, -1")
    a(f"""
    s_and_b32 s48, s20, 1
    s_lshr_b32 s49, s20, 1
    v_and_b32 v{col}, 15, v{lane}
    v_lshrrev_b32 v{rq}, 4, v{lane}
    v_lshrrev_b32 v{t0}, 1, v{col}
    v_xor_b32 v{t0}, v{t0}, v{rq}
    v_lshlrev_b32 v{t0}, 4, v{t0}
    v_and_b32 v{t1}, 12, v{col}
    v_add_u32 v{t1}, v{t1}, v{col}
    v_lshl_add_u32 v{t0}, v{t1}, 7, v{t0}
    s_lshl_b32 s50, s48, 13
    v_add_u32 v{aA}, s50, v{t0}
    v_xor_b32 v{aA+1}, 64, v{aA}
    """)
    rr = BF; cc = BF + 1; gg = BF + 2
    a(f"""
    v_lshrrev_b32 v{rr}, 2, v{lane}
    v_and_b32 v{rr}, 3, v{rr}
    v_and_b32 v{cc}, 3, v{lane}
    v_and_b32 v{gg}, 2, v{rr}
    v_and_b32 v{t0}, 1, v{rq}
    v_lshl_or_b32 v{gg}, v{t0}, 2, v{gg}
    v_lshl_add_u32 v{rr}, v{rq}, 3, v{rr}
    v_mul_u32_u24 v{rr}, 384, v{rr}
    v_add_u32 v{rr}, {BRING}, v{rr}
    s_mul_i32 s51, s49, 9
    s_mul_i32 s52, s49, 6
    s_mul_i32 s53, s49, 24
    s_cmp_eq_u32 s27, 8
    s_cselect_b64 s[54:55], -1, 0
    """)
    for T in range(6):
        if T < 4:
            a(f"v_add_u32 v{t0}, s51, v{cc}")
            k = [0, 5, 18, 23][T]
            if k: a(f"v_add_u32 v{t0}, {k}, v{t0}")
        elif T == 5:
            a(f"v_add_u32 v{t0}, s52, v{cc}"); a(f"v_add_u32 v{t0}, 38, v{t0}")
        else:
            a(f"""
            v_mul_u32_u24 v{t0}, 18, v{cc}
            v_add_u32 v{t0}, s51, v{t0}
            v_add_u32 v{t0}, 4, v{t0}
            v_add_u32 v{t1}, s52, v{cc}
            v_add_u32 v{t1}, 34, v{t1}
            v_cmp_lt_u32 vcc, 1, v{cc}
            v_cndmask_b32 v{t0}, v{t0}, v{t1}, vcc
            """)
        a(f"""
        v_add_u32 v{t1}, s53, v{cc}
        v_add_u32 v{t1}, {4*T}, v{t1}
        v_cndmask_b32 v{t0}, v{t0}, v{t1}, s[54:55]
        v_lshrrev_b32 v{t1}, 1, v{t0}
        v_xor_b32 v{t1}, v{t1}, v{gg}
        v_and_b32 v{t0}, 1, v{t0}
        v_lshlrev_b32 v{t0}, 3, v{t0}
        v_lshl_add_u32 v{t0}, v{t1}, 4, v{t0}
        v_add_u32 v{aB+T}, v{rr}, v{t0}
        """)
    a(f"""
    v_mov_b32 v{t2}, {EPS:#x}
    v_cndmask_b32 v{t0}, 0, v{t2}, s[54:55]
    v_lshrrev_b32 v{t3}, 2, v{col}
    v_cmp_eq_u32 vcc, 1, v{t3}
    v_cndmask_b32 v{t1}, v{t2}, v{t0}, vcc
    """)
    for mt in range(4):
        for T in range(6):
            src = t0 if T in (2, 3) else (t1 if T == 4 else t2)
            for j in range(4): a(f"v_mov_b32 v{ac(mt,T)+j}, v{src}")
    if not STAMPS:
        preload_masks(a, [lanemask(f) for f in (lambda c, r: (c >> 2) != 1, lambda c, r: r == 1, lambda c, r: r == 2, lambda c, r: c < 2, lambda c, r: c in (2, 3),
            lambda c, r: r == 1 and c < 2, lambda c, r: r == 1 and c in (2, 3), lambda c, r: r == 2 and c < 2, lambda c, r: r == 2 and c in (2, 3), lambda c, r: c >= 8)], 66)
    a.raw("s_barrier")
    a.raw("s_waitcnt vmcnt(0)")
    a(f"v_readfirstlane_b32 s61, v{tk}")
    a("s_cmp_lg_u32 s61, 0")
    snapZ = a.branch("s_cbranch_scc1 GM_nozero")
    Z4 = BF
    for j in range(4): a(f"v_mov_b32 v{Z4+j}, 0")
    a(f"""
    v_lshlrev_b32 v{Z4+4}, 4, v{lane}
    s_mul_i32 s33, s27, 7296
    s_add_u32 s33, s33, {WS_KVS}
    """)
    for i in range(7):
        a.raw(f"buffer_store_dwordx4 v[{Z4}:{Z4+3}], v{Z4+4}, s[40:43], s33 offen sc1")
        a.raw("s_add_u32 s33, s33, 1024")
    a.raw("s_mov_b64 exec, 0xff")
    a.raw(f"buffer_store_dwordx4 v[{Z4}:{Z4+3}], v{Z4+4}, s[40:43], s33 offen sc1")
    a.raw("s_mov_b64 exec, -1")
    a.raw("s_nop 2")
    a.merge("GM_nozero", snapZ)
    def setflag():
        a("s_cmp_lg_u32 s61, 0")
        sn = a.branch("s_cbranch_scc1 GM_noflag", rawblock=True)
        a.raw("s_waitcnt vmcnt(0)")
        a.raw("s_mov_b64 exec, 1")
        a.raw(f"v_mov_b32 v{t0}, 1")
        a.raw(f"v_mov_b32 v{t1}, 0")
        a.raw(f"buffer_atomic_add v{t0}, v{t1}, s[44:47], s31 offen offset:64")
        a.raw("s_mov_b64 exec, -1")
        a.merge("GM_noflag", sn, rawblock=True)
    def ldA1(t, mt):
        f = AF[t & 1]
        return f"ds_read_b128 v[{f+4*mt}:{f+4*mt+3}], v{aA + (t & 1)} offset:{((t>>1)%3)*ASLOT + (mt>>1)*4096 + (mt&1)*512}"
    def ldB1(t, T, h):
        o = ((t >> 1) % 3) * BSLOT + (t & 1) * 32 * 384 + h * 4 * 384
        return f"ds_read_b64_tr_b16 v[{BF+4*T+2*h}:{BF+4*T+2*h+1}], v{aB+T} offset:{o}"
    a.wait(lg=0)
    a("s_barrier")
    stamp(a, 1)
    for mt in range(4): a(ldA1(0, mt))
    for T in range(6):
        a(ldB1(0, T, 0)); a(ldB1(0, T, 1))
    for t in range(18):
        f = AF[t & 1]
        if t == 4: stamp(a, 6)
        if t == 10: stamp(a, 7)
        fill = {g: [] for g in range(24)}
        if t > 0:
            fill[0].append(ldB1(t, 5, 0)); fill[1].append(ldB1(t, 5, 1))
        if t < 17:
            n = t + 1
            if t & 1 == 0:
                for T in range(5):
                    fill[4*(T+1)].append(ldB1(n, T, 0)); fill[4*(T+1)+1].append(ldB1(n, T, 1))
                for mt in range(4): fill[6 + 4*mt].append(ldA1(n, mt))
            else:
                fill[7].append("BAR")
                seq = [ldB1(n, 0, 0), ldB1(n, 0, 1), ldA1(n, 0), ldA1(n, 1), ldB1(n, 1, 0), ldB1(n, 1, 1), ldA1(n, 2), ldA1(n, 3),
                       ldB1(n, 2, 0), ldB1(n, 2, 1), ldB1(n, 3, 0), ldB1(n, 3, 1), ldB1(n, 4, 0), ldB1(n, 4, 1)]
                for i, x in enumerate(seq): fill[8 + i].append(x)
        for T in range(6):
            for mt in range(4):
                c = f"v[{ac(mt,T)}:{ac(mt,T)+3}]"
                a(f"v_mfma_f32_16x16x32_bf16 {c}, v[{f+4*mt}:{f+4*mt+3}], v[{BF+4*T}:{BF+4*T+3}], {c}")
                for x in fill[4*T + mt]:
                    if x == "BAR":
                        a.wait(lg=0)
                        a("s_barrier")
                        if t == 3: setflag()
                    else: a(x)
    stamp(a, 2)
    R.put(AF[0], 16); R.put(AF[1], 16); R.put(BF, 24); R.put(aA, 2); R.put(aB, 6)
    tm = R.get(4, 2); L2 = R.get(2); fl = R.get(); zr = R.get()
    a(f"""
    v_mov_b32 v{zr}, 0
    buffer_load_dword v{fl}, v{zr}, s[44:47], s31 offen offset:64 sc1
    v_mov_b32 v{L2}, {LOG2E:#x}
    v_mov_b32 v{L2+1}, {LOG2E:#x}
    s_mov_b32 s56, {EPS:#x}
    """)
    def phi(r, keepmask=None):
        a(f"v_pk_mul_f32 v[{tm}:{tm+1}], v[{r}:{r+1}], v[{L2}:{L2+1}]")
        a(f"v_pk_mul_f32 v[{tm+2}:{tm+3}], v[{r+2}:{r+3}], v[{L2}:{L2+1}]")
        for j in range(4): a(f"v_exp_f32_e64 v{tm+j}, v{tm+j} clamp")
        if keepmask is not None: set_exec(a, keepmask)
        for j in range(4): a(f"v_max_f32 v{r+j}, s56, v{r+j}")
        a(f"v_pk_add_f32 v[{r}:{r+1}], v[{r}:{r+1}], v[{tm}:{tm+1}]")
        a(f"v_pk_add_f32 v[{r+2}:{r+3}], v[{r+2}:{r+3}], v[{tm+2}:{tm+3}]")
        if keepmask is not None: a("s_mov_b64 exec, -1")
    def pack(d, r):
        a(f"v_cvt_pk_bf16_f32 v{d}, v{r}, v{r+1}")
        a(f"v_cvt_pk_bf16_f32 v{d+1}, v{r+2}, v{r+3}")
    vq = R.get(); vq2 = lane
    a(f"""
    v_lshlrev_b32 v{vq}, 6, v{col}
    v_lshl_add_u32 v{vq}, v{rq}, 4, v{vq}
    v_add_u32 v{vq2}, 36864, v{vq}
    s_lshl_b32 s57, s28, 1
    s_add_u32 s57, s57, s48
    s_mul_i32 s57, s57, 73728
    """)
    a("s_cmp_eq_u32 s27, 8")
    snapQ = a.branch("s_cbranch_scc1 GM_epi_q")
    F = {(T, p): R.get(4, 4) for T in range(5) for p in range(2)}
    AL = [R.get(4, 4) for p in range(2)]
    m_nv = lanemask(lambda c, r: (c >> 2) != 1)
    KVt = [ac(0, 0), ac(0, 1), ac(0, 2), ac(0, 3), ac(0, 4), ac(1, 0), ac(1, 1)]
    prods = [(('F', 2), 0), (('F', 3), 1), (('L', 0), 0), (('L', 0), 1), (('F', 2), 4), (('F', 3), 4), (('L', 0), 4)]
    a(f"v_cmp_eq_u32 s[64:65], 1, v{t3}")
    a(f"v_mov_b32 v{t1}, 0x3f803f80")
    for p in range(2):
        for mt in (2*p, 2*p+1):
            for T in (0, 1, 4, 2, 3):
                r = ac(mt, T)
                if T in (0, 1): phi(r)
                if T == 4: phi(r, m_nv)
                pack(F[(T, p)] + 2 * (mt & 1), r)
        for j in range(4): a(f"v_cndmask_b32 v{AL[p]+j}, v{t1}, v{F[(4,p)]+j}, s[64:65]")
        for i, (A_, B_) in enumerate(prods):
            Ar = F[(A_[1], p)] if A_[0] == 'F' else AL[p]
            Br = F[(B_, p)]
            c = f"v[{KVt[i]}:{KVt[i]+3}]"
            a(f"v_mfma_f32_16x16x32_bf16 {c}, v[{Ar}:{Ar+3}], v[{Br}:{Br+3}], {c if p else 0}")
    stamp(a, 4)
    b1 = AL[0]; b2 = AL[0] + 1; b3 = AL[0] + 2
    a(f"""
    s_mul_i32 s63, s48, {KVI_H}
    s_mul_i32 s60, s49, {2*456*4}
    s_add_u32 s60, s60, s63
    s_add_u32 s60, s60, {G_KVI}
    v_mul_u32_u24 v{b1}, {4*24*4}, v{rq}
    v_lshl_add_u32 v{b1}, v{col}, 2, v{b1}
    v_add_u32 v{b1}, s60, v{b1}
    v_lshlrev_b32 v{b2}, 2, v{col}
    v_add_u32 v{b2}, s60, v{b2}
    s_mul_i32 s58, s27, 48
    s_mul_i32 s59, s49, 24
    s_add_u32 s58, s58, s59
    s_lshl_b32 s58, s58, 6
    s_add_u32 s58, s58, s57
    s_add_u32 s59, s58, 512
    s_sub_u32 s58, s58, 512
    """)
    def add(base, reg, off): a(f"ds_write_b32 v{base}, v{reg} offset:{4*off}")
    K = KVt
    RS = 24; HS = 456
    for j in range(4): add(b1, K[0] + j, j * RS)
    for j in range(4): add(b1, K[1] + j, HS + (2 + j) * RS + 2)
    set_exec(a, lanemask(lambda c, r: r == 1))
    add(b2, K[2], 16 * RS); add(b2, K[2] + 1, 17 * RS)
    add(b2, K[3] + 2, HS + 2); add(b2, K[3] + 3, HS + RS + 2)
    set_exec(a, lanemask(lambda c, r: r == 2))
    add(b2, K[2], 18 * RS); add(b2, K[3], HS + 18 * RS + 2)
    set_exec(a, lanemask(lambda c, r: c < 2))
    for j in range(4): add(b1, K[4] + j, j * RS + 16)
    set_exec(a, lanemask(lambda c, r: c in (2, 3)))
    for j in range(4): add(b1, K[5] + j, HS + (2 + j) * RS - 2)
    set_exec(a, lanemask(lambda c, r: r == 1 and c < 2))
    add(b2, K[6], 16 * RS + 16); add(b2, K[6] + 1, 17 * RS + 16)
    set_exec(a, lanemask(lambda c, r: r == 1 and c in (2, 3)))
    add(b2, K[6] + 2, HS - 2); add(b2, K[6] + 3, HS + RS - 2)
    set_exec(a, lanemask(lambda c, r: r == 2 and c < 2))
    add(b2, K[6], 18 * RS + 16)
    set_exec(a, lanemask(lambda c, r: r == 2 and c in (2, 3)))
    add(b2, K[6], HS + 18 * RS - 2)
    a("s_mov_b64 exec, -1")
    a(f"v_add_u32 v{t0}, s58, v{vq}")
    a("s_mov_b32 s62, 36864")
    set_exec(a, lanemask(lambda c, r: c >= 8))
    for p in range(2):
        d = F[(4, p)]
        a(f"buffer_store_dwordx4 v[{d}:{d+3}], v{t0}, s[40:43], {'s62' if p else 0} offen{SC}")
    a("s_mov_b64 exec, -1")
    a.wait(lg=0)
    a("s_barrier")
    stamp(a, 5)
    V6 = ac(2, 0); V7 = ac(3, 0)
    a(f"""
    v_lshlrev_b32 v{t0}, 2, v0
    v_add_u32 v{t1}, {G_KVI}, v{t0}
    """)
    for i in range(8): a(f"ds_read_b32 v{V6+i}, v{t1} offset:{1024*i}")
    for i in range(7): a(f"ds_read_b32 v{V7+i}, v{t1} offset:{KVI_H + 1024*i}")
    a(f"v_min_u32 v{t2}, {G_KVI + 124}, v{t1}")
    a(f"ds_read_b32 v{V7+7}, v{t2} offset:{KVI_H + 7168}")
    a(f"""
    s_mul_i32 s33, s27, 7296
    s_add_u32 s33, s33, {WS_KVS}
    v_mov_b32 v{t2}, 0x7f000000
    v_cmp_gt_u32 vcc, 32, v0
    v_cndmask_b32 v{t1}, v{t2}, v{t0}, vcc
    """)
    for i in range(8): a(f"v_add_f32 v{V6+i}, v{V6+i}, v{V7+i}")
    a(f"v_readfirstlane_b32 s32, v{fl}")
    a("s_cmp_lg_u32 s32, 0")
    sn = a.branch("s_cbranch_scc1 GM_flagok")
    a.raw("GM_poll:")
    a.raw(f"buffer_load_dword v{fl}, v{zr}, s[44:47], s31 offen offset:64 sc1")
    a.raw("s_waitcnt vmcnt(0)")
    a.raw(f"v_readfirstlane_b32 s32, v{fl}")
    a.raw("s_nop 1")
    a.raw("s_cmp_eq_u32 s32, 0")
    a.raw("s_cbranch_scc1 GM_poll")
    a.merge("GM_flagok", sn)
    for i in range(4):
        a(f"buffer_atomic_add_f32 v{V6+i}, v{t0}, s[40:43], s33 offen offset:{1024*i}")
    a(f"""
    s_add_u32 s33, s33, 4096
    buffer_atomic_add_f32 v{V6+4}, v{t0}, s[40:43], s33 offen
    buffer_atomic_add_f32 v{V6+5}, v{t0}, s[40:43], s33 offen offset:1024
    buffer_atomic_add_f32 v{V6+6}, v{t0}, s[40:43], s33 offen offset:2048
    buffer_atomic_add_f32 v{V6+7}, v{t1}, s[40:43], s33 offen offset:3072
    """)
    for p in range(2):
        d = F[(0, p)]
        for mt in (2*p, 2*p+1):
            r = ac(mt, 5); phi(r); pack(d + 2 * (mt & 1), r)
        a(f"buffer_store_dwordx4 v[{d}:{d+3}], v{vq2 if p else vq}, s[40:43], s59 offen{SC}")
    stamp(a, 3)
    stamp_dump(a, 8, 40, 20, t0, t1)
    if MERGE:
        a(f"s_mov_b32 s19, {D_GEMM}"); a("s_mov_b32 s18, 143"); a.raw("s_branch PH2")
    else: a.raw("s_endpgm")
    a.restore("GM_epi_q", snapQ)
    if MERGE: a("s_barrier")
    a(f"""
    s_mul_i32 s58, s49, 96
    s_add_u32 s58, s58, 384
    s_lshl_b32 s58, s58, 6
    s_add_u32 s58, s58, s57
    """)
    k = 0
    for T in range(6):
        for p in range(2):
            d = list(F.values())[k % 10]; k += 1
            for mt in (2*p, 2*p+1):
                r = ac(mt, T); phi(r); pack(d + 2 * (mt & 1), r)
            a(f"buffer_store_dwordx4 v[{d}:{d+3}], v{vq2 if p else vq}, s[40:43], s58 offen{SC}")
        a(f"s_add_u32 s58, s58, 1024")
    stamp(a, 3)
    stamp_dump(a, 8, 40, 20, t0, t1)
    if MERGE:
        a(f"s_mov_b32 s19, {D_GEMM}"); a("s_mov_b32 s18, 143"); a.raw("s_branch PH2")
    a.label("GM_exit", flush=False)
    a.raw("s_endpgm")
```

```python
from asmlib import *
from layout import *

K2_PQ = 0
K2_KV = 49152
K2_OF = K2_KV + 32768
K2_BT = K2_OF + 36864
K2_LDS = K2_BT + 9216
K2_GRID = 256; K2_BLOCK = 576
import os
EARLYBAR = int(os.environ.get('EARLYBAR', 0))
PREF = int(os.environ.get('PREF', 0))
WL = int(os.environ.get('WL', 1))
ROT2 = int(os.environ.get('ROT2', 0))

def gen_k2():
    a = Asm()
    R = VAlloc(1, 168)
    a("""
    s_cmp_ge_u32 s2, 256
    s_cbranch_scc1 K2_end
    s_load_dwordx2 s[4:5], s[0:1], 104
    s_load_dwordx2 s[6:7], s[0:1], 120
    """)
    lane = R.get(); t0 = R.get(); t1 = R.get(); t2 = R.get(); t3 = R.get()
    col = R.get(); rq = R.get(); l16 = R.get()
    aB = R.get(); aM = R.get(); aX0 = R.get(); aX1 = R.get(); aO = R.get(); aL = R.get(); _pad = R.get()
    lo = R.get(4, 2); r0 = R.get(2); r1 = R.get(2)
    stamp(a, 0)
    a(f"""
    v_lshrrev_b32 v{t0}, 6, v0
    v_and_b32 v{lane}, 63, v0
    v_readfirstlane_b32 s20, v{t0}
    s_and_b32 s21, s2, 7
    s_lshr_b32 s22, s2, 3
    s_lshl_b32 s21, s21, 3
    s_lshr_b32 s23, s22, 2
    s_add_u32 s21, s21, s23
    s_and_b32 s22, s22, 3
    s_lshl_b32 s23, s23, 1
    v_and_b32 v{col}, 15, v{lane}
    v_lshrrev_b32 v{rq}, 4, v{lane}
    v_lshlrev_b32 v{l16}, 4, v{lane}
    s_mul_i32 s24, s20, 7296
    s_add_u32 s24, s24, {WS_KVS}
    s_mul_i32 s25, s20, {72*64}
    s_mul_i32 s35, s21, 36864
    s_add_u32 s25, s25, s35
    s_mul_i32 s27, s20, 6144
    s_mul_i32 s26, s22, 9
    s_add_u32 s26, s26, s20
    s_mul_i32 s28, s26, 18432
    s_add_u32 s28, s28, {WS_WOF}
    """)
    a(f"""
    s_mov_b32 s8, s6
    s_mov_b32 s9, s7
    s_mov_b32 s10, {WS_SIZE}
    s_mov_b32 s11, 0x20000
    s_mov_b32 s12, s4
    s_mov_b32 s13, s5
    s_mov_b32 s14, 2359296
    s_mov_b32 s15, 0x20000
    """)
    wof = R.get(72, 4); bt = R.get(4, 2); g = R.get(2, 2)
    def wof_ld(i):
        if not ROT2:
            if i % 4 == 0: a(f"s_add_u32 s31, s28, {i*1024}")
            a(f"buffer_load_dwordx4 v[{wof+4*i}:{wof+4*i+3}], v{l16}, s[8:11], s31 offen offset:{(i%4)*1024}")
            return
        a(f"""
        s_add_u32 s30, s23, {i}
        s_cmp_ge_u32 s30, 18
        s_cselect_b32 s31, 18, 0
        s_sub_u32 s30, s30, s31
        s_lshl_b32 s{40+i}, s30, 10
        s_add_u32 s31, s{40+i}, s28
        buffer_load_dwordx4 v[{wof+4*i}:{wof+4*i+3}], v{l16}, s[8:11], s31 offen
        """)
    def btg_ld():
        a(f"""
        s_lshl_b32 s29, s26, 10
        s_add_u32 s29, s29, s35
        s_add_u32 s29, s29, {WS_BT}
        s_lshl_b32 s33, s20, 10
        s_add_u32 m0, s33, {K2_BT}
        buffer_load_dwordx4 v{l16}, s[8:11], s29 offen lds
        v_lshlrev_b32 v{t2}, 2, v{col}
        s_lshl_b32 s30, s21, 7
        s_add_u32 s30, s30, {WS_G}
        buffer_load_dword v{g}, v{t2}, s[8:11], s30 offen
        buffer_load_dword v{g+1}, v{t2}, s[8:11], s30 offen offset:64
        """)
    if PREF:
        a(f"""
        s_lshr_b32 s62, s2, 3
        s_and_b32 s63, s2, 7
        v_lshrrev_b32 v{t0}, 5, v{lane}
        v_lshlrev_b32 v{t0}, 12, v{t0}
        v_and_b32 v{t2}, 31, v{lane}
        v_lshl_add_u32 v{t0}, v{t2}, 4, v{t0}
        s_mul_i32 s64, s62, 18
        s_lshl_b32 s65, s20, 1
        s_add_u32 s64, s64, s65
        s_lshl_b32 s64, s64, 12
        s_lshl_b32 s65, s63, 9
        s_add_u32 s64, s64, s65
        s_mul_i32 s66, s62, 1536
        s_lshl_b32 s65, s20, 10
        s_add_u32 s66, s66, s65
        s_add_u32 s66, s66, {WS_KVS}
        s_cmp_ge_u32 s20, 2
        s_cselect_b32 s66, 0x7f000000, s66
        s_mul_i32 s67, s62, 20736
        s_add_u32 s67, s67, s65
        s_add_u32 s67, s67, {WS_WOF}
        """)
        d = wof + 56
        a.raw(f"buffer_load_dwordx4 v[{d}:{d+3}], v{t0}, s[8:11], s64 offen")
        a.raw(f"buffer_load_dwordx4 v[{d+4}:{d+7}], v{l16}, s[8:11], s66 offen")
        def pref2():
            a.raw(f"buffer_load_dwordx4 v[{d+8}:{d+11}], v{l16}, s[8:11], s67 offen")
            a.raw("s_add_u32 s67, s67, 9216")
            a.raw(f"buffer_load_dwordx4 v[{d+12}:{d+15}], v{l16}, s[8:11], s67 offen")
            a.raw("s_add_u32 s67, s67, 9216")
            a.raw("s_cmp_ge_u32 s20, 3")
            a.raw("s_cselect_b32 s67, 0x7f000000, s67")
            a.raw(f"buffer_load_dwordx4 v[{d}:{d+3}], v{l16}, s[8:11], s67 offen")
            a.raw(f"s_add_u32 s64, s64, {WS_BT}")
            a.raw(f"buffer_load_dwordx4 v[{d+4}:{d+7}], v{t0}, s[8:11], s64 offen")
        pref2()
    a("s_cmp_eq_u32 s20, 8")
    snap8 = a.branch("s_cbranch_scc1 K2_w8")
    FA = R.get(16, 4); kv = R.get(40, 4)
    for i in range(8):
        if i == 4: a("s_add_u32 s24, s24, 4096")
        a(f"buffer_load_dwordx4 v[{kv+4*i}:{kv+4*i+3}], v{l16}, s[8:11], s24 offen offset:{(i%4)*1024}")
    for i in range(5):
        a(f"""
        s_add_u32 s29, s25, {WS_PQT + i*1024}
        s_add_u32 m0, s27, {K2_PQ + i*1024}
        buffer_load_dwordx4 v{l16}, s[8:11], s29 offen lds
        """)
    if EARLYBAR: a("s_barrier")
    for j in range(16): a(f"v_mov_b32 v{FA+j}, 0")
    a(f"""
    s_lshl_b32 s34, s20, 12
    s_add_u32 s34, s34, {K2_KV}
    v_lshrrev_b32 v{t1}, 1, v{l16}
    v_add_u32 v{t1}, s34, v{t1}
    v_lshrrev_b32 v{t0}, 2, v{lane}
    v_and_b32 v{t0}, 3, v{t0}
    v_min_u32 v{t2}, 2, v{rq}
    v_lshl_add_u32 v{t0}, v{t2}, 3, v{t0}
    v_lshlrev_b32 v{t0}, 6, v{t0}
    v_and_b32 v{t3}, 3, v{lane}
    v_lshl_add_u32 v{t0}, v{t3}, 3, v{t0}
    v_add_u32 v{aB}, s27, v{t0}
    v_lshl_add_u32 v{t2}, v{rq}, 4, s34
    v_mul_u32_u24 v{t0}, 48, v{col}
    v_add_u32 v{aM}, v{t0}, v{t2}
    v_bfe_u32 v{t0}, v{col}, 2, 1
    v_cmp_eq_u32 vcc, 2, v{t3}
    v_cndmask_b32 v{t0}, 2, v{t0}, vcc
    v_mul_u32_u24 v{t0}, 48, v{t0}
    v_add_u32 v{aX0}, v{t0}, v{t2}
    v_cmp_lt_u32 s[36:37], 1, v{rq}
    s_lshl_b32 s38, s20, 11
    s_add_u32 s38, s38, {K2_OF}
    v_add_u32 v{aO}, s38, v{l16}
    s_lshr_b32 s38, s20, 2
    s_lshl_b32 s38, s38, 10
    s_and_b32 s39, s20, 3
    s_lshl_b32 s39, s39, 2
    s_add_u32 s38, s38, s39
    s_add_u32 s38, s38, {K2_OF + 16*1024}
    v_add_u32 v{aL}, s38, v{l16}
    s_mov_b32 s62, 0xffffffff
    s_mov_b32 s63, 0xffff
    s_mov_b32 s64, 0x11551155
    s_mov_b32 s65, 0x1155
    s_mov_b32 s66, 0x66226622
    s_mov_b32 s67, 0x6622
    """)
    stamp(a, 1)
    for i in range(8):
        a(f"v_cvt_pk_bf16_f32 v{kv+4*i}, v{kv+4*i}, v{kv+4*i+1}")
        a(f"v_cvt_pk_bf16_f32 v{kv+4*i+1}, v{kv+4*i+2}, v{kv+4*i+3}")
        a(f"ds_write_b64 v{t1}, v[{kv+4*i}:{kv+4*i+1}] offset:{512*i}")
    stamp(a, 2)
    FB = kv; M = kv + 16
    def ldA(p):
        a("s_mov_b64 exec, s[62:63]")
        for hh in range(2):
            a(f"ds_read_b128 v[{FA+8*hh}:{FA+8*hh+3}], v{aM} offset:{(2*p+hh)*912}")
        for hh in range(2):
            a(f"s_mov_b64 exec, s[{64+2*hh}:{65+2*hh}]")
            a(f"ds_read_b128 v[{FA+8*hh+4}:{FA+8*hh+7}], v{aX0} offset:{(2*p+hh)*912 + 768}")
        a("s_mov_b64 exec, -1")
    def ldB(p):
        for mt in range(2):
            for hh in range(2):
                h = 2*p + hh; b = FB + 8*mt + 4*hh
                a(f"ds_read_b64_tr_b16 v[{b}:{b+1}], v{aB} offset:{h*1152 + 32*mt}")
                a(f"ds_read_b64_tr_b16 v[{b+2}:{b+3}], v{aB} offset:{h*1152 + 256 + 32*mt}")
    ldA(0)
    N0 = 0 if WL else 4
    for i in range(N0): wof_ld(i)
    a.wait(vm=N0)
    stamp(a, 3)
    ldB(0)
    wi = N0
    for p in range(2):
        for mt in range(2):
            m = M + 12*mt; b = FB + 8*mt
            a(f"""
            v_mfma_f32_16x16x32_bf16 v[{m+8}:{m+11}], v[{FA+4}:{FA+7}], v[{b}:{b+3}], 0
            v_mfma_f32_16x16x32_bf16 v[{m}:{m+3}], v[{FA}:{FA+3}], v[{b}:{b+3}], 0
            v_mfma_f32_16x16x32_bf16 v[{m+8}:{m+11}], v[{FA+12}:{FA+15}], v[{b+4}:{b+7}], v[{m+8}:{m+11}]
            v_mfma_f32_16x16x32_bf16 v[{m+4}:{m+7}], v[{FA+8}:{FA+11}], v[{b+4}:{b+7}], 0
            """)
        if p == 0:
            ldA(1); ldB(1)
        for _ in range(0 if (WL and p == 0) else 3): wof_ld(wi); wi += 1
        for mt in range(2):
            m = M + 12*mt
            a(f"""
            v_add_f32 v{r0}, 0x358637bd, v{m+8}
            v_add_f32 v{r1}, 0x358637bd, v{m+9}
            v_rcp_f32 v{r0}, v{r0}
            v_rcp_f32 v{r1}, v{r1}
            v_pk_mul_f32 v[{m}:{m+1}], v[{m}:{m+1}], v[{r0}:{r0+1}] op_sel_hi:[1,0]
            v_pk_mul_f32 v[{m+2}:{m+3}], v[{m+2}:{m+3}], v[{r0}:{r0+1}] op_sel_hi:[1,0]
            v_pk_mul_f32 v[{m+4}:{m+5}], v[{m+4}:{m+5}], v[{r1}:{r1+1}] op_sel_hi:[1,0]
            v_pk_mul_f32 v[{m+6}:{m+7}], v[{m+6}:{m+7}], v[{r1}:{r1+1}] op_sel_hi:[1,0]
            v_cndmask_b32 v{r0}, v{r0}, v{r1}, s[36:37]
            v_mul_f32 v{lo+2*mt+p}, v{m+10}, v{r0}
            v_cvt_pk_bf16_f32 v{m+8}, v{m}, v{m+1}
            v_cvt_pk_bf16_f32 v{m+9}, v{m+2}, v{m+3}
            v_cvt_pk_bf16_f32 v{m+10}, v{m+4}, v{m+5}
            v_cvt_pk_bf16_f32 v{m+11}, v{m+6}, v{m+7}
            ds_write_b128 v{aO}, v[{m+8}:{m+11}] offset:{mt*18432 + p*1024}
            """)
            for _ in range(0 if (WL and p == 0) else 2): wof_ld(wi); wi += 1
    a(f"""
    v_cvt_pk_bf16_f32 v{lo}, v{lo}, v{lo+1}
    v_cvt_pk_bf16_f32 v{lo+2}, v{lo+2}, v{lo+3}
    ds_write_b32 v{aL}, v{lo}
    ds_write_b32 v{aL}, v{lo+2} offset:18432
    """)
    wi_bar = wi
    a.wait(lg=0)
    a.nopflush()
    final_q = [set(x) for x in a.vmq]
    a.raw("s_branch K2_phaseB")
    a.restore("K2_w8", snap8)
    for i in range(wi_bar): wof_ld(i)
    a.nopflush()
    assert [sorted(x) for x in a.vmq] == [sorted(x) for x in final_q], (len(a.vmq), len(final_q))
    a.raw("K2_phaseB:")
    a("s_barrier")
    btg_ld()
    stamp(a, 4)
    R.put(FA, 16); R.put(FB, 16); R.put(M, 24)
    acc = R.get(8, 4)
    NB = 3
    fa = [R.get(8, 4) for _ in range(NB)]
    ad = [R.get() for _ in range(NB)]
    a(f"v_add_u32 v{t3}, {K2_OF}, v{l16}")
    def ld(i):
        if i >= 18: return
        if not ROT2:
            a(f"ds_read_b128 v[{fa[i%NB]}:{fa[i%NB]+3}], v{t3} offset:{i*1024}")
            a(f"ds_read_b128 v[{fa[i%NB]+4}:{fa[i%NB]+7}], v{t3} offset:{18432 + i*1024}")
            return
        a(f"v_add_u32 v{ad[i%NB]}, s{40+i}, v{t3}")
        a(f"ds_read_b128 v[{fa[i%NB]}:{fa[i%NB]+3}], v{ad[i%NB]}")
        a(f"ds_read_b128 v[{fa[i%NB]+4}:{fa[i%NB]+7}], v{ad[i%NB]} offset:18432")
    for i in range(NB - 1): ld(i)
    wq = list(range(wi_bar, 18))
    k_off_done = set(range(wi_bar))
    for i in range(18):
        for _ in range(2):
            if wq: wof_ld(wq.pop(0))
        ld(i + NB - 1)
        for mt in range(2):
            c = f"v[{acc+4*mt}:{acc+4*mt+3}]"
            a(f"v_mfma_f32_16x16x32_bf16 {c}, v[{wof+4*i}:{wof+4*i+3}], v[{fa[i%NB]+4*mt}:{fa[i%NB]+4*mt+3}], {c if i else 0}")
    stamp(a, 5)
    bf = R.get(4); o16 = R.get(4, 2)
    a(f"""
    v_lshrrev_b32 v{t0}, 2, v{lane}
    v_lshlrev_b32 v{t0}, 6, v{t0}
    v_and_b32 v{t2}, 3, v{lane}
    v_lshl_add_u32 v{t0}, v{t2}, 3, v{t0}
    v_add_u32 v{t0}, s33, v{t0}
    v_add_u32 v{t0}, {K2_BT}, v{t0}
    """)
    a.wait(vm=0)
    a(f"""
    ds_read_b64_tr_b16 v[{bt}:{bt+1}], v{t0}
    ds_read_b64_tr_b16 v[{bt+2}:{bt+3}], v{t0} offset:32
    v_mul_u32_u24 v{t0}, 1152, v{col}
    v_lshl_add_u32 v{t0}, v{rq}, 3, v{t0}
    s_mul_i32 s60, s21, {32*1152}
    s_lshl_b32 s61, s26, 5
    s_add_u32 s60, s60, s61
    """)
    for mt in range(2):
        a(f"""
        v_lshlrev_b32 v{bf}, 16, v{bt+2*mt}
        v_and_b32 v{bf+1}, 0xffff0000, v{bt+2*mt}
        v_lshlrev_b32 v{bf+2}, 16, v{bt+2*mt+1}
        v_and_b32 v{bf+3}, 0xffff0000, v{bt+2*mt+1}
        """)
        for j in range(4):
            A = acc + 4*mt + j
            a(f"v_sub_f32 v{A}, v{A}, v{bf+j}")
            a(f"v_fma_f32 v{A}, v{g+mt}, v{A}, v{bf+j}")
        a(f"""
        v_cvt_pk_bf16_f32 v{o16+2*mt}, v{acc+4*mt}, v{acc+4*mt+1}
        v_cvt_pk_bf16_f32 v{o16+2*mt+1}, v{acc+4*mt+2}, v{acc+4*mt+3}
        buffer_store_dwordx2 v[{o16+2*mt}:{o16+2*mt+1}], v{t0}, s[12:15], s60 offen{os.environ.get('SCO', '')}
        """)
        if mt == 0: a(f"s_add_u32 s60, s60, {16*1152}")
    stamp(a, 6)
    stamp_dump(a, 7, 8, 20, t1, t2)
    a.label("K2_end", flush=False)
    return a, R.high
```

```python
from asmlib import *
from layout import *
import k1_conv

def gen_k1(roles=("conv","gemm","aux")):
    a = Asm()
    a("""
    s_cmp_ge_u32 s2, 256
    s_cbranch_scc1 K1_end
    v_lshrrev_b32 v1, 6, v0
    s_and_b32 s16, s2, 7
    s_lshr_b32 s17, s2, 3
    v_readfirstlane_b32 s20, v1
    s_cmp_ge_u32 s17, 12
    s_cbranch_scc1 K1_notconv
    """)
    hi = 0
    if "conv" in roles:
        a("""
        s_mul_i32 s21, s16, 12
        s_add_u32 s21, s21, s17
        s_mov_b32 s18, 0
        """)
        R = VAlloc(1, 168)
        k1_conv.gen_conv(a, R); hi = max(hi, R.high)
    else:
        a.raw("s_endpgm")
    a.restore("K1_notconv", ([], []))
    a("""
    s_cmp_ge_u32 s17, 30
    s_cbranch_scc1 K1_aux
    """)
    if OFFL and "gemm" in roles:
        a("""
        s_mul_i32 s21, s16, 12
        s_add_u32 s21, s21, s17
        s_sub_u32 s21, s21, 12
        s_mov_b32 s18, 1
        s_cmp_ge_u32 s17, 24
        s_cselect_b32 s19, 0, s20
        s_cmp_lt_u32 s19, 8
        s_cbranch_scc1 K1_gm
        s_sub_u32 s20, s20, 8
        s_branch CV_entry
        """)
        a.raw("K1_gm:")
    if "gemm" in roles:
        import k1_gemm
        R = VAlloc(1, 168)
        k1_gemm.gen_gemm(a, R); hi = max(hi, R.high)
    else:
        a.raw("s_endpgm")
    a.restore("K1_aux", ([], []))
    if "aux" in roles:
        import k1_aux
        R = VAlloc(1, 168)
        k1_aux.gen_aux(a, R); hi = max(hi, R.high)
    if MERGE:
        import ph2
        hi = max(hi, ph2.gen_ph2(a))
    a.label("K1_end", flush=False)
    return a, hi
```

```python
from asmlib import *
from layout import *
from touch import *
import os

WARM = int(os.environ.get('WARM', 0))
SCA = ' sc1' if (WARM or MERGE) else SC
def gen_aux(a, R):
    lane = R.get(); t0 = R.get(); t1 = R.get(); t2 = R.get(); l16 = R.get(); aT = R.get(); aL = R.get()
    a(f"""
    s_load_dwordx2 s[6:7], s[0:1], 120
    s_load_dwordx2 s[36:37], s[0:1], 16
    s_load_dwordx4 s[92:95], s[0:1], 0
    v_and_b32 v{lane}, 63, v0
    s_lshl_b32 s21, s16, 1
    s_add_u32 s21, s21, s17
    s_sub_u32 s21, s21, 30
    v_lshlrev_b32 v{l16}, 4, v{lane}
    s_mul_i32 s22, s21, 41472
    s_lshl_b32 s23, s20, 10
    s_add_u32 s22, s22, s23
    v_lshrrev_b32 v{t0}, 2, v{lane}
    v_mul_u32_u24 v{t0}, 1152, v{t0}
    v_and_b32 v{t1}, 3, v{lane}
    v_lshl_add_u32 v{aT}, v{t1}, 3, v{t0}
    s_mul_i32 s24, s20, 96
    v_add_u32 v{aT}, s24, v{aT}
    v_lshrrev_b32 v{t0}, 5, v{lane}
    v_mul_u32_u24 v{t0}, {18*1152}, v{t0}
    v_bfe_u32 v{t1}, v{lane}, 4, 1
    v_mul_u32_u24 v{t1}, 1152, v{t1}
    v_add_u32 v{t0}, v{t0}, v{t1}
    v_and_b32 v{t1}, 15, v{lane}
    v_lshl_add_u32 v{aL}, v{t1}, 1, v{t0}
    v_add_u32 v{aL}, s24, v{aL}
    s_mov_b32 s12, s6
    s_mov_b32 s13, s7
    s_mov_b32 s14, {WS_SIZE}
    s_mov_b32 s15, 0x20000
    s_mov_b32 s40, s36
    s_mov_b32 s41, s37
    s_mov_b32 s42, 663552
    s_mov_b32 s43, 0x20000
    """)
    if os.environ.get("TLBW"):
        dm = R.get(2); ta = R.get()
        a(f"""
        s_load_dwordx2 s[48:49], s[0:1], 104
        v_lshlrev_b32 v{ta}, 16, v{lane}
        buffer_load_dword v{dm}, v{ta}, s[12:15], 0 offen
        s_mov_b32 s30, 0x400000
        buffer_load_dword v{dm}, v{ta}, s[12:15], s30 offen
        s_mov_b32 s50, 2359296
        s_mov_b32 s51, 0x20000
        buffer_load_dword v{dm+1}, v{ta}, s[48:51], 0 offen
        """)
    AZ = int(os.environ.get('AZ', 1))
    if AZ:
        z4 = R.get(4, 2)
        for j in range(4): a(f"v_mov_b32 v{z4+j}, 0")
        a(f"""
        s_load_dwordx2 s[44:45], s[0:1], 112
        v_lshlrev_b32 v{t2}, 4, v0
        v_cmp_gt_u32 vcc, 228, v0
        v_mov_b32 v{t1}, 0x7f000000
        v_cndmask_b32 v{t2}, v{t1}, v{t2}, vcc
        s_mul_i32 s30, s21, 3648
        s_add_u32 s30, s30, {WS_KVS}
        buffer_store_dwordx4 v[{z4}:{z4+3}], v{t2}, s[12:15], s30 offen sc1
        """)
    for i in range(4):
        a(f"""
        s_add_u32 m0, s23, {i*12288}
        s_add_u32 s25, s22, {i*12288}
        buffer_load_dwordx4 v{l16}, s[40:43], s25 offen lds
        """)
    if os.environ.get("TOUCH", "0") == "1":
        vx = R.get(); vw = R.get(); dd = R.get(3)
        a("""
        s_mov_b32 s8, s92
        s_mov_b32 s9, s93
        s_mov_b32 s10, 2359296
        s_mov_b32 s11, 0x20000
        s_mov_b32 s96, s94
        s_mov_b32 s97, s95
        s_mov_b32 s98, 1990656
        s_mov_b32 s99, 0x20000
        s_lshl_b32 s33, s20, 1
        s_add_u32 s33, s33, s17
        s_add_u32 s33, s33, 18
        """)
        touch_setup(a, lane, vx, vw, t0, t1)
        touch_issue(a, 33, vx, vw, dd, 8, 96, "AX_t0")
        a.wait(vm=1)
    else:
        a.wait(vm=0)
    a("s_barrier")
    if AZ:
        a(f"""
        s_mov_b32 s46, 256
        s_mov_b32 s47, 0x20000
        v_mov_b32 v{t0}, 1
        s_cmp_eq_u32 s20, 0
        """)
        a.wait(lg=0)
        a.raw("s_cbranch_scc0 AX_nosig")
        a.raw("s_mov_b64 exec, 1")
        a.raw(f"buffer_atomic_add v{t0}, off, s[44:47], 0 offset:{D_AUX}")
        a.raw("s_mov_b64 exec, -1")
        a.raw("AX_nosig:")
    F = [R.get(4, 4) for _ in range(3)]; H = R.get(3)
    for j in range(3):
        a(f"ds_read_b64_tr_b16 v[{F[j]}:{F[j]+1}], v{aT} offset:{32*j}")
        a(f"ds_read_b64_tr_b16 v[{F[j]+2}:{F[j]+3}], v{aT} offset:{18*1152 + 32*j}")
        a(f"ds_read_u16 v{H+j}, v{aL} offset:{16*1152 + 32*j}")
    a(f"""
    s_mul_i32 s26, s20, {3*18432}
    s_lshl_b32 s27, s21, 10
    s_add_u32 s27, s27, s26
    s_add_u32 s27, s27, {WS_WOF}
    s_lshr_b32 s28, s21, 3
    s_lshl_b32 s28, s28, 10
    s_and_b32 s29, s21, 7
    s_lshl_b32 s29, s29, 1
    s_add_u32 s28, s28, s29
    s_add_u32 s28, s28, s26
    s_add_u32 s28, s28, {WS_WOF + 16*1024}
    """)
    for j in range(3):
        a(f"buffer_store_dwordx4 v[{F[j]}:{F[j]+3}], v{l16}, s[12:15], s27 offen{SCA}")
        a(f"buffer_store_short v{H+j}, v{l16}, s[12:15], s28 offen{SCA}")
        if j < 2:
            a("s_add_u32 s27, s27, 18432"); a("s_add_u32 s28, s28, 18432")
    if os.environ.get("TOUCH", "0") == "1":
        for i in ():
            a("s_add_u32 s33, s33, 24")
            touch_issue(a, 33, vx, vw, dd + i, 8, 96, f"AX_t{i}")
    if MERGE:
        a("s_load_dwordx2 s[44:45], s[0:1], 112")
        a(f"""
        v_lshlrev_b32 v{t0}, 7, v{lane}
        v_mov_b32 v{F[0]}, 0
        v_mov_b32 v{F[0]+1}, 0
        s_lshl_b32 s30, s21, 11
        s_add_u32 s30, s30, {WS_GO}
        s_mov_b64 exec, 0xffff
        buffer_store_dwordx2 v[{F[0]}:{F[0]+1}], v{t0}, s[12:15], s30 offen sc1
        s_mov_b64 exec, -1
        """)
        a.wait(vm=0, lg=0)
        a("s_barrier")
        a(f"""
        s_mov_b32 s46, 256
        s_mov_b32 s47, 0x20000
        s_mov_b32 s19, {D_DUMMY}
        s_mov_b32 s18, -1
        s_cmp_lg_u32 s20, 0
        s_cbranch_scc1 PH2
        s_mov_b64 exec, 1
        v_mov_b32 v{t0}, 1
        buffer_atomic_add v{t0}, off, s[44:47], 0 offset:{D_AUX}
        s_mov_b64 exec, -1
        """)
        a.raw("s_branch PH2")
    elif WARM:
        a("s_load_dwordx2 s[44:45], s[0:1], 112")
        a.wait(vm=0, lg=0)
        a("s_barrier")
        a(f"""
        s_mov_b32 s46, 256
        s_mov_b32 s47, 0x20000
        v_lshlrev_b32 v{t1}, 7, v{lane}
        s_cmp_lg_u32 s20, 0
        """)
        a.raw("s_cbranch_scc1 AX_wait")
        a.raw("s_mov_b64 exec, 1")
        a.raw(f"v_mov_b32 v{t0}, 1")
        a.raw(f"buffer_atomic_add v{t0}, off, s[44:47], 0 offset:{D_AUX}")
        a.raw("AX_poll:")
        a.raw(f"buffer_load_dword v{t2}, off, s[44:47], 0 offset:{D_AUX} sc1")
        a.raw("s_waitcnt vmcnt(0)")
        a.raw(f"v_readfirstlane_b32 s30, v{t2}")
        a.raw("s_nop 1")
        a.raw("s_cmp_eq_u32 s30, 16")
        a.raw("s_cbranch_scc1 AX_ok")
        a.raw("s_sleep 8")
        a.raw("s_branch AX_poll")
        a.raw("AX_ok:")
        a.raw("s_mov_b64 exec, -1")
        a.raw("AX_wait:")
        a.raw("s_barrier")
        a(f"""
        s_sub_u32 s30, s17, 30
        s_mul_i32 s30, s30, {2592*128}
        s_lshl_b32 s31, s20, 13
        s_add_u32 s30, s30, s31
        s_add_u32 s30, s30, {WS_WOF}
        s_mov_b32 s14, {WS_WOF + 663552}
        """)
        for i in range(4):
            a(f"buffer_load_dword v{F[0]+i}, v{t1}, s[12:15], s30 offen")
            if i < 3: a(f"s_add_u32 s30, s30, {12*8192}")
        a.raw("s_endpgm")
    else: a.raw("s_endpgm")
```

```python
from asmlib import *
from layout import *
import struct, os
def fbits(x): return struct.unpack('<I', struct.pack('<f', x))[0]
LOG2E = fbits(1.4426950408889634)
import numpy as np
_c = 1.0/(2*np.pi); C_HI = np.float32(_c); C_LO = np.float32(_c - float(C_HI))
INV2PI_HI = fbits(float(C_HI)); INV2PI_LO = fbits(float(C_LO))

BUF = 4352
SCR0 = 0
SCR1 = 12 * BUF
U_STRIDE = 4608
C_U = 24 * BUF
C_BOX = C_U + 6 * U_STRIDE
C_FL = C_BOX + 2048
C_TAB = C_FL + 256
C_LDS = C_TAB + 3072
L0 = 639; KR_COPY = 1344
GH_COPY = 928
F_P, F_K, F_A, F_M, F_U = 0, 12, 24, 36, 40
SLEEP = int(os.environ.get("CSLEEP", 2))
GATHER_AT = int(os.environ.get("GATHER_AT", 6))
WAITALL = int(os.environ.get("WAITALL", 1))
GSCHED = eval(os.environ.get("GSCHED", "{0:1,1:1,5:1,9:1,13:1}"))

def cmul(a, d, x, y, t):
    a(f"v_pk_mul_f32 v[{t}:{t+1}], v[{x}:{x+1}], v[{y}:{y+1}] op_sel:[0,0] op_sel_hi:[0,1]")
    a(f"v_pk_fma_f32 v[{d}:{d+1}], v[{x}:{x+1}], v[{y}:{y+1}], v[{t}:{t+1}] op_sel:[1,1,0] op_sel_hi:[1,0,1] neg_lo:[1,0,0]")

def gen_conv(a, R):
    t3 = R.get()
    lane = R.get(4, 2); col = lane + 1; rq = lane + 2; t2 = lane + 3
    aT = R.get(4, 2); aT2 = aT + 1; aKF = aT + 2; aHF = aT + 3
    t0 = R.get(); t1 = R.get()
    own = R.get(); prt = R.get(); aU = R.get(); aS = R.get(); oadr = R.get()
    fad = R.get(); flv = R.get(); one = R.get()
    BX = R.get(12, 2)
    rd = R.get(); p0 = R.get(); p1 = R.get(); p3 = R.get(); dt = R.get(); dsk = R.get()
    a.raw("CV_entry:")
    stamp(a, 0)
    a(f"""
    s_setprio 3
    s_load_dwordx16 s[36:51], s[0:1], 32
    s_load_dwordx2 s[4:5], s[0:1], 0
    s_load_dwordx2 s[6:7], s[0:1], 120
    v_and_b32 v{lane}, 63, v0
    s_lshr_b32 s22, s20, 1
    s_and_b32 s23, s20, 1
    s_mul_i32 s24, s21, 6
    s_add_u32 s24, s24, s22
    s_lshl_b32 s25, s24, 8
    s_lshl_b32 s26, s23, 7
    s_add_u32 s27, s25, s26
    s_xor_b32 s26, s26, 128
    s_add_u32 s28, s25, s26
    v_lshlrev_b32 v{p0}, 1, v{lane}
    v_add_u32 v{p1}, s28, v{p0}
    v_add_u32 v{p0}, s27, v{p0}
    s_lshl_b32 s25, s24, 1
    v_mov_b32 v{p3}, s25
    v_and_b32 v{col}, 15, v0
    v_lshrrev_b32 v{rq}, 4, v{lane}
    v_lshlrev_b32 v{fad}, 2, v{lane}
    v_add_u32 v{fad}, {C_FL}, v{fad}
    v_mov_b32 v{one}, 0
    s_mul_i32 s56, s20, {BUF}
    s_mov_b32 m0, s56
    s_xor_b32 s57, s20, 1
    s_and_b32 s60, s20, 14
    s_mul_i32 s60, s60, {BUF}
    s_add_u32 s60, s60, {SCR1}
    s_add_u32 s61, s60, {BUF}
    s_lshl_b32 s62, s23, 6
    s_mul_i32 s64, s22, {U_STRIDE}
    s_add_u32 s64, s64, {C_U + 512}
    """)
    par = R.get(10)
    a(f"global_load_ushort v{dt}, v{p3}, s[48:49]")
    a(f"global_load_ushort v{dsk}, v{p3}, s[50:51]")
    for i in range(6):
        a(f"global_load_ushort v{par+i}, v{p0}, s[{36+2*i}:{37+2*i}]")
    for i in range(4):
        a(f"global_load_ushort v{par+6+i}, v{p1}, s[{40+2*i}:{41+2*i}]")
    R.put(p0); R.put(p1); R.put(p3)
    a(f"""
    s_mov_b32 s8, s4
    s_mov_b32 s9, s5
    s_mov_b32 s10, 2359296
    s_mov_b32 s11, 0x20000
    s_mov_b32 s12, s6
    s_mov_b32 s13, s7
    s_mov_b32 s14, {WS_SIZE}
    s_mov_b32 s15, 0x20000
    """)
    xrow = [R.get(4, 2) for _ in range(8)]
    gad = R.get(); uad = R.get()
    if OFFL:
        a("s_load_dwordx2 s[92:93], s[0:1], 112")
        a("s_cmp_eq_u32 s18, 1")
        a.nopflush(); a.raw("s_cbranch_scc1 CV_pre_done")
    a("s_cmp_lt_u32 s20, 4")
    snG2 = a.branch("s_cbranch_scc1 CV_g2pre")
    a(f"""
    s_sub_u32 s32, s22, 1
    s_sub_u32 s33, s32, s23
    s_sub_u32 s33, s33, 64
    s_lshl_b32 s32, s32, 1
    v_lshl_add_u32 v{t3}, v{lane}, 1, s33
    v_cmp_ge_u32 vcc, s32, v{t3}
    v_mov_b32 v{t0}, 0x3c00
    v_cndmask_b32 v{t2}, 0, v{t0}, vcc
    v_add_u32 v{t3}, 1, v{t3}
    v_cmp_ge_u32 vcc, s32, v{t3}
    v_mov_b32 v{t0}, 0x3c000000
    v_cndmask_b32 v{t3}, 0, v{t0}, vcc
    v_or_b32 v{t2}, v{t2}, v{t3}
    s_lshl_b32 s32, s20, 8
    s_sub_u32 s32, s32, 3072
    v_add_u32 v{t0}, s32, v{fad}
    ds_write_b32 v{t0}, v{t2}
    """)
    pieces = {}
    pieces[0] = f"""
    v_lshrrev_b32 v{t1}, 1, v{rq}
    v_lshlrev_b32 v{t1}, 5, v{t1}
    v_and_b32 v{t2}, 1, v{rq}
    v_lshlrev_b32 v{t2}, 4, v{t2}
    v_sub_u32 v{t3}, v{t2}, v{t1}
    v_lshlrev_b32 v{t1}, 1, v{col}
    v_sub_u32 v{t3}, v{t3}, v{t1}
    v_and_b32 v{t2}, 1, v{col}
    v_cmp_eq_u32 vcc, 0, v{t2}
    v_mov_b32 v{t0}, {KR_COPY + 2}
    v_cndmask_b32 v{t0}, 0, v{t0}, vcc
    v_add_u32 v{t0}, v{t3}, v{t0}
    ds_write_b32 v{fad}, v{one}
    """
    pieces[1] = f"""
    v_lshrrev_b32 v{t1}, 1, v{rq}
    v_lshlrev_b32 v{t1}, 5, v{t1}
    v_and_b32 v{t2}, 1, v{rq}
    v_lshlrev_b32 v{t2}, 4, v{t2}
    v_sub_u32 v{t3}, v{t2}, v{t1}
    v_lshl_add_u32 v{t0}, v{col}, 5, v{t3}
    """
    pieces[2] = f"""
    v_lshlrev_b32 v{t0}, 4, v{rq}
    v_lshlrev_b32 v{t1}, 1, v{col}
    v_sub_u32 v{t0}, v{t0}, v{t1}
    v_and_b32 v{t2}, 1, v{col}
    v_mul_u32_u24 v{t2}, 258, v{t2}
    v_add_u32 v{t0}, v{t0}, v{t2}
    v_add_u32 v{t0}, {C_BOX + 128 - 24}, v{t0}
    """
    pieces[3] = f"""
    v_add_u32 v{t0}, 1, v{col}
    v_and_b32 v{t0}, 3, v{t0}
    v_mul_u32_u24 v{t0}, {GH_COPY + 2}, v{t0}
    v_lshlrev_b32 v{t1}, 1, v{col}
    v_sub_u32 v{t0}, v{t0}, v{t1}
    v_lshl_add_u32 v{t0}, v{rq}, 3, v{t0}
    """
    pieces[4] = f"""
    v_add_u32 v{t1}, 1, v{col}
    v_cmp_eq_u32 vcc, 15, v{col}
    v_cndmask_b32 v{t1}, v{t1}, 32, vcc
    v_add_u32 v{t2}, 16, v{lane}
    v_cmp_eq_u32 vcc, 0, v{rq}
    v_cndmask_b32 v{t1}, v{t1}, v{t2}, vcc
    v_lshlrev_b32 v{t0}, 2, v{t1}
    """
    pieces[5] = f"""
    v_cmp_eq_u32 vcc, 32, v{lane}
    v_lshl_add_u32 v{t1}, v{col}, 1, v{rq}
    v_cndmask_b32 v{t1}, v{t1}, 32, vcc
    v_lshlrev_b32 v{t0}, 4, v{t1}
    """
    pieces[6] = f"""
    v_and_b32 v{t1}, 3, v{col}
    v_mul_u32_u24 v{t1}, 144, v{t1}
    v_lshrrev_b32 v{t2}, 2, v{col}
    v_lshlrev_b32 v{t2}, 5, v{t2}
    v_sub_u32 v{t1}, v{t1}, v{t2}
    v_add_u32 v{t1}, 88, v{t1}
    v_and_b32 v{t2}, 1, v{col}
    v_mul_u32_u24 v{t2}, 176, v{t2}
    v_lshrrev_b32 v{t3}, 1, v{col}
    v_lshlrev_b32 v{t3}, 5, v{t3}
    v_sub_u32 v{t2}, v{t2}, v{t3}
    v_add_u32 v{t2}, {576 + 120 + 128}, v{t2}
    v_cmp_gt_u32 vcc, 8, v{col}
    v_cndmask_b32 v{t1}, v{t2}, v{t1}, vcc
    v_lshlrev_b32 v{t2}, 3, v{rq}
    v_sub_u32 v{t0}, v{t1}, v{t2}
    """
    for i in range(7):
        a(f"s_cmp_lg_u32 s20, {i+4}")
        a.nopflush(); a.raw(f"s_cbranch_scc1 CV_pc{i}")
        a(pieces[i])
        a(f"ds_write_b32 v{fad}, v{t0} offset:{256 + 256*i}")
        a.nopflush(); a.raw("s_branch CV_pre_done")
        a.raw(f"CV_pc{i}:")
    a.raw("s_branch CV_pre_done")
    a.restore("CV_g2pre", snG2)
    a(f"""
    s_mov_b32 s34, s20
    s_add_u32 s32, s20, s17
    s_and_b32 s32, s32, 3
    v_lshl_add_u32 v{gad}, s32, 6, v{lane}
    v_lshlrev_b32 v{uad}, 4, v{gad}
    v_add_u32 v{uad}, {C_U + 512}, v{uad}
    v_mul_u32_u24 v{gad}, 9216, v{gad}
    s_mul_i32 s31, s21, 12
    s_add_u32 s35, s31, 4608
    s_lshr_b32 s33, s17, 2
    """)
    z4 = BX
    a(f"""
    v_mov_b32 v{z4}, 0
    v_mov_b32 v{z4+1}, 0
    v_mov_b32 v{z4+2}, 0
    v_mov_b32 v{z4+3}, 0
    v_lshrrev_b32 v{t0}, 5, v{lane}
    s_min_u32 s32, s34, 2
    s_lshl_b32 s32, s32, 1
    v_add_u32 v{t0}, s32, v{t0}
    v_mul_u32_u24 v{t0}, {U_STRIDE}, v{t0}
    v_and_b32 v{t1}, 31, v{lane}
    v_lshl_add_u32 v{t0}, v{t1}, 4, v{t0}
    v_add_u32 v{t0}, {C_U}, v{t0}
    ds_write_b128 v{t0}, v[{z4}:{z4+3}]
    """)
    a.nopflush()
    a.raw("CV_pre_done:")
    a.last = {}
    a(f"""
    v_mul_u32_u24 v{rd}, 272, v{col}
    v_lshl_add_u32 v{rd}, v{rq}, 4, v{rd}
    v_add_u32 v{rd}, s56, v{rd}
    v_lshlrev_b32 v{t0}, 4, v{lane}
    v_add_u32 v{own}, s56, v{t0}
    s_mul_i32 s58, s57, {BUF}
    v_add_u32 v{prt}, s58, v{t0}
    v_mov_b32 v{one}, 1
    s_lshl_b32 s58, s20, 2
    s_add_u32 s58, s58, {C_FL}
    v_mov_b32 v{oadr}, s58
    """)
    a.wait(lg=0)
    a("s_barrier")
    pollc = [0]
    def poll(mask_sg):
        n = pollc[0]; pollc[0] += 1
        a.nopflush()
        a.raw(f"CV_poll{n}:")
        a.raw(f"ds_read_b32 v{flv}, v{fad}")
        a.raw("s_waitcnt lgkmcnt(0)")
        a.raw(f"v_cmp_eq_u32 vcc, 0, v{flv}")
        a.raw("s_nop 1")
        a.raw(f"s_and_b64 vcc, vcc, s[{mask_sg}:{mask_sg+1}]")
        a.raw(f"s_cbranch_scc0 CV_poll{n}_ok")
        a.raw(f"s_sleep {SLEEP}")
        a.raw(f"s_branch CV_poll{n}")
        a.raw(f"CV_poll{n}_ok:")
        a.lgq = []
    def scale_from_flags():
        a(f"""
        v_readlane_b32 s58, v{flv}, {F_M}
        v_readlane_b32 s59, v{flv}, {F_M+1}
        v_readlane_b32 s68, v{flv}, {F_M+2}
        v_readlane_b32 s69, v{flv}, {F_M+3}
        s_max_u32 s58, s58, s59
        s_max_u32 s68, s68, s69
        s_max_u32 s59, s58, s68
        s_lshr_b32 s59, s59, 23
        s_max_u32 s59, s59, 11
        s_min_u32 s59, s59, 254
        """)
    gcnt = [0]
    def gather1(force=False):
        if OFFL and not force: return
        k = gcnt[0]; gcnt[0] += 1
        if k >= 8: return
        a.raw("s_cmp_ge_u32 s20, 4")
        a.raw(f"s_cbranch_scc1 CV_g{k}_d")
        for r in range(3):
            i = (k + 3 * r) & 7
            if r < 2:
                a.raw(f"s_cmp_lg_u32 s33, {r}")
                a.raw(f"s_cbranch_scc1 CV_g{k}_{r}")
            a.raw(f"buffer_load_dwordx3 v[{xrow[i]}:{xrow[i]+2}], v{gad}, s[8:11], {'s31' if i < 4 else 's35'} offen offset:{(i%4)*1152}")
            if r < 2:
                a.raw(f"s_branch CV_g{k}_d")
                a.raw(f"CV_g{k}_{r}:")
        a.raw(f"CV_g{k}_d:")
    NG0 = int(os.environ.get("NG0", 2))
    if OFFL:
        a.raw("s_mov_b32 s94, 256")
        a.raw("s_mov_b32 s95, 0x20000")
        a.raw("s_cmp_eq_u32 s18, 1")
        a.raw("s_cbranch_scc1 CV_prod0")
        a.raw("s_cmp_lt_u32 s20, 4")
        a.raw("s_cbranch_scc1 CV_xw")
        a.raw("s_setprio 2")
        a.raw("s_cmp_lt_u32 s20, 8")
        a.raw("s_cbranch_scc1 CV_kgen")
        a.raw("CV_prod0:")
        a.raw("s_setprio 1")
        a.raw("CV_kgen:")
        a.raw("s_waitcnt vmcnt(0)")
        a.vmq = []
    else:
        for _ in range(NG0): gather1()
        a.raw("s_cmp_ge_u32 s20, 4")
        a.raw("s_cbranch_scc1 CV_g12")
        a.raw(f"s_waitcnt vmcnt({NG0})")
        a.raw("s_branch CV_kgen")
        a.raw("CV_g12:")
        a.raw("s_waitcnt vmcnt(0)")
        a.vmq = []
        a.raw("s_setprio 2")
        a.raw("s_cmp_lt_u32 s20, 8")
        a.raw("s_cbranch_scc1 CV_kgen")
        a.raw("s_setprio 1")
        a.raw("CV_kgen:")
    def xstage():
        a("s_cmp_ge_u32 s20, 4")
        snX = a.branch("s_cbranch_scc1 CV_nox")
        a(f"""
        s_mov_b32 s58, 0x7fff7fff
        s_mov_b32 s70, 0
        s_mov_b32 s71, 0xf0
        """)
        a.raw("s_waitcnt vmcnt(0)")
        stamp(a, 3)
        m = R.get(2); lo = R.get(24)
        regs = [xrow[i] + p for p in range(3) for i in range(8)]
        a(f"v_max_f32 v{m}, |v{regs[0]}|, |v{regs[1]}|")
        for i in range(2, 24, 2): a(f"v_max3_f32 v{m}, |v{regs[i]}|, |v{regs[i+1]}|, v{m}")
        for i in range(24): a(f"v_lshlrev_b32 v{lo+i}, 16, v{regs[i]}")
        a(f"v_max_f32 v{m+1}, |v{lo}|, |v{lo+1}|")
        for i in range(2, 24, 2): a(f"v_max3_f32 v{m+1}, |v{lo+i}|, |v{lo+i+1}|, v{m+1}")
        a(f"""
        v_max_u32 v{m}, v{m}, v{m+1}
        v_max_u32_dpp v{m}, v{m}, v{m} row_ror:1 row_mask:0xf bank_mask:0xf
        v_max_u32_dpp v{m}, v{m}, v{m} row_ror:2 row_mask:0xf bank_mask:0xf
        v_max_u32_dpp v{m}, v{m}, v{m} row_ror:4 row_mask:0xf bank_mask:0xf
        v_max_u32_dpp v{m}, v{m}, v{m} row_ror:8 row_mask:0xf bank_mask:0xf
        v_readlane_b32 s58, v{m}, 0
        v_readlane_b32 s59, v{m}, 16
        v_readlane_b32 s68, v{m}, 32
        v_readlane_b32 s69, v{m}, 48
        s_max_u32 s58, s58, s59
        s_max_u32 s68, s68, s69
        s_max_u32 s58, s58, s68
        s_or_b32 s58, s58, 1
        v_mov_b32 v{m}, s58
        ds_write_b32 v{oadr}, v{m} offset:{4*F_M}
        """)
        R.put(m, 2)
        poll(70)
        scale_from_flags()
        a("s_sub_u32 s58, 264, s59")
        a("s_lshl_b32 s58, s58, 23")
        f = R.get(8); o2 = R.get(8, 2)
        for c in range(6):
            p = c >> 1; o = o2 + 4 * (c & 1)
            if c & 1:
                for i in range(8): a(f"v_and_b32 v{f+i}, 0xffff0000, v{xrow[i]+p}")
                src = f
            else: src = lo + 8 * p
            for i in range(4): a(f"v_fma_mixlo_f16 v{o+i}, v{src+2*i}, s58, 0")
            for i in range(4): a(f"v_fma_mixhi_f16 v{o+i}, v{src+2*i+1}, s58, 0")
            a(f"ds_write_b128 v{uad}, v[{o}:{o+3}] offset:{c*U_STRIDE}")
        a(f"ds_write_b32 v{oadr}, v{one} offset:{4*F_U}")
        R.put(f, 8); R.put(o2, 8); R.put(lo, 24)
        stamp(a, 4)
        a.nopflush()
        a.raw("CV_nox:")
        a.last = {}
        for x in xrow: R.put(x, 4)
        R.put(gad); R.put(uad)
    a(f"""
    v_lshlrev_b32 v{dt}, 16, v{dt}
    v_mul_f32 v{dt}, {LOG2E}, v{dt}
    v_exp_f32 v{dt}, v{dt}
    v_lshlrev_b32 v{dsk}, 16, v{dsk}
    v_cvt_pk_bf16_f32 v{dt}, v{dt}, v{dt}
    v_readfirstlane_b32 s30, v{dsk}
    v_lshlrev_b32 v{dt}, 16, v{dt}
    """)
    if not OFFL: R.put(dsk)
    pp = R.get(8, 2)
    stamp(a, 1)
    for i in range(8): a(f"v_lshlrev_b32 v{pp+i}, 16, v{par+2+i}")
    are = R.get(); aim = R.get()
    W = R.get(2); W2 = R.get(2); tp = R.get(2)
    a(f"""
    v_lshlrev_b32 v{are}, 16, v{par}
    v_lshlrev_b32 v{aim}, 16, v{par+1}
    v_mul_f32 v{are}, v{dt}, v{are}
    v_mul_f32 v{aim}, v{dt}, v{aim}
    v_mul_f32 v{are}, {LOG2E}, v{are}
    """)
    cmul(a, W, pp+2, pp, tp)
    cmul(a, W2, pp+6, pp+4, tp)
    a(f"""
    v_max_f32 v{t0}, |v{W}|, |v{W+1}|
    v_max3_f32 v{t0}, |v{W2}|, |v{W2+1}|, v{t0}
    v_mul_f32 v{t0}, v{dt}, v{t0}
    s_mov_b32 s54, {INV2PI_HI}
    s_mov_b32 s55, {INV2PI_LO}
    v_max_u32_dpp v{t0}, v{t0}, v{t0} row_ror:1 row_mask:0xf bank_mask:0xf
    v_max_u32_dpp v{t0}, v{t0}, v{t0} row_ror:2 row_mask:0xf bank_mask:0xf
    v_max_u32_dpp v{t0}, v{t0}, v{t0} row_ror:4 row_mask:0xf bank_mask:0xf
    v_max_u32_dpp v{t0}, v{t0}, v{t0} row_ror:8 row_mask:0xf bank_mask:0xf
    v_readlane_b32 s52, v{t0}, 0
    v_readlane_b32 s53, v{t0}, 16
    v_readlane_b32 s68, v{t0}, 32
    v_readlane_b32 s69, v{t0}, 48
    s_max_u32 s52, s52, s53
    s_max_u32 s68, s68, s69
    s_max_u32 s52, s52, s68
    s_lshr_b32 s52, s52, 23
    s_add_u32 s52, s52, 8
    s_bfe_u32 s53, s30, 0x80017
    s_max_u32 s52, s52, s53
    s_max_u32 s52, s52, 14
    s_min_u32 s52, s52, 262
    s_sub_u32 s53, 267, s52
    s_lshl_b32 s53, s53, 23
    """)
    R.put(par, 10); R.put(W2, 2); R.put(pp, 8)
    Y0 = R.get(2); Y1 = R.get(2)
    Yk = {0: Y0}
    Yh = {h: R.get() for h in (0, 2, 4, 6, 8, 10, 12, 14, 16)}
    E = {}
    e3 = R.get()
    for p in (1, 16, 256):
        e = R.get(2); E[p] = e
        if p == 1:
            a(f"v_exp_f32 v{t0}, v{are}"); th = aim
        else:
            a(f"v_mul_f32 v{t0}, {fbits(float(p))}, v{are}")
            a(f"v_mul_f32 v{t1}, {fbits(float(p))}, v{aim}")
            a(f"v_exp_f32 v{t0}, v{t0}"); th = t1
        a(f"""
        v_mul_f32 v{t2}, s54, v{th}
        v_fma_f32 v{e3}, v{th}, s54, -v{t2}
        v_fma_f32 v{e3}, v{th}, s55, v{e3}
        v_fract_f32 v{t2}, v{t2}
        v_add_f32 v{t2}, v{t2}, v{e3}
        v_cos_f32 v{e}, v{t2}
        v_sin_f32 v{e+1}, v{t2}
        v_mul_f32 v{e}, v{e}, v{t0}
        v_mul_f32 v{e+1}, v{e+1}, v{t0}
        """)
    a(f"""
    v_mul_f32 v{W}, v{dt}, v{W}
    v_mul_f32 v{W+1}, v{dt}, v{W+1}
    v_mul_f32 v{Yk[0]}, s53, v{W}
    v_mul_f32 v{Yk[0]+1}, s53, v{W+1}
    """)
    R.put(W, 2); R.put(are); R.put(aim); R.put(dt); R.put(e3)
    for _ in range(GSCHED.get(0, 0)): gather1()
    pk = [R.get() for _ in range(4)]; pki = [0]
    def put_row(buf, row, x, neg, keep=None):
        if keep is None:
            p = pk[pki[0] % 4]; pki[0] += 1
        else: p = keep
        a(f"v_cvt_pk_f16_f32 v{p}, v{x}, {'-' if neg else ''}v{x+1}")
        if row is not None: a(f"ds_write_addtid_b32 v{p} offset:{buf*SCR1 + row*272}")
    def get_frags(buf, dst):
        for ks in range(4):
            a(f"ds_read_b128 v[{dst+4*ks}:{dst+4*ks+3}], v{rd} offset:{buf*SCR1 + ks*64}")
    Z = [R.get(2), R.get(2)]
    Pf = [R.get(2), R.get(2)]
    Ph = {i: R.get() for i in range(1, 8)}
    tq = R.get(2)
    a(f"v_mov_b32 v{pk[3]}, 0x3c00")
    a(f"ds_write_addtid_b32 v{pk[3]} offset:0")
    put_row(0, 1, E[16], False)
    put_row(1, 0, Y0, True, keep=Yh[0])
    put_row(0, None, E[256], True, keep=Ph[1])
    zprev = E[16]; yprev = Y0; pprev = E[256]
    for h in range(1, 17):
        yd = Y1 if h % 2 else Y0
        cmul(a, yd, yprev, E[1], tp)
        if h + 1 <= 15:
            zd = Z[h % 2]
            cmul(a, zd, zprev, E[16], tq)
        if 1 <= h <= 6:
            pd = Pf[h % 2]
            cmul(a, pd, pprev, E[256], pd)
        put_row(1, h if h <= 15 else None, yd, True, keep=Yh.get(h))
        if h + 1 <= 15:
            put_row(0, h + 1, zd, False); zprev = zd
        if 1 <= h <= 6:
            put_row(0, None, pd, True, keep=Ph[h+1]); pprev = pd
        yprev = yd
        for _ in range(GSCHED.get(h, 0)): gather1()
    for x in (Z[0], Z[1], E[1], E[16], E[256], Pf[0], Pf[1], Y0, Y1, tq): R.put(x, 2)
    ZF = R.get(16, 2); AF = R.get(16, 2)
    D = R.get(12, 2)
    get_frags(0, ZF)
    get_frags(1, AF)
    def prod_row(buf, row, y, p):
        d = pk[pki[0] % 4]; pki[0] += 1
        a(f"v_pk_mul_f16 v{d}, v{y}, v{p} op_sel:[0,0] op_sel_hi:[0,1]")
        a(f"v_pk_fma_f16 v{d}, v{y}, v{p}, v{d} op_sel:[1,1,0] op_sel_hi:[1,0,1] neg_lo:[1,0,0]")
        a(f"ds_write_addtid_b32 v{d} offset:{buf*SCR1 + row*272}")
    for h in range(8): prod_row(0, h, Yh[2*h], Ph[1])
    prod_row(0, 8, Yh[0], Ph[2]); prod_row(0, 9, Yh[0], Ph[4])
    gather1()
    for ks in range(4):
        a(f"v_mfma_f32_16x16x32_f16 v[{D}:{D+3}], v[{AF+4*ks}:{AF+4*ks+3}], v[{ZF+4*ks}:{ZF+4*ks+3}], {f'v[{D}:{D+3}]' if ks else 0}")
    get_frags(0, AF)
    for i in range(2):
        for mu in range(1, 5): prod_row(1, 4*i + mu - 1, Yh[4*mu], Ph[2+i])
    for ks in range(4):
        a(f"v_mfma_f32_16x16x32_f16 v[{D+4}:{D+7}], v[{AF+4*ks}:{AF+4*ks+3}], v[{ZF+4*ks}:{ZF+4*ks+3}], {f'v[{D+4}:{D+7}]' if ks else 0}")
    for i in range(4):
        for mu in (1, 2): prod_row(1, 8 + 2*i + mu - 1, Yh[8*mu], Ph[4+i])
    get_frags(1, AF)
    for h in Yh.values(): R.put(h)
    for i in Ph.values(): R.put(i)
    Z4 = R.get(4, 2)
    TB = R.get(7)
    def last_mfma():
        for ks in range(4):
            a(f"v_mfma_f32_16x16x32_f16 v[{D+8}:{D+11}], v[{ZF+4*ks}:{ZF+4*ks+3}], v[{AF+4*ks}:{AF+4*ks+3}], {f'v[{D+8}:{D+11}]' if ks else 0}")
    if OFFL:
        last_mfma()
        a("s_cmp_eq_u32 s18, 0")
        snP = a.branch("s_cbranch_scc1 CV_post")
        a(f"""
        s_lshl_b32 s58, s21, 2
        s_add_u32 s58, s58, s20
        s_mul_i32 s58, s58, 3328
        s_add_u32 s58, s58, {WS_KP}
        v_lshlrev_b32 v{t0}, 4, v{lane}
        v_mov_b32 v{t1}, s52
        buffer_store_dwordx4 v[{D}:{D+3}], v{t0}, s[12:15], s58 offen sc1
        buffer_store_dwordx4 v[{D+4}:{D+7}], v{t0}, s[12:15], s58 offen offset:1024 sc1
        buffer_store_dwordx4 v[{D+8}:{D+11}], v{t0}, s[12:15], s58 offen offset:2048 sc1
        s_mov_b64 exec, 1
        buffer_store_dword v{t1}, off, s[12:15], s58 offset:3072 sc1
        s_mov_b64 exec, -1
        s_and_b32 s59, s21, 3
        s_lshl_b32 s59, s59, 3
        s_lshl_b32 s59, 1, s59
        v_mov_b32 v{t1}, s59
        s_and_b32 s58, s21, 0xfc
        """)
        for _ in range(int(os.environ.get("PBAR", 2))): a.raw("s_barrier")
        a.raw("s_waitcnt vmcnt(0)")
        a.raw("s_barrier")
        a.raw("s_cmp_lg_u32 s20, 0")
        a.raw("s_cbranch_scc1 K1_end")
        a.raw("s_mov_b64 exec, 1")
        a.raw(f"buffer_atomic_add v{t1}, off, s[92:95], s58 offset:{D_KP}")
        a.raw("s_endpgm")
        a.restore("CV_xw", ([], []))
        R.put(ZF, 16); R.put(AF, 16)
        for _ in range(8): gather1(force=True)
        a.raw("s_waitcnt vmcnt(8)")
        a(f"v_lshlrev_b32 v{t0}, 16, v{dsk}")
        a(f"v_readfirstlane_b32 s30, v{t0}")
        R.put(dsk)
        xstage()
        a.flush()
        a.raw("CV_post:")
        a.last = {}; a.lgq = []; a.vmq = []
    for j in range(4): a(f"v_mov_b32 v{Z4+j}, 0")
    for i in range(4):
        a(f"ds_write_b128 v{own}, v[{Z4}:{Z4+3}] offset:{SCR1 + i*1024}")
    a(f"ds_write_addtid_b32 v{Z4} offset:{SCR1 + 4096}")
    a(f"ds_write_b128 v{own}, v[{D}:{D+3}]")
    a(f"ds_write_b128 v{own}, v[{D+4}:{D+7}] offset:1024")
    if not OFFL: last_mfma()
    for i in range(7): a(f"ds_read_b32 v{TB+i}, v{fad} offset:{256 + 256*i}")
    if not OFFL: R.put(ZF, 16); R.put(AF, 16)
    R.put(Z4, 4)
    kA = R.get(); kB = R.get(); kC = R.get(); aB2 = R.get()
    a(f"""
    s_lshl_b64 s[66:67], 1, s57
    s_sub_u32 s63, s60, s62
    s_add_u32 s63, s63, {2*L0 - 9*128}
    s_sub_u32 s65, s64, s62
    s_sub_u32 s65, s65, 384
    s_lshl_b32 s58, s23, 10
    v_add_u32 v{t2}, s58, v{prt}
    ds_write_b128 v{own}, v[{D+8}:{D+11}] offset:2048
    ds_write_b32 v{oadr}, v{one} offset:{4*F_P}
    v_add_u32 v{aT}, s63, v{TB}
    v_add_u32 v{aT2}, 640, v{aT}
    v_add_u32 v{aU}, s65, v{TB+1}
    s_lshl_b32 s65, s23, 9
    s_add_u32 s65, s65, {1024 + 8}
    v_add_u32 v{aB2}, s65, v{TB+2}
    s_mul_i32 s65, s23, 288
    s_add_u32 s65, s65, s61
    v_add_u32 v{aKF}, s65, v{TB+3}
    s_mul_i32 s65, s23, 176
    s_add_u32 s65, s65, s61
    v_add_u32 v{aHF}, s65, v{TB+3}
    v_lshlrev_b32 v{t3}, 5, v{col}
    v_lshl_add_u32 v{aS}, v{rq}, 4, v{t3}
    s_lshl_b32 s65, s23, 4
    s_sub_u32 s65, s64, s65
    s_sub_u32 s65, s65, 32
    v_add_u32 v{aS}, s65, v{aS}
    v_lshl_add_u32 v{t3}, v{rq}, 3, v{t3}
    """)
    def rd16(dst, base, byteoff):
        o = byteoff // 4
        a(f"ds_read2_b32 v[{dst}:{dst+1}], v{base} offset0:{o} offset1:{o+1}")
        a(f"ds_read2_b32 v[{dst+2}:{dst+3}], v{base} offset0:{o+2} offset1:{o+3}")
    rd16(BX, TB+2, 0); rd16(BX+4, TB+2, 520); rd16(BX+8, aB2, 0)
    R.put(aB2)
    stamp(a, 2)
    while gcnt[0] < 8 and not OFFL: gather1()
    poll(66)
    PD = R.get(8, 2)
    if OFFL:
        a("s_cmp_ge_u32 s20, 4")
        a.nopflush(); a.raw("s_cbranch_scc1 CV_local")
        a.raw("s_setprio 0")
        a.raw("s_and_b32 s58, s21, 0xfc")
        a.raw("s_and_b32 s59, s21, 3")
        a.raw("s_lshl_b32 s59, s59, 3")
        a.raw("s_cmp_lg_u32 s20, 0")
        a.raw("s_cbranch_scc1 CV_gp_w")
        a.raw("s_mov_b64 exec, 1")
        a.raw("CV_gp:")
        a.raw(f"buffer_load_dword v{t0}, off, s[92:95], s58 offset:{D_KP} sc1")
        a.raw("s_waitcnt vmcnt(0)")
        a.raw(f"v_readfirstlane_b32 s68, v{t0}")
        a.raw("s_nop 1")
        a.raw("s_lshr_b32 s68, s68, s59")
        a.raw("s_and_b32 s68, s68, 0xff")
        a.raw("s_cmp_eq_u32 s68, 1")
        a.raw("s_cbranch_scc1 CV_gp_ok")
        a.raw("s_sleep 16")
        a.raw("s_branch CV_gp")
        a.raw("CV_gp_ok:")
        a.raw(f"ds_write_b32 v{oadr}, v{one} offset:{4*44}")
        a.raw("s_mov_b64 exec, -1")
        a.raw("CV_gp_w:")
        a.raw("s_mov_b32 s70, 0")
        a.raw("s_mov_b32 s71, 0x1000")
        poll(70)
        a.raw("s_lshl_b32 s58, s21, 2")
        a.raw("s_and_b32 s59, s20, 2")
        a.raw("s_add_u32 s58, s58, s59")
        a.raw("s_mul_i32 s58, s58, 3328")
        a.raw(f"s_add_u32 s58, s58, {WS_KP}")
        a.raw("s_lshl_b32 s59, s23, 10")
        a.raw("s_add_u32 s59, s59, s58")
        a.raw("s_add_u32 s59, s59, 3328")
        a.raw(f"v_lshlrev_b32 v{t0}, 4, v{lane}")
        for T in range(3): a.raw(f"buffer_load_dwordx4 v[{D+4*T}:{D+4*T+3}], v{t0}, s[12:15], s58 offen offset:{1024*T} sc1")
        for T in range(2): a.raw(f"buffer_load_dwordx4 v[{PD+4*T}:{PD+4*T+3}], v{t0}, s[12:15], s59 offen offset:{1024*T} sc1")
        a.raw("s_mov_b64 exec, 1")
        a.raw(f"buffer_load_dword v{t1}, off, s[12:15], s58 offset:3072 sc1")
        a.raw("s_waitcnt vmcnt(0)")
        a.raw(f"v_readfirstlane_b32 s52, v{t1}")
        a.raw("s_mov_b64 exec, -1")
        a.raw("s_nop 1")
        a.raw("s_sub_u32 s53, 267, s52")
        a.raw("s_lshl_b32 s53, s53, 23")
        a.raw("s_branch CV_havep")
        a.raw("CV_local:")
    a(f"ds_read_b128 v[{PD}:{PD+3}], v{t2}")
    a(f"ds_read_b128 v[{PD+4}:{PD+7}], v{t2} offset:1024")
    if OFFL: a.raw("CV_havep:")
    q = R.get(8, 2)
    a("s_cmp_eq_u32 s23, 1")
    snapK = a.branch("s_cbranch_scc1 CV_kfin1")
    a(f"""
    v_sub_u32 v{kA}, s60, v{t3}
    v_mov_b32 v{t1}, s30
    v_mul_f32 v{t1}, s53, v{t1}
    v_cmp_eq_u32 vcc, 0, v{lane}
    v_cndmask_b32 v{t1}, 0, v{t1}, vcc
    v_add_f32 v{D}, v{D}, v{t1}
    v_pk_add_f32 v[{D}:{D+1}], v[{D}:{D+1}], v[{PD}:{PD+1}]
    v_pk_add_f32 v[{D+2}:{D+3}], v[{D+2}:{D+3}], v[{PD+2}:{PD+3}]
    v_cvt_pk_f16_f32 v{q}, v{D+3}, v{D+2}
    v_cvt_pk_f16_f32 v{q+1}, v{D+1}, v{D}
    v_cvt_pk_f16_f32 v{q+2}, v{D+2}, v{D+1}
    ds_write_b64 v{kA}, v[{q}:{q+1}] offset:{2*(L0-3)}
    ds_write_b16 v{kA}, v{q} offset:{KR_COPY + 2*(L0-3) + 2}
    ds_write_b32 v{kA}, v{q+2} offset:{KR_COPY + 2*(L0-3) + 4}
    ds_write_b16_d16_hi v{kA}, v{q+1} offset:{KR_COPY + 2*(L0-3) + 8}
    """)
    a.nopflush()
    a.raw("s_branch CV_kfin_done")
    a.restore("CV_kfin1", snapK)
    a(f"""
    v_sub_u32 v{kB}, s60, v{TB+5}
    v_add_u32 v{kC}, s61, v{TB+6}
    v_cmp_eq_u32 s[68:69], 32, v{lane}
    """)
    for j in range(0, 8, 2): a(f"v_pk_add_f32 v[{D+4+j}:{D+5+j}], v[{D+4+j}:{D+5+j}], v[{PD+j}:{PD+j+1}]")
    c0, c2, c4, c6 = D+4, D+5, D+6, D+7
    c8 = PD
    T2 = D + 8
    a(f"""
    ds_bpermute_b32 v{c8}, v{TB+4}, v{c0}
    v_cvt_pk_f16_f32 v{q}, v{T2+3}, v{T2+2}
    v_cvt_pk_f16_f32 v{q+1}, v{T2+1}, v{T2}
    v_cvt_pk_f16_f32 v{q+2}, v{T2+2}, v{T2+1}
    ds_write_b64 v{kC}, v[{q}:{q+1}]
    ds_write_b16 v{kC}, v{q} offset:{GH_COPY + 2}
    ds_write_b32 v{kC}, v{q+2} offset:{GH_COPY + 4}
    ds_write_b16_d16_hi v{kC}, v{q+1} offset:{GH_COPY + 8}
    ds_write_b32 v{kC}, v{q} offset:{2*GH_COPY + 4}
    ds_write_b32 v{kC}, v{q+1} offset:{2*GH_COPY + 8}
    ds_write_b16 v{kC}, v{q} offset:{3*GH_COPY + 6}
    ds_write_b32 v{kC}, v{q+2} offset:{3*GH_COPY + 8}
    ds_write_b16_d16_hi v{kC}, v{q+1} offset:{3*GH_COPY + 12}
    v_cvt_pk_f16_f32 v{q+7}, v{c2}, v{c2}
    v_cndmask_b32 v{c2}, v{c2}, v{c0}, s[68:69]
    v_cndmask_b32 v{c4}, v{c4}, 0, s[68:69]
    v_cndmask_b32 v{c6}, v{c6}, 0, s[68:69]
    v_cndmask_b32 v{c8}, v{c8}, 0, s[68:69]
    v_cvt_pk_f16_f32 v{T2}, v{c8}, v{c6}
    v_cvt_pk_f16_f32 v{T2+1}, v{c4}, v{c4}
    v_cvt_pk_f16_f32 v{T2+2}, v{c4}, v{c2}
    v_cvt_pk_f16_f32 v{T2+3}, v{c0}, v{c0}
    v_mov_b32 v{q+4}, v{T2+1}
    v_cvt_pk_f16_f32 v{q+5}, v{c2}, v{c0}
    v_cvt_pk_f16_f32 v{q+6}, v{c6}, v{c4}
    v_mov_b32 v{t2}, s60
    s_mov_b32 exec_hi, 1
    ds_write_b128 v{kB}, v[{T2}:{T2+3}] offset:{2*(L0-256-7)}
    ds_write_b16 v{kB}, v{T2} offset:{KR_COPY + 2*(L0-256-7) + 2}
    ds_write_b32 v{kB}, v{q+6} offset:{KR_COPY + 2*(L0-256-7) + 4}
    ds_write_b64 v{kB}, v[{q+4}:{q+5}] offset:{KR_COPY + 2*(L0-256-7) + 8}
    ds_write_b16 v{kB}, v{T2+3} offset:{KR_COPY + 2*(L0-256-7) + 16}
    s_mov_b32 exec_lo, 0
    ds_write_b16 v{t2}, v{q+7} offset:{2*(L0-580)}
    ds_write_b16 v{t2}, v{q+7} offset:{2*(L0-579)}
    ds_write_b32 v{t2}, v{q+7} offset:{KR_COPY + 2*(L0-580) + 2}
    s_mov_b64 exec, -1
    """)
    a.nopflush()
    a.raw("CV_kfin_done:")
    a.last = {}
    a(f"""
    ds_write_b32 v{oadr}, v{one} offset:{4*F_K}
    s_lshl_b64 s[66:67], s[66:67], {F_K}
    """)
    R.put(q, 8); R.put(D, 12); R.put(PD, 8); R.put(TB, 7)
    for p in pk: R.put(p)
    R.put(rd); R.put(tp, 2); R.put(kA); R.put(kB); R.put(kC)
    if not OFFL: xstage()
    poll(66)
    TK = R.get(40, 2); KF = R.get(12, 2); HF = R.get(10, 2)
    acc = R.get(32, 2)
    NU = 6
    UF = [R.get(4, 2) for _ in range(4)] + [aT, lane]
    US = R.get(4, 2)
    S1 = R.get(12, 2)
    W2f = R.get(4, 2); W3f = R.get(4, 2)
    gam = list(range(-3, 29))
    def ldU(i):
        if i < len(gam):
            a(f"ds_read_b128 v[{UF[i%NU]}:{UF[i%NU]+3}], v{aU} offset:{(gam[i]+3)*128}")
    for sg in range(10):
        o = (9 - sg) * 32; base = aT
        if o >= 160: base = aT2; o -= 160
        a(f"ds_read2_b32 v[{TK+4*sg}:{TK+4*sg+1}], v{base} offset0:{o} offset1:{o+1}")
        a(f"ds_read2_b32 v[{TK+4*sg+2}:{TK+4*sg+3}], v{base} offset0:{o+2} offset1:{o+3}")
    for ai, aa in enumerate((2, 3, 4)):
        a(f"ds_read_b64 v[{KF+4*ai}:{KF+4*ai+1}], v{aKF} offset:{2*(79 - 16*aa)}")
        a(f"ds_read_b64 v[{KF+4*ai+2}:{KF+4*ai+3}], v{aKF} offset:{144 + 2*(79 - 16*aa)}")
    for aa in (7, 6, 5, 4):
        a(f"ds_read_b64 v[{HF+2*(7-aa)}:{HF+2*(7-aa)+1}], v{aHF} offset:{576 + 2*(127 - 16*aa)}")
    a(f"v_mov_b32 v{HF+8}, 0"); a(f"v_mov_b32 v{HF+9}, 0")
    a(f"s_mov_b32 s66, {0xfff if WAITALL else 0}")
    a("s_mov_b32 s67, 0xf00")
    poll(66)
    stamp(a, 5)
    if os.environ.get("MPRIO"): a(f"s_setprio {os.environ['MPRIO']}")
    a(f"ds_read_b128 v[{US}:{US+3}], v{aS}")
    for i in range(NU - 1): ldU(i)
    scale_from_flags()
    a(f"""
    s_add_u32 s59, s59, s52
    s_sub_u32 s59, s59, 277
    s_lshl_b64 s[66:67], 1, s57
    s_lshl_b64 s[66:67], s[66:67], {F_A}
    """)
    fillers = []
    inited = set()
    def fill(n):
        for _ in range(n):
            if fillers: a(fillers.pop(0))
    def mm(J, A, B, nf=1):
        c = f"v[{acc+4*J}:{acc+4*J+3}]"
        a(f"v_mfma_f32_16x16x32_f16 {c}, v[{A}:{A+3}], v[{B}:{B+3}], {c if J in inited else 0}")
        inited.add(J)
        fill(nf)
    def direct(i, nf=1):
        g = gam[i]
        ldU(i + NU - 1)
        for J in range(8):
            sg = 4*J - g
            if 0 <= sg <= 8: mm(J, TK + 4*sg, UF[i % NU], nf)
            if sg == 16: mm(J, TK + 36, UF[i % NU], nf)
    di = 0
    for b in range(6):
        nf0 = 4 if b == 0 else 1
        a(f"v_mfma_f32_16x16x32_f16 v[{S1}:{S1+3}], v[{US}:{US+3}], v[{BX}:{BX+3}], 0"); fill(nf0)
        a(f"v_mfma_f32_16x16x32_f16 v[{S1+4}:{S1+7}], v[{US}:{US+3}], v[{BX+4}:{BX+7}], 0"); fill(nf0)
        if b < 4:
            a(f"v_mfma_f32_16x16x32_f16 v[{S1+8}:{S1+11}], v[{US}:{US+3}], v[{BX+8}:{BX+11}], 0"); fill(nf0)
        if b < 5: a(f"ds_read_b128 v[{US}:{US+3}], v{aS} offset:{512*(b+1)}")
        for _ in range(2): direct(di, 3 if b == 0 else 1); di += 1
        fill(len(fillers))
        cv = [f"v_cvt_pk_f16_f32 v{W2f+j}, v{S1+2*j}, v{S1+2*j+1}" for j in range(4)]
        if b < 4:
            cv += [f"v_cvt_pk_f16_f32 v{W3f+2*(b&1)}, v{S1+8}, v{S1+9}", f"v_cvt_pk_f16_f32 v{W3f+2*(b&1)+1}, v{S1+10}, v{S1+11}"]
        fillers.extend(cv)
        for _ in range(3): direct(di); di += 1
        fill(len(fillers))
        for ai, aa in enumerate((2, 3, 4)):
            if b + aa <= 7: mm(b + aa, W2f, KF + 4*ai)
        if b in (1, 3):
            Bq = b >> 1
            for aa in (4, 5, 6, 7):
                if aa + 2*Bq <= 7: mm(aa + 2*Bq, W3f, HF + 2*(7-aa))
    while di < len(gam): direct(di); di += 1
    assert len(inited) == 8
    for x in UF[:4]: R.put(x, 4)
    R.put(US, 4); R.put(S1, 12); R.put(W2f, 4); R.put(W3f, 4); R.put(TK, 40); R.put(BX, 12); R.put(KF, 12); R.put(HF, 10)
    stamp(a, 6)
    a(f"""
    s_mul_i32 s65, s23, {32*36864}
    s_lshl_b32 s63, s24, 6
    s_add_u32 s63, s63, s65
    s_add_u32 s63, s63, {WS_BT}
    v_lshrrev_b32 v{t0}, 6, v{t3}
    v_mul_u32_u24 v{t0}, 36800, v{t0}
    v_add_u32 v{t3}, v{t3}, v{t0}
    """)
    PA = R.get(16, 2)
    def tail(w):
        keep = acc + 16*w; send = acc + 16*(1-w)
        for j in range(4):
            a(f"ds_write_b128 v{own}, v[{send+4*j}:{send+4*j+3}] offset:{j*1024}")
        a(f"ds_write_b32 v{oadr}, v{one} offset:{4*F_A}")
        poll(66)
        stamp(a, 7)
        for j in range(4):
            a(f"ds_read_b128 v[{PA+4*j}:{PA+4*j+3}], v{prt} offset:{j*1024}")
        for j in range(4):
            k = keep + 4*j
            for e in range(4): a(f"v_add_f32 v{k+e}, v{k+e}, v{PA+4*j+e}")
            for e in range(4): a(f"v_ldexp_f32 v{k+e}, v{k+e}, s59")
            a(f"""
            v_cvt_pk_bf16_f32 v{k}, v{k}, v{k+1}
            v_cvt_pk_bf16_f32 v{k+1}, v{k+2}, v{k+3}
            buffer_store_dwordx2 v[{k}:{k+1}], v{t3}, s[12:15], s63 offen{SC}
            s_add_u32 s63, s63, {8*36864}
            """)
        stamp(a, 8)
        stamp_dump(a, 9, 12, 20, t0, t1)
        if MERGE:
            a("s_mul_hi_u32 s19, s21, 178956971")
            a("s_lshl_b32 s19, s19, 2"); a(f"s_add_u32 s19, s19, {D_CONV}"); a("s_mov_b32 s18, 23"); a.raw("s_branch PH2")
        else: a.raw("s_endpgm")
    a("s_cmp_eq_u32 s23, 1")
    snapE = a.branch("s_cbranch_scc1 CV_tail1")
    tail(0)
    a.restore("CV_tail1", snapE)
    tail(1)
```

```python
from asmlib import *
import os
from layout import *
from k1_conv import LOG2E

ASLOT = 16384
BSLOT = 24576
if OFFL:
    ABASE = 17408; AOFF = [0, 16384, 52224]; BRING = 86016; G_KVI = 0
else:
    ABASE = 0; AOFF = [0, 16384, 32768]; BRING = 3 * ASLOT; G_KVI = BRING + 3 * BSLOT
KVI_H = 7424
G_LDS = G_KVI + 2 * KVI_H
EPS = 0x358637bd
AZ = int(os.environ.get('AZ', 1))

def lanemask(f):
    m = 0
    for l in range(64):
        if f(l & 15, l >> 4): m |= 1 << l
    return m
MASKS = {}
def set_exec(a, m):
    if m in MASKS:
        a(f"s_mov_b64 exec, s[{MASKS[m]}:{MASKS[m]+1}]"); return
    a(f"s_mov_b32 exec_lo, {m & 0xffffffff:#x}")
    a(f"s_mov_b32 exec_hi, {m >> 32:#x}")
def preload_masks(a, ms, base):
    for i, m in enumerate(ms):
        MASKS[m] = base + 2*i
        a(f"s_mov_b32 s{base+2*i}, {m & 0xffffffff:#x}")
        a(f"s_mov_b32 s{base+2*i+1}, {m >> 32:#x}")

def gen_gemm(a, R):
    a(f"s_cmp_ge_u32 s20, {9 if MERGE else 8}")
    a("s_cbranch_scc1 GM_exit")
    if MERGE:
        a("s_cmp_lg_u32 s20, 8")
        a("s_cbranch_scc1 GM_not8")
        for _ in range(11): a.raw("s_barrier")
        a.raw("s_branch PH2")
        a.raw("GM_not8:")
    lane = R.get(); t0 = R.get(); t1 = R.get(); t2 = R.get(); t3 = R.get()
    stamp(a, 0)
    a(f"""
    s_load_dwordx4 s[4:7], s[0:1], 0
    s_load_dwordx4 s[36:39], s[0:1], 112
    v_and_b32 v{lane}, 63, v0
    s_sub_u32 s21, s17, 12
    s_and_b32 s22, s16, 3
    s_lshl_b32 s22, s22, 2
    s_lshr_b32 s23, s16, 2
    s_and_b32 s24, s21, 3
    s_lshr_b32 s25, s21, 2
    s_lshl_b32 s26, s23, 1
    s_add_u32 s26, s26, s24
    s_mul_i32 s27, s23, 5
    s_add_u32 s27, s27, s25
    s_cmp_ge_u32 s21, 16
    s_cselect_b32 s24, s26, s24
    s_cselect_b32 s27, 4, s27
    s_add_u32 s28, s22, s24
    s_add_u32 s29, s24, s25
    s_lshl_b32 s29, s29, 1
    s_cmp_ge_u32 s29, 9
    s_cselect_b32 s30, 9, 0
    s_sub_u32 s29, s29, s30
    """)
    NP = int(os.environ.get("NP", 0)); NR = 9 - NP
    if NP: a(f"""
    s_mul_i32 s29, s24, 3
    s_lshr_b32 s29, s29, 1
    s_add_u32 s29, s29, s25
    s_cmp_ge_u32 s29, {NR}
    s_cselect_b32 s30, {NR}, 0
    s_sub_u32 s29, s29, s30
    """)
    def st_calc(s):
        if s < NP: return f"s_mov_b32 s56, {s}"
        return f"""s_add_u32 s56, s29, {s - NP}
        s_cmp_ge_u32 s56, {NR}
        s_cselect_b32 s60, {NR}, 0
        s_sub_u32 s56, s56, s60
        s_add_u32 s56, s56, {NP}"""
    def srd_setup():
        a(f"""
    s_mov_b32 s8, s4
    s_mov_b32 s9, s5
    s_mov_b32 s10, 2359296
    s_mov_b32 s11, 0x20000
    s_mov_b32 s12, s6
    s_mov_b32 s13, s7
    s_mov_b32 s14, 1990656
    s_mov_b32 s15, 0x20000
    s_mov_b32 s40, s38
    s_mov_b32 s41, s39
    s_mov_b32 s42, {WS_SIZE}
    s_mov_b32 s43, 0x20000
    s_mov_b32 s44, s36
    s_mov_b32 s45, s37
    s_mov_b32 s46, 256
    s_mov_b32 s47, 0x20000
    """)
    a("s_cmp_lt_u32 s20, 4")
    snapC = a.branch("s_cbranch_scc1 GM_cons")
    vA = R.get(4); vB = R.get(6)
    a(f"""
    s_sub_u32 s48, s20, 4
    v_lshrrev_b32 v{t0}, 3, v{lane}
    v_mul_u32_u24 v{t0}, 1152, v{t0}
    v_and_b32 v{t1}, 7, v{lane}
    v_bfe_u32 v{t2}, v{lane}, 4, 1
    v_xor_b32 v{t1}, v{t1}, v{t2}
    v_lshl_add_u32 v{vA}, v{t1}, 4, v{t0}
    v_xor_b32 v{vA+1}, 32, v{vA}
    v_xor_b32 v{vA+2}, 64, v{vA}
    v_xor_b32 v{vA+3}, 0x60, v{vA}
    s_lshl_b32 s49, s28, 7
    s_lshl_b32 s50, s48, 5
    s_add_u32 s49, s49, s50
    s_mul_i32 s49, s49, 1152
    s_lshl_b32 s50, s48, 12
    s_mul_i32 s51, s48, {16*3456}
    s_mul_i32 s52, s48, {16*384}
    s_add_u32 s52, s52, {BRING}
    """)
    a(f"""
    s_mul_i32 s53, s27, 144
    s_add_u32 s54, s53, {2304 - 144}
    s_add_u32 s53, s53, 1152
    s_mul_i32 s55, s27, 96
    s_sub_u32 s55, s55, 288
    s_cmp_eq_u32 s27, 8
    s_cselect_b32 s53, 768, s53
    s_cselect_b32 s54, 768, s54
    s_cselect_b32 s55, 768, s55
    """)
    def stage_st(s):
        a(st_calc(s))
        a(f"""
        s_lshl_b32 s57, s56, 7
        s_add_u32 s57, s57, s49
        s_mul_i32 s58, s56, {64*3456}
        s_add_u32 s58, s58, s51
        """)
    def issueA(s):
        for i in range(4):
            a(f"""
            s_add_u32 s59, s57, {8*i*1152}
            s_add_u32 m0, s50, {ABASE + AOFF[s % 3] + i*1024}
            buffer_load_dwordx4 v{vA + i}, s[8:11], s59 offen lds
            """)
    def issueB(s, i):
        a(f"""
        s_add_u32 m0, s52, {(s % 3)*BSLOT + i*1024}
        buffer_load_dwordx4 v{vB + i}, s[12:15], s58 offen lds
        """)
    stage_st(0)
    a("s_mov_b32 s60, 2731")
    def calcB(i):
        a(f"""
        v_add_u32 v{t0}, {64*i}, v{lane}
        v_mul_lo_u32 v{t1}, v{t0}, s60
        v_lshrrev_b32 v{t1}, 16, v{t1}
        v_mul_u32_u24 v{t2}, 24, v{t1}
        v_sub_u32 v{t0}, v{t0}, v{t2}
        v_and_b32 v{t2}, 2, v{t1}
        v_lshrrev_b32 v{t3}, 1, v{t1}
        v_and_b32 v{t3}, 4, v{t3}
        v_or_b32 v{t2}, v{t2}, v{t3}
        v_xor_b32 v{t0}, v{t0}, v{t2}
        v_mov_b32 v{t2}, s53
        v_mov_b32 v{t3}, s54
        v_cmp_lt_u32 vcc, 8, v{t0}
        v_cndmask_b32 v{t2}, v{t2}, v{t3}, vcc
        v_mov_b32 v{t3}, s55
        v_cmp_lt_u32 vcc, 17, v{t0}
        v_cndmask_b32 v{t2}, v{t2}, v{t3}, vcc
        v_lshl_add_u32 v{t2}, v{t0}, 4, v{t2}
        v_mul_u32_u24 v{t1}, 3456, v{t1}
        v_add_u32 v{vB+i}, v{t1}, v{t2}
        """)
    calcB(0); calcB(1)
    srd_setup()
    issueA(0)
    issueB(0, 0); issueB(0, 1)
    for i in range(2, 6):
        calcB(i); issueB(0, i)
    stamp(a, 1)
    a("s_barrier")
    for s in (1,):
        stage_st(s); issueA(s)
        for i in range(6): issueB(s, i)
    gA = R.get(); gacc = R.get(2); gx = R.get(32, 4); ga = R.get(8)
    a(f"""
    s_load_dwordx2 s[62:63], s[0:1], 96
    s_cmp_eq_u32 s27, 8
    s_cselect_b32 s61, s48, 9
    v_bfe_u32 v{t0}, v{lane}, 1, 1
    v_lshrrev_b32 v{t1}, 2, v{lane}
    v_and_b32 v{t1}, 6, v{t1}
    v_or_b32 v{t0}, v{t0}, v{t1}
    v_lshlrev_b32 v{t0}, 4, v{t0}
    v_lshl_add_u32 v{gA}, v{lane}, 7, v{t0}
    s_lshl_b32 s60, s48, 13
    v_add_u32 v{gA}, s60, v{gA}
    v_mov_b32 v{gacc}, 0
    v_mov_b32 v{gacc+1}, 0
    """)
    a.wait(lg=0)
    def gate_ld(s):
        for l in st_calc(s).split("\n"): a.raw(l.strip())
        for l in f"""s_lshl_b32 s56, s56, 7
        s_load_dwordx16 s[64:79], s[62:63], s56
        s_add_u32 s56, s56, 64
        s_load_dwordx16 s[80:95], s[62:63], s56""".split("\n"): a.raw(l.strip())
    def gate(s):
        a("s_cmp_ge_u32 s61, 2")
        sn = a.branch(f"s_cbranch_scc1 GM_nogate{s}")
        a(f"v_add_u32 v{ga}, {ABASE + AOFF[s % 3]}, v{gA}")
        for c in range(1, 8): a(f"v_xor_b32 v{ga+c}, {16*c}, v{ga}")
        for c in range(8): a(f"ds_read_b128 v[{gx+4*c}:{gx+4*c+3}], v{ga+c}")
        a.wait(lg=0)
        for i in range(32): a(f"v_dot2c_f32_bf16 v{gacc+(i&1)}, s{64+i}, v{gx+i}")
        if s < 8: gate_ld(s + 1)
        a.merge(f"GM_nogate{s}", sn)
    stamp(a, 2)
    a.wait(vm=10)
    stamp(a, 3)
    if STAMPS: stamp_dump(a, 4, 40, 20, t0, t1); a.raw("s_mov_b64 exec, -1")
    gate_ld(0)
    a("s_barrier")
    stage_st(2); issueA(2)
    for i in range(6): issueB(2, i)
    for s in range(8):
        gate(s)
        a.wait(vm=10 if s + 2 <= 8 else 0)
        a("s_barrier")
        if OFFL and s == 4:
            for j in range(4): a(f"v_mov_b32 v{gx+j}, 0")
            a(f"v_lshlrev_b32 v{t0}, 4, v0")
            a(f"v_subrev_u32 v{t0}, 4096, v{t0}")
            for i in range(4): a(f"ds_write_b128 v{t0}, v[{gx}:{gx+3}] offset:{4096*i}")
            a.wait(lg=0)
        if s + 3 <= 8 and not os.environ.get("NOLOAD"):
            stage_st(s + 3); issueA(s + 3)
            for i in range(6): issueB(s + 3, i)
    gate(8)
    a("s_cmp_ge_u32 s61, 2")
    a(f"s_cbranch_scc1 {'GM_ld_end' if MERGE else 'GM_exit'}")
    a("s_nop 3")
    a(f"""
    v_add_f32 v{gacc}, v{gacc}, v{gacc+1}
    v_cvt_pk_bf16_f32 v{gacc}, v{gacc}, v{gacc}
    v_lshlrev_b32 v{gacc}, 16, v{gacc}
    v_mul_f32 v{gacc}, {LOG2E}, v{gacc}
    v_exp_f32 v{gacc}, -v{gacc}
    v_add_f32 v{gacc}, 1.0, v{gacc}
    v_rcp_f32 v{gacc}, v{gacc}
    v_cvt_pk_bf16_f32 v{gacc}, v{gacc}, v{gacc}
    v_lshlrev_b32 v{gacc}, 16, v{gacc}
    v_lshlrev_b32 v{t0}, 2, v{lane}
    s_lshl_b32 s56, s28, 9
    s_lshl_b32 s60, s48, 8
    s_add_u32 s56, s56, s60
    s_add_u32 s56, s56, {WS_G}
    buffer_store_dword v{gacc}, v{t0}, s[40:43], s56 offen{SC}
    """)
    if MERGE:
        a.raw("GM_ld_end:")
        a.raw("s_barrier")
        a.raw("s_branch PH2")
    else: a.raw("s_endpgm")
    R.put(gA); R.put(gacc, 2); R.put(gx, 32); R.put(ga, 8)
    R.put(vA, 4); R.put(vB, 6)
    a.restore("GM_cons", snapC)
    col = R.get(); rq = R.get()
    acc = R.get(96, 4)
    AF = [R.get(16, 4), R.get(16, 4)]
    BF = R.get(24, 4)
    aA = R.get(2); aB = R.get(6)
    ac = lambda mt, T: acc + 4 * (mt * 6 + T)
    srd_setup()
    if not AZ:
        tk = AF[1]
        a(f"""
        s_mov_b32 s61, 1
        s_lshl_b32 s31, s27, 2
        v_mov_b32 v{tk}, 1
        v_mov_b32 v{tk+1}, 0
        s_cmp_eq_u32 s27, 8
        s_cselect_b32 s62, 1, s20
        s_cmp_lg_u32 s62, 0
        """)
        snapT = a.branch("s_cbranch_scc1 GM_notick")
        a.raw("s_mov_b64 exec, 1")
        a.raw(f"buffer_atomic_add v{tk}, v{tk+1}, s[44:47], s31 offen sc0")
        a.raw("s_mov_b64 exec, -1")
        a.merge("GM_notick", snapT)
    if not OFFL:
        zz = AF[0]
        for j in range(4): a(f"v_mov_b32 v{zz+j}, 0")
        a(f"v_lshlrev_b32 v{t0}, 4, v0")
        a(f"v_add_u32 v{t0}, {G_KVI}, v{t0}")
        for i in range(3): a(f"ds_write_b128 v{t0}, v[{zz}:{zz+3}] offset:{4096*i}")
        a("v_cmp_gt_u32 vcc, 160, v0")
        a("s_and_saveexec_b64 s[32:33], vcc")
        a(f"ds_write_b128 v{t0}, v[{zz}:{zz+3}] offset:12288")
        a("s_mov_b64 exec, -1")
    a(f"""
    s_and_b32 s48, s20, 1
    s_lshr_b32 s49, s20, 1
    v_and_b32 v{col}, 15, v{lane}
    v_lshrrev_b32 v{rq}, 4, v{lane}
    v_lshrrev_b32 v{t0}, 1, v{col}
    v_xor_b32 v{t0}, v{t0}, v{rq}
    v_lshlrev_b32 v{t0}, 4, v{t0}
    v_and_b32 v{t1}, 12, v{col}
    v_add_u32 v{t1}, v{t1}, v{col}
    v_lshl_add_u32 v{t0}, v{t1}, 7, v{t0}
    s_lshl_b32 s50, s48, 13
    s_add_u32 s50, s50, {ABASE}
    v_add_u32 v{aA}, s50, v{t0}
    v_xor_b32 v{aA+1}, 64, v{aA}
    """)
    rr = BF; cc = BF + 1; gg = BF + 2
    a(f"""
    v_lshrrev_b32 v{rr}, 2, v{lane}
    v_and_b32 v{rr}, 3, v{rr}
    v_and_b32 v{cc}, 3, v{lane}
    v_and_b32 v{gg}, 2, v{rr}
    v_and_b32 v{t0}, 1, v{rq}
    v_lshl_or_b32 v{gg}, v{t0}, 2, v{gg}
    v_lshl_add_u32 v{rr}, v{rq}, 3, v{rr}
    v_mul_u32_u24 v{rr}, 384, v{rr}
    v_add_u32 v{rr}, {BRING}, v{rr}
    s_mul_i32 s51, s49, 9
    s_mul_i32 s52, s49, 6
    s_mul_i32 s53, s49, 24
    s_cmp_eq_u32 s27, 8
    s_cselect_b64 s[54:55], -1, 0
    """)
    for T in range(6):
        if T < 4:
            a(f"v_add_u32 v{t0}, s51, v{cc}")
            k = [0, 5, 18, 23][T]
            if k: a(f"v_add_u32 v{t0}, {k}, v{t0}")
        elif T == 5:
            a(f"v_add_u32 v{t0}, s52, v{cc}"); a(f"v_add_u32 v{t0}, 38, v{t0}")
        else:
            a(f"""
            v_mul_u32_u24 v{t0}, 18, v{cc}
            v_add_u32 v{t0}, s51, v{t0}
            v_add_u32 v{t0}, 4, v{t0}
            v_add_u32 v{t1}, s52, v{cc}
            v_add_u32 v{t1}, 34, v{t1}
            v_cmp_lt_u32 vcc, 1, v{cc}
            v_cndmask_b32 v{t0}, v{t0}, v{t1}, vcc
            """)
        a(f"""
        v_add_u32 v{t1}, s53, v{cc}
        v_add_u32 v{t1}, {4*T}, v{t1}
        v_cndmask_b32 v{t0}, v{t0}, v{t1}, s[54:55]
        v_lshrrev_b32 v{t1}, 1, v{t0}
        v_xor_b32 v{t1}, v{t1}, v{gg}
        v_and_b32 v{t0}, 1, v{t0}
        v_lshlrev_b32 v{t0}, 3, v{t0}
        v_lshl_add_u32 v{t0}, v{t1}, 4, v{t0}
        v_add_u32 v{aB+T}, v{rr}, v{t0}
        """)
    a(f"""
    v_mov_b32 v{t2}, {EPS:#x}
    v_cndmask_b32 v{t0}, 0, v{t2}, s[54:55]
    v_lshrrev_b32 v{t3}, 2, v{col}
    v_cmp_eq_u32 vcc, 1, v{t3}
    v_cndmask_b32 v{t1}, v{t2}, v{t0}, vcc
    """)
    for mt in range(4):
        for T in range(6):
            src = t0 if T in (2, 3) else (t1 if T == 4 else t2)
            for j in range(4): a(f"v_mov_b32 v{ac(mt,T)+j}, v{src}")
    if not STAMPS:
        preload_masks(a, [lanemask(f) for f in (lambda c, r: (c >> 2) != 1, lambda c, r: r == 1, lambda c, r: r == 2, lambda c, r: c < 2, lambda c, r: c in (2, 3),
            lambda c, r: r == 1 and c < 2, lambda c, r: r == 1 and c in (2, 3), lambda c, r: r == 2 and c < 2, lambda c, r: r == 2 and c in (2, 3), lambda c, r: c >= 8)], 66)
    a.raw("s_barrier")
    if not AZ:
        a.raw("s_waitcnt vmcnt(0)")
        a(f"v_readfirstlane_b32 s61, v{tk}")
        a("s_cmp_lg_u32 s61, 0")
        snapZ = a.branch("s_cbranch_scc1 GM_nozero")
        Z4 = BF
        for j in range(4): a(f"v_mov_b32 v{Z4+j}, 0")
        a(f"""
        v_lshlrev_b32 v{Z4+4}, 4, v{lane}
        s_mul_i32 s33, s27, 7296
        s_add_u32 s33, s33, {WS_KVS}
        """)
        for i in range(7):
            a.raw(f"buffer_store_dwordx4 v[{Z4}:{Z4+3}], v{Z4+4}, s[40:43], s33 offen sc1")
            a.raw("s_add_u32 s33, s33, 1024")
        a.raw("s_mov_b64 exec, 0xff")
        a.raw(f"buffer_store_dwordx4 v[{Z4}:{Z4+3}], v{Z4+4}, s[40:43], s33 offen sc1")
        a.raw("s_mov_b64 exec, -1")
        a.raw("s_nop 2")
        a.merge("GM_nozero", snapZ)
    def setflag():
        a("s_cmp_lg_u32 s61, 0")
        sn = a.branch("s_cbranch_scc1 GM_noflag", rawblock=True)
        a.raw("s_waitcnt vmcnt(0)")
        a.raw("s_mov_b64 exec, 1")
        a.raw(f"v_mov_b32 v{t0}, 1")
        a.raw(f"v_mov_b32 v{t1}, 0")
        a.raw(f"buffer_atomic_add v{t0}, v{t1}, s[44:47], s31 offen offset:64")
        a.raw("s_mov_b64 exec, -1")
        a.merge("GM_noflag", sn, rawblock=True)
    def ldA1(t, mt):
        f = AF[t & 1]
        return f"ds_read_b128 v[{f+4*mt}:{f+4*mt+3}], v{aA + (t & 1)} offset:{AOFF[(t>>1)%3] + (mt>>1)*4096 + (mt&1)*512}"
    def ldB1(t, T, h):
        o = ((t >> 1) % 3) * BSLOT + (t & 1) * 32 * 384 + h * 4 * 384
        return f"ds_read_b64_tr_b16 v[{BF+4*T+2*h}:{BF+4*T+2*h+1}], v{aB+T} offset:{o}"
    a.wait(lg=0)
    a("s_barrier")
    stamp(a, 1)
    for mt in range(4): a(ldA1(0, mt))
    for T in range(6):
        a(ldB1(0, T, 0)); a(ldB1(0, T, 1))
    for t in range(18):
        f = AF[t & 1]
        if t == 4: stamp(a, 6)
        if t == 10: stamp(a, 7)
        fill = {g: [] for g in range(24)}
        if t > 0:
            fill[0].append(ldB1(t, 5, 0)); fill[1].append(ldB1(t, 5, 1))
        if t < 17:
            n = t + 1
            if t & 1 == 0:
                for T in range(5):
                    fill[4*(T+1)].append(ldB1(n, T, 0)); fill[4*(T+1)+1].append(ldB1(n, T, 1))
                for mt in range(4): fill[6 + 4*mt].append(ldA1(n, mt))
            else:
                fill[7].append("BAR")
                seq = [ldB1(n, 0, 0), ldB1(n, 0, 1), ldA1(n, 0), ldA1(n, 1), ldB1(n, 1, 0), ldB1(n, 1, 1), ldA1(n, 2), ldA1(n, 3),
                       ldB1(n, 2, 0), ldB1(n, 2, 1), ldB1(n, 3, 0), ldB1(n, 3, 1), ldB1(n, 4, 0), ldB1(n, 4, 1)]
                for i, x in enumerate(seq): fill[8 + i].append(x)
        for T in range(6):
            for mt in range(4):
                c = f"v[{ac(mt,T)}:{ac(mt,T)+3}]"
                a(f"v_mfma_f32_16x16x32_bf16 {c}, v[{f+4*mt}:{f+4*mt+3}], v[{BF+4*T}:{BF+4*T+3}], {c}")
                for x in fill[4*T + mt]:
                    if x == "BAR":
                        a.wait(lg=0)
                        a("s_barrier")
                        if t == 3 and not AZ: setflag()
                    else: a(x)
    stamp(a, 2)
    R.put(AF[0], 16); R.put(AF[1], 16); R.put(BF, 24); R.put(aA, 2); R.put(aB, 6)
    FOFF = f'0 offen offset:{D_AUX}' if AZ else 's31 offen offset:64'
    FT = 16 if AZ else 1
    tm = R.get(4, 2); L2 = R.get(2); fl = R.get(); zr = R.get()
    a(f"""
    v_mov_b32 v{zr}, 0
    v_mov_b32 v{fl}, 16
    s_cmp_lg_u32 s20, 0
    """)
    a.raw("s_cbranch_scc1 GM_nofl")
    a.raw("s_mov_b64 exec, 1")
    a(f"buffer_load_dword v{fl}, v{zr}, s[44:47], {FOFF} sc1")
    a.raw("s_mov_b64 exec, -1")
    a.raw("GM_nofl:")
    a(f"""
    v_mov_b32 v{L2}, {LOG2E:#x}
    v_mov_b32 v{L2+1}, {LOG2E:#x}
    s_mov_b32 s56, {EPS:#x}
    """)
    def phi(r, keepmask=None):
        a(f"v_pk_mul_f32 v[{tm}:{tm+1}], v[{r}:{r+1}], v[{L2}:{L2+1}]")
        a(f"v_pk_mul_f32 v[{tm+2}:{tm+3}], v[{r+2}:{r+3}], v[{L2}:{L2+1}]")
        for j in range(4): a(f"v_exp_f32_e64 v{tm+j}, v{tm+j} clamp")
        if keepmask is not None: set_exec(a, keepmask)
        for j in range(4): a(f"v_max_f32 v{r+j}, s56, v{r+j}")
        a(f"v_pk_add_f32 v[{r}:{r+1}], v[{r}:{r+1}], v[{tm}:{tm+1}]")
        a(f"v_pk_add_f32 v[{r+2}:{r+3}], v[{r+2}:{r+3}], v[{tm+2}:{tm+3}]")
        if keepmask is not None: a("s_mov_b64 exec, -1")
    def pack(d, r):
        a(f"v_cvt_pk_bf16_f32 v{d}, v{r}, v{r+1}")
        a(f"v_cvt_pk_bf16_f32 v{d+1}, v{r+2}, v{r+3}")
    vq = R.get(); vq2 = lane
    a(f"""
    v_lshlrev_b32 v{vq}, 6, v{col}
    v_lshl_add_u32 v{vq}, v{rq}, 4, v{vq}
    v_add_u32 v{vq2}, 36864, v{vq}
    s_lshl_b32 s57, s28, 1
    s_add_u32 s57, s57, s48
    s_mul_i32 s57, s57, 73728
    """)
    a("s_cmp_eq_u32 s27, 8")
    snapQ = a.branch("s_cbranch_scc1 GM_epi_q")
    F = {(T, p): R.get(4, 4) for T in range(5) for p in range(2)}
    AL = [R.get(4, 4) for p in range(2)]
    m_nv = lanemask(lambda c, r: (c >> 2) != 1)
    KVt = [ac(0, 0), ac(0, 1), ac(0, 2), ac(0, 3), ac(0, 4), ac(1, 0), ac(1, 1)]
    prods = [(('F', 2), 0), (('F', 3), 1), (('L', 0), 0), (('L', 0), 1), (('F', 2), 4), (('F', 3), 4), (('L', 0), 4)]
    a(f"v_cmp_eq_u32 s[64:65], 1, v{t3}")
    a(f"v_mov_b32 v{t1}, 0x3f803f80")
    for p in range(2):
        for mt in (2*p, 2*p+1):
            for T in (0, 1, 4, 2, 3):
                r = ac(mt, T)
                if T in (0, 1): phi(r)
                if T == 4: phi(r, m_nv)
                pack(F[(T, p)] + 2 * (mt & 1), r)
        for j in range(4): a(f"v_cndmask_b32 v{AL[p]+j}, v{t1}, v{F[(4,p)]+j}, s[64:65]")
        for i, (A_, B_) in enumerate(prods):
            Ar = F[(A_[1], p)] if A_[0] == 'F' else AL[p]
            Br = F[(B_, p)]
            c = f"v[{KVt[i]}:{KVt[i]+3}]"
            a(f"v_mfma_f32_16x16x32_bf16 {c}, v[{Ar}:{Ar+3}], v[{Br}:{Br+3}], {c if p else 0}")
    stamp(a, 4)
    b1 = AL[0]; b2 = AL[0] + 1; b3 = AL[0] + 2
    a(f"""
    s_mul_i32 s63, s48, {KVI_H}
    s_mul_i32 s60, s49, {2*456*4}
    s_add_u32 s60, s60, s63
    s_add_u32 s60, s60, {G_KVI}
    v_mul_u32_u24 v{b1}, {4*24*4}, v{rq}
    v_lshl_add_u32 v{b1}, v{col}, 2, v{b1}
    v_add_u32 v{b1}, s60, v{b1}
    v_lshlrev_b32 v{b2}, 2, v{col}
    v_add_u32 v{b2}, s60, v{b2}
    s_mul_i32 s58, s27, 48
    s_mul_i32 s59, s49, 24
    s_add_u32 s58, s58, s59
    s_lshl_b32 s58, s58, 6
    s_add_u32 s58, s58, s57
    s_add_u32 s59, s58, 512
    s_sub_u32 s58, s58, 512
    """)
    def add(base, reg, off): a(f"ds_write_b32 v{base}, v{reg} offset:{4*off}")
    K = KVt
    RS = 24; HS = 456
    for j in range(4): add(b1, K[0] + j, j * RS)
    for j in range(4): add(b1, K[1] + j, HS + (2 + j) * RS + 2)
    set_exec(a, lanemask(lambda c, r: r == 1))
    add(b2, K[2], 16 * RS); add(b2, K[2] + 1, 17 * RS)
    add(b2, K[3] + 2, HS + 2); add(b2, K[3] + 3, HS + RS + 2)
    set_exec(a, lanemask(lambda c, r: r == 2))
    add(b2, K[2], 18 * RS); add(b2, K[3], HS + 18 * RS + 2)
    set_exec(a, lanemask(lambda c, r: c < 2))
    for j in range(4): add(b1, K[4] + j, j * RS + 16)
    set_exec(a, lanemask(lambda c, r: c in (2, 3)))
    for j in range(4): add(b1, K[5] + j, HS + (2 + j) * RS - 2)
    set_exec(a, lanemask(lambda c, r: r == 1 and c < 2))
    add(b2, K[6], 16 * RS + 16); add(b2, K[6] + 1, 17 * RS + 16)
    set_exec(a, lanemask(lambda c, r: r == 1 and c in (2, 3)))
    add(b2, K[6] + 2, HS - 2); add(b2, K[6] + 3, HS + RS - 2)
    set_exec(a, lanemask(lambda c, r: r == 2 and c < 2))
    add(b2, K[6], 18 * RS + 16)
    set_exec(a, lanemask(lambda c, r: r == 2 and c in (2, 3)))
    add(b2, K[6], HS + 18 * RS - 2)
    a("s_mov_b64 exec, -1")
    a(f"v_readfirstlane_b32 s32, v{fl}")
    a(f"s_cmp_ge_u32 s32, {FT}")
    sn = a.branch("s_cbranch_scc1 GM_flagok")
    a.raw("s_mov_b64 exec, 1")
    a.raw("GM_poll:")
    a.raw("s_sleep 8")
    a.raw(f"buffer_load_dword v{fl}, v{zr}, s[44:47], {FOFF} sc1")
    a.raw("s_waitcnt vmcnt(0)")
    a.raw(f"v_readfirstlane_b32 s32, v{fl}")
    a.raw("s_nop 1")
    a.raw(f"s_cmp_lt_u32 s32, {FT}")
    a.raw("s_cbranch_scc1 GM_poll")
    a.raw("s_mov_b64 exec, -1")
    a.merge("GM_flagok", sn)
    a(f"v_add_u32 v{t0}, s58, v{vq}")
    a("s_mov_b32 s62, 36864")
    set_exec(a, lanemask(lambda c, r: c >= 8))
    for p in range(2):
        d = F[(4, p)]
        a(f"buffer_store_dwordx4 v[{d}:{d+3}], v{t0}, s[40:43], {'s62' if p else 0} offen{SC}")
    a("s_mov_b64 exec, -1")
    a.wait(lg=0)
    a("s_barrier")
    stamp(a, 5)
    V6 = ac(2, 0); V7 = ac(3, 0)
    a(f"""
    v_lshlrev_b32 v{t0}, 2, v0
    v_add_u32 v{t1}, {G_KVI}, v{t0}
    """)
    for i in range(8): a(f"ds_read_b32 v{V6+i}, v{t1} offset:{1024*i}")
    for i in range(7): a(f"ds_read_b32 v{V7+i}, v{t1} offset:{KVI_H + 1024*i}")
    a(f"v_min_u32 v{t2}, {G_KVI + 124}, v{t1}")
    a(f"ds_read_b32 v{V7+7}, v{t2} offset:{KVI_H + 7168}")
    a(f"""
    s_mul_i32 s33, s27, 7296
    s_add_u32 s33, s33, {WS_KVS}
    v_mov_b32 v{t2}, 0x7f000000
    v_cmp_gt_u32 vcc, 32, v0
    v_cndmask_b32 v{t1}, v{t2}, v{t0}, vcc
    """)
    for i in range(8): a(f"v_add_f32 v{V6+i}, v{V6+i}, v{V7+i}")
    for i in range(4):
        a(f"buffer_atomic_add_f32 v{V6+i}, v{t0}, s[40:43], s33 offen offset:{1024*i}")
    a(f"""
    s_add_u32 s33, s33, 4096
    buffer_atomic_add_f32 v{V6+4}, v{t0}, s[40:43], s33 offen
    buffer_atomic_add_f32 v{V6+5}, v{t0}, s[40:43], s33 offen offset:1024
    buffer_atomic_add_f32 v{V6+6}, v{t0}, s[40:43], s33 offen offset:2048
    buffer_atomic_add_f32 v{V6+7}, v{t1}, s[40:43], s33 offen offset:3072
    """)
    for p in range(2):
        d = F[(0, p)]
        for mt in (2*p, 2*p+1):
            r = ac(mt, 5); phi(r); pack(d + 2 * (mt & 1), r)
        a(f"buffer_store_dwordx4 v[{d}:{d+3}], v{vq2 if p else vq}, s[40:43], s59 offen{SC}")
    stamp(a, 3)
    stamp_dump(a, 8, 40, 20, t0, t1)
    if MERGE:
        a(f"s_mov_b32 s19, {D_GEMM}"); a("s_mov_b32 s18, 143"); a.raw("s_branch PH2")
    else: a.raw("s_endpgm")
    a.restore("GM_epi_q", snapQ)
    if MERGE: a("s_barrier")
    a(f"""
    s_mul_i32 s58, s49, 96
    s_add_u32 s58, s58, 384
    s_lshl_b32 s58, s58, 6
    s_add_u32 s58, s58, s57
    """)
    k = 0
    for T in range(6):
        for p in range(2):
            d = list(F.values())[k % 10]; k += 1
            for mt in (2*p, 2*p+1):
                r = ac(mt, T); phi(r); pack(d + 2 * (mt & 1), r)
            a(f"buffer_store_dwordx4 v[{d}:{d+3}], v{vq2 if p else vq}, s[40:43], s58 offen{SC}")
        a(f"s_add_u32 s58, s58, 1024")
    stamp(a, 3)
    stamp_dump(a, 8, 40, 20, t0, t1)
    if MERGE:
        a(f"s_mov_b32 s19, {D_GEMM}"); a("s_mov_b32 s18, 143"); a.raw("s_branch PH2")
    a.label("GM_exit", flush=False)
    a.raw("s_endpgm")
```

```python
WS_PQT = 0
WS_BT  = 0x240000
WS_WOF = 0x480000
WS_KVS = 0x530000
WS_G   = 0x540000
WS_SIZE = 0x550000
import os
MERGE = int(os.environ.get("MERGE", 0))
SC = " sc1" if MERGE else os.environ.get("SCX", " sc1")
D_GEMM = 128
D_CONV = 192
D_AUX = 208
D_DUMMY = 252
WS_GO = 0x548000
OFFL = int(os.environ.get("OFFL", 0))
WS_KP = 0x550000
if OFFL: WS_SIZE = 0x550000 + 96 * 4 * 3328
D_KP = 128
K1_LDS = 159744 if OFFL else 137728
```

```python
import sys
from build import *
import k1, k2
a1, hi1 = k1.gen_k1()
a2, hi2 = k2.gen_k2()
ks = [("e0_kernel", "s_nop 0", 8, int(sys.argv[2]), 64, 0), ("k1_kernel", a1.text(), hi1, 256, 768, K1_LDS), ("k2_kernel", a2.text(), hi2, 256, 576, k2.K2_LDS)]
build(ks, sys.argv[1])
```

```python
from asmlib import *
from layout import *
import struct, os
def fbits(x): return struct.unpack('<I', struct.pack('<f', x))[0]
LOG2E = fbits(1.4426950408889634)
import numpy as np
_c = 1.0/(2*np.pi); C_HI = np.float32(_c); C_LO = np.float32(_c - float(C_HI))
INV2PI_HI = fbits(float(C_HI)); INV2PI_LO = fbits(float(C_LO))

BUF = 4352
SCR0 = 0
SCR1 = 12 * BUF
U_STRIDE = 4608
C_U = 24 * BUF
C_BOX = C_U + 6 * U_STRIDE
C_FL = C_BOX + 2048
C_TAB = C_FL + 256
C_LDS = C_TAB + 3072
L0 = 639; KR_COPY = 1344
GH_COPY = 928
F_P, F_K, F_A, F_M, F_U = 0, 12, 24, 36, 40
SLEEP = int(os.environ.get("CSLEEP", 2))
GATHER_AT = int(os.environ.get("GATHER_AT", 6))
WAITALL = int(os.environ.get("WAITALL", 1))
SKIPW = int(os.environ.get("SKIPW", 0))
GSCHED = eval(os.environ.get("GSCHED", "{0:1,1:1,5:1,9:1,13:1}"))

def cmul(a, d, x, y, t):
    a(f"v_pk_mul_f32 v[{t}:{t+1}], v[{x}:{x+1}], v[{y}:{y+1}] op_sel:[0,0] op_sel_hi:[0,1]")
    a(f"v_pk_fma_f32 v[{d}:{d+1}], v[{x}:{x+1}], v[{y}:{y+1}], v[{t}:{t+1}] op_sel:[1,1,0] op_sel_hi:[1,0,1] neg_lo:[1,0,0]")

def gen_conv(a, R):
    t3 = R.get()
    lane = R.get(4, 2); col = lane + 1; rq = lane + 2; t2 = lane + 3
    aT = R.get(4, 2); aT2 = aT + 1; aKF = aT + 2; aHF = aT + 3
    t0 = R.get(); t1 = R.get()
    own = R.get(); prt = R.get(); aU = R.get(); aS = R.get(); oadr = R.get()
    fad = R.get(); flv = R.get(); one = R.get()
    BX = R.get(12, 2)
    rd = R.get(); p0 = R.get(); p1 = R.get(); p3 = R.get(); dt = R.get(); dsk = R.get()
    a.raw("CV_entry:")
    stamp(a, 0)
    a(f"""
    s_setprio 3
    s_load_dwordx16 s[36:51], s[0:1], 32
    s_load_dwordx2 s[4:5], s[0:1], 0
    s_load_dwordx2 s[6:7], s[0:1], 120
    v_and_b32 v{lane}, 63, v0
    s_lshr_b32 s22, s20, 1
    s_lshr_b32 s23, s20, 2
    s_xor_b32 s23, s23, s20
    s_and_b32 s23, s23, 1
    s_mul_i32 s24, s21, 6
    s_add_u32 s24, s24, s22
    s_lshl_b32 s25, s24, 8
    s_lshl_b32 s26, s23, 7
    s_add_u32 s27, s25, s26
    s_xor_b32 s26, s26, 128
    s_add_u32 s28, s25, s26
    v_lshlrev_b32 v{p0}, 1, v{lane}
    v_add_u32 v{p1}, s28, v{p0}
    v_add_u32 v{p0}, s27, v{p0}
    s_lshl_b32 s25, s24, 1
    v_mov_b32 v{p3}, s25
    v_and_b32 v{col}, 15, v0
    v_lshrrev_b32 v{rq}, 4, v{lane}
    v_lshlrev_b32 v{fad}, 2, v{lane}
    v_add_u32 v{fad}, {C_FL}, v{fad}
    v_mov_b32 v{one}, 0
    s_mul_i32 s56, s20, {BUF}
    s_mov_b32 m0, s56
    s_xor_b32 s57, s20, 1
    s_and_b32 s60, s20, 14
    s_mul_i32 s60, s60, {BUF}
    s_add_u32 s60, s60, {SCR1}
    s_add_u32 s61, s60, {BUF}
    s_lshl_b32 s62, s23, 6
    s_mul_i32 s64, s22, {U_STRIDE}
    s_add_u32 s64, s64, {C_U + 512}
    """)
    par = R.get(10)
    a(f"global_load_ushort v{dt}, v{p3}, s[48:49]")
    a(f"global_load_ushort v{dsk}, v{p3}, s[50:51]")
    for i in range(6):
        a(f"global_load_ushort v{par+i}, v{p0}, s[{36+2*i}:{37+2*i}]")
    for i in range(4):
        a(f"global_load_ushort v{par+6+i}, v{p1}, s[{40+2*i}:{41+2*i}]")
    R.put(p0); R.put(p1); R.put(p3)
    a(f"""
    s_mov_b32 s8, s4
    s_mov_b32 s9, s5
    s_mov_b32 s10, 2359296
    s_mov_b32 s11, 0x20000
    s_mov_b32 s12, s6
    s_mov_b32 s13, s7
    s_mov_b32 s14, {WS_SIZE}
    s_mov_b32 s15, 0x20000
    """)
    xrow = [R.get(4, 2) for _ in range(8)]
    gad = R.get(); uad = R.get()
    if OFFL:
        a("s_load_dwordx2 s[92:93], s[0:1], 112")
        a("s_cmp_eq_u32 s18, 1")
        a.nopflush(); a.raw("s_cbranch_scc1 CV_pre_done")
    a("s_cmp_lt_u32 s20, 4")
    snG2 = a.branch("s_cbranch_scc1 CV_g2pre")
    a(f"""
    s_sub_u32 s32, s22, 1
    s_and_b32 s33, s20, 1
    s_sub_u32 s33, s32, s33
    s_sub_u32 s33, s33, 64
    s_lshl_b32 s32, s32, 1
    v_lshl_add_u32 v{t3}, v{lane}, 1, s33
    v_cmp_ge_u32 vcc, s32, v{t3}
    v_mov_b32 v{t0}, 0x3c00
    v_cndmask_b32 v{t2}, 0, v{t0}, vcc
    v_add_u32 v{t3}, 1, v{t3}
    v_cmp_ge_u32 vcc, s32, v{t3}
    v_mov_b32 v{t0}, 0x3c000000
    v_cndmask_b32 v{t3}, 0, v{t0}, vcc
    v_or_b32 v{t2}, v{t2}, v{t3}
    s_lshl_b32 s32, s20, 8
    s_sub_u32 s32, s32, 3072
    v_add_u32 v{t0}, s32, v{fad}
    ds_write_b32 v{t0}, v{t2}
    """)
    pieces = {}
    pieces[0] = f"""
    v_lshrrev_b32 v{t1}, 1, v{rq}
    v_lshlrev_b32 v{t1}, 5, v{t1}
    v_and_b32 v{t2}, 1, v{rq}
    v_lshlrev_b32 v{t2}, 4, v{t2}
    v_sub_u32 v{t3}, v{t2}, v{t1}
    v_lshlrev_b32 v{t1}, 1, v{col}
    v_sub_u32 v{t3}, v{t3}, v{t1}
    v_and_b32 v{t2}, 1, v{col}
    v_cmp_eq_u32 vcc, 0, v{t2}
    v_mov_b32 v{t0}, {KR_COPY + 2}
    v_cndmask_b32 v{t0}, 0, v{t0}, vcc
    v_add_u32 v{t0}, v{t3}, v{t0}
    ds_write_b32 v{fad}, v{one}
    """
    pieces[1] = f"""
    v_lshrrev_b32 v{t1}, 1, v{rq}
    v_lshlrev_b32 v{t1}, 5, v{t1}
    v_and_b32 v{t2}, 1, v{rq}
    v_lshlrev_b32 v{t2}, 4, v{t2}
    v_sub_u32 v{t3}, v{t2}, v{t1}
    v_lshl_add_u32 v{t0}, v{col}, 5, v{t3}
    """
    pieces[2] = f"""
    v_lshlrev_b32 v{t0}, 4, v{rq}
    v_lshlrev_b32 v{t1}, 1, v{col}
    v_sub_u32 v{t0}, v{t0}, v{t1}
    v_and_b32 v{t2}, 1, v{col}
    v_mul_u32_u24 v{t2}, 258, v{t2}
    v_add_u32 v{t0}, v{t0}, v{t2}
    v_add_u32 v{t0}, {C_BOX + 128 - 24}, v{t0}
    """
    pieces[3] = f"""
    v_add_u32 v{t0}, 1, v{col}
    v_and_b32 v{t0}, 3, v{t0}
    v_mul_u32_u24 v{t0}, {GH_COPY + 2}, v{t0}
    v_lshlrev_b32 v{t1}, 1, v{col}
    v_sub_u32 v{t0}, v{t0}, v{t1}
    v_lshl_add_u32 v{t0}, v{rq}, 3, v{t0}
    """
    pieces[4] = f"""
    v_add_u32 v{t1}, 1, v{col}
    v_cmp_eq_u32 vcc, 15, v{col}
    v_cndmask_b32 v{t1}, v{t1}, 32, vcc
    v_add_u32 v{t2}, 16, v{lane}
    v_cmp_eq_u32 vcc, 0, v{rq}
    v_cndmask_b32 v{t1}, v{t1}, v{t2}, vcc
    v_lshlrev_b32 v{t0}, 2, v{t1}
    """
    pieces[5] = f"""
    v_cmp_eq_u32 vcc, 32, v{lane}
    v_lshl_add_u32 v{t1}, v{col}, 1, v{rq}
    v_cndmask_b32 v{t1}, v{t1}, 32, vcc
    v_lshlrev_b32 v{t0}, 4, v{t1}
    """
    pieces[6] = f"""
    v_and_b32 v{t1}, 3, v{col}
    v_mul_u32_u24 v{t1}, 144, v{t1}
    v_lshrrev_b32 v{t2}, 2, v{col}
    v_lshlrev_b32 v{t2}, 5, v{t2}
    v_sub_u32 v{t1}, v{t1}, v{t2}
    v_add_u32 v{t1}, 88, v{t1}
    v_and_b32 v{t2}, 1, v{col}
    v_mul_u32_u24 v{t2}, 176, v{t2}
    v_lshrrev_b32 v{t3}, 1, v{col}
    v_lshlrev_b32 v{t3}, 5, v{t3}
    v_sub_u32 v{t2}, v{t2}, v{t3}
    v_add_u32 v{t2}, {576 + 120 + 128}, v{t2}
    v_cmp_gt_u32 vcc, 8, v{col}
    v_cndmask_b32 v{t1}, v{t2}, v{t1}, vcc
    v_lshlrev_b32 v{t2}, 3, v{rq}
    v_sub_u32 v{t0}, v{t1}, v{t2}
    """
    for i in range(7):
        a(f"s_cmp_lg_u32 s20, {i+4}")
        a.nopflush(); a.raw(f"s_cbranch_scc1 CV_pc{i}")
        a(pieces[i])
        a(f"ds_write_b32 v{fad}, v{t0} offset:{256 + 256*i}")
        a.nopflush(); a.raw("s_branch CV_pre_done")
        a.raw(f"CV_pc{i}:")
    a.raw("s_branch CV_pre_done")
    a.restore("CV_g2pre", snG2)
    a(f"""
    s_mov_b32 s34, s20
    s_add_u32 s32, s20, s17
    s_and_b32 s32, s32, 3
    v_lshl_add_u32 v{gad}, s32, 6, v{lane}
    v_lshlrev_b32 v{uad}, 4, v{gad}
    v_add_u32 v{uad}, {C_U + 512}, v{uad}
    v_mul_u32_u24 v{gad}, 9216, v{gad}
    s_mul_i32 s31, s21, 12
    s_add_u32 s35, s31, 4608
    s_lshr_b32 s33, s17, 2
    """)
    z4 = BX
    a(f"""
    v_mov_b32 v{z4}, 0
    v_mov_b32 v{z4+1}, 0
    v_mov_b32 v{z4+2}, 0
    v_mov_b32 v{z4+3}, 0
    v_lshrrev_b32 v{t0}, 5, v{lane}
    s_min_u32 s32, s34, 2
    s_lshl_b32 s32, s32, 1
    v_add_u32 v{t0}, s32, v{t0}
    v_mul_u32_u24 v{t0}, {U_STRIDE}, v{t0}
    v_and_b32 v{t1}, 31, v{lane}
    v_lshl_add_u32 v{t0}, v{t1}, 4, v{t0}
    v_add_u32 v{t0}, {C_U}, v{t0}
    ds_write_b128 v{t0}, v[{z4}:{z4+3}]
    """)
    a.nopflush()
    a.raw("CV_pre_done:")
    a.last = {}
    a(f"""
    v_mul_u32_u24 v{rd}, 272, v{col}
    v_lshl_add_u32 v{rd}, v{rq}, 4, v{rd}
    v_add_u32 v{rd}, s56, v{rd}
    v_lshlrev_b32 v{t0}, 4, v{lane}
    v_add_u32 v{own}, s56, v{t0}
    s_mul_i32 s58, s57, {BUF}
    v_add_u32 v{prt}, s58, v{t0}
    v_mov_b32 v{one}, 1
    s_lshl_b32 s58, s20, 2
    s_add_u32 s58, s58, {C_FL}
    v_mov_b32 v{oadr}, s58
    """)
    a.wait(lg=0)
    a("s_barrier")
    pollc = [0]
    def poll(mask_sg):
        n = pollc[0]; pollc[0] += 1
        a.nopflush()
        a.raw(f"CV_poll{n}:")
        a.raw(f"ds_read_b32 v{flv}, v{fad}")
        a.raw("s_waitcnt lgkmcnt(0)")
        a.raw(f"v_cmp_eq_u32 vcc, 0, v{flv}")
        a.raw("s_nop 1")
        a.raw(f"s_and_b64 vcc, vcc, s[{mask_sg}:{mask_sg+1}]")
        a.raw(f"s_cbranch_scc0 CV_poll{n}_ok")
        a.raw(f"s_sleep {SLEEP}")
        a.raw(f"s_branch CV_poll{n}")
        a.raw(f"CV_poll{n}_ok:")
        a.lgq = []
    def scale_from_flags():
        a(f"""
        v_readlane_b32 s58, v{flv}, {F_M}
        v_readlane_b32 s59, v{flv}, {F_M+1}
        v_readlane_b32 s68, v{flv}, {F_M+2}
        v_readlane_b32 s69, v{flv}, {F_M+3}
        s_max_u32 s58, s58, s59
        s_max_u32 s68, s68, s69
        s_max_u32 s59, s58, s68
        s_lshr_b32 s59, s59, 23
        s_max_u32 s59, s59, 11
        s_min_u32 s59, s59, 254
        """)
    gcnt = [0]
    def gather1(force=False):
        if OFFL and not force: return
        k = gcnt[0]; gcnt[0] += 1
        if k >= 8: return
        a.raw("s_cmp_ge_u32 s20, 4")
        a.raw(f"s_cbranch_scc1 CV_g{k}_d")
        for r in range(3):
            i = (k + 3 * r) & 7
            if r < 2:
                a.raw(f"s_cmp_lg_u32 s33, {r}")
                a.raw(f"s_cbranch_scc1 CV_g{k}_{r}")
            a.raw(f"buffer_load_dwordx3 v[{xrow[i]}:{xrow[i]+2}], v{gad}, s[8:11], {'s31' if i < 4 else 's35'} offen offset:{(i%4)*1152}")
            if r < 2:
                a.raw(f"s_branch CV_g{k}_d")
                a.raw(f"CV_g{k}_{r}:")
        a.raw(f"CV_g{k}_d:")
    NG0 = int(os.environ.get("NG0", 2))
    if OFFL:
        a.raw("s_mov_b32 s94, 256")
        a.raw("s_mov_b32 s95, 0x20000")
        a.raw("s_cmp_eq_u32 s18, 1")
        a.raw("s_cbranch_scc1 CV_prod0")
        a.raw("s_cmp_lt_u32 s20, 4")
        a.raw("s_cbranch_scc1 CV_xw")
        a.raw("s_setprio 2")
        a.raw("s_cmp_lt_u32 s20, 8")
        a.raw("s_cbranch_scc1 CV_kgen")
        a.raw("CV_prod0:")
        a.raw("s_setprio 1")
        a.raw("CV_kgen:")
        a.raw("s_waitcnt vmcnt(0)")
        a.vmq = []
    else:
        for _ in range(NG0): gather1()
        a.raw("s_cmp_ge_u32 s20, 4")
        a.raw("s_cbranch_scc1 CV_g12")
        a.raw(f"s_waitcnt vmcnt({NG0})")
        a.raw("s_branch CV_kgen")
        a.raw("CV_g12:")
        a.raw("s_waitcnt vmcnt(0)")
        a.vmq = []
        a.raw("s_setprio 2")
        a.raw("s_cmp_lt_u32 s20, 8")
        a.raw("s_cbranch_scc1 CV_kgen")
        a.raw("s_setprio 1")
        a.raw("CV_kgen:")
    def xstage():
        a("s_cmp_ge_u32 s20, 4")
        snX = a.branch("s_cbranch_scc1 CV_nox")
        a(f"""
        s_mov_b32 s58, 0x7fff7fff
        s_mov_b32 s70, 0
        s_mov_b32 s71, 0xf0
        """)
        a.raw("s_waitcnt vmcnt(0)")
        stamp(a, 3)
        m = R.get(2); lo = R.get(24)
        regs = [xrow[i] + p for p in range(3) for i in range(8)]
        a(f"v_max_f32 v{m}, |v{regs[0]}|, |v{regs[1]}|")
        for i in range(2, 24, 2): a(f"v_max3_f32 v{m}, |v{regs[i]}|, |v{regs[i+1]}|, v{m}")
        for i in range(24): a(f"v_lshlrev_b32 v{lo+i}, 16, v{regs[i]}")
        a(f"v_max_f32 v{m+1}, |v{lo}|, |v{lo+1}|")
        for i in range(2, 24, 2): a(f"v_max3_f32 v{m+1}, |v{lo+i}|, |v{lo+i+1}|, v{m+1}")
        a(f"""
        v_max_u32 v{m}, v{m}, v{m+1}
        v_max_u32_dpp v{m}, v{m}, v{m} row_ror:1 row_mask:0xf bank_mask:0xf
        v_max_u32_dpp v{m}, v{m}, v{m} row_ror:2 row_mask:0xf bank_mask:0xf
        v_max_u32_dpp v{m}, v{m}, v{m} row_ror:4 row_mask:0xf bank_mask:0xf
        v_max_u32_dpp v{m}, v{m}, v{m} row_ror:8 row_mask:0xf bank_mask:0xf
        v_readlane_b32 s58, v{m}, 0
        v_readlane_b32 s59, v{m}, 16
        v_readlane_b32 s68, v{m}, 32
        v_readlane_b32 s69, v{m}, 48
        s_max_u32 s58, s58, s59
        s_max_u32 s68, s68, s69
        s_max_u32 s58, s58, s68
        s_or_b32 s58, s58, 1
        v_mov_b32 v{m}, s58
        ds_write_b32 v{oadr}, v{m} offset:{4*F_M}
        """)
        R.put(m, 2)
        poll(70)
        scale_from_flags()
        a("s_sub_u32 s58, 264, s59")
        a("s_lshl_b32 s58, s58, 23")
        f = R.get(8); o2 = R.get(8, 2)
        for c in range(6):
            p = c >> 1; o = o2 + 4 * (c & 1)
            if c & 1:
                for i in range(8): a(f"v_and_b32 v{f+i}, 0xffff0000, v{xrow[i]+p}")
                src = f
            else: src = lo + 8 * p
            for i in range(4): a(f"v_fma_mixlo_f16 v{o+i}, v{src+2*i}, s58, 0")
            for i in range(4): a(f"v_fma_mixhi_f16 v{o+i}, v{src+2*i+1}, s58, 0")
            a(f"ds_write_b128 v{uad}, v[{o}:{o+3}] offset:{c*U_STRIDE}")
        a(f"ds_write_b32 v{oadr}, v{one} offset:{4*F_U}")
        R.put(f, 8); R.put(o2, 8); R.put(lo, 24)
        stamp(a, 4)
        a.nopflush()
        a.raw("CV_nox:")
        a.last = {}
        for x in xrow: R.put(x, 4)
        R.put(gad); R.put(uad)
    a(f"""
    v_lshlrev_b32 v{dt}, 16, v{dt}
    v_mul_f32 v{dt}, {LOG2E}, v{dt}
    v_exp_f32 v{dt}, v{dt}
    v_lshlrev_b32 v{dsk}, 16, v{dsk}
    v_cvt_pk_bf16_f32 v{dt}, v{dt}, v{dt}
    v_readfirstlane_b32 s30, v{dsk}
    v_lshlrev_b32 v{dt}, 16, v{dt}
    """)
    if not OFFL: R.put(dsk)
    pp = R.get(8, 2)
    stamp(a, 1)
    for i in range(8): a(f"v_lshlrev_b32 v{pp+i}, 16, v{par+2+i}")
    are = R.get(); aim = R.get()
    W = R.get(2); W2 = R.get(2); tp = R.get(2)
    a(f"""
    v_lshlrev_b32 v{are}, 16, v{par}
    v_lshlrev_b32 v{aim}, 16, v{par+1}
    v_mul_f32 v{are}, v{dt}, v{are}
    v_mul_f32 v{aim}, v{dt}, v{aim}
    v_mul_f32 v{are}, {LOG2E}, v{are}
    """)
    cmul(a, W, pp+2, pp, tp)
    cmul(a, W2, pp+6, pp+4, tp)
    a(f"""
    v_max_f32 v{t0}, |v{W}|, |v{W+1}|
    v_max3_f32 v{t0}, |v{W2}|, |v{W2+1}|, v{t0}
    v_mul_f32 v{t0}, v{dt}, v{t0}
    s_mov_b32 s54, {INV2PI_HI}
    s_mov_b32 s55, {INV2PI_LO}
    v_max_u32_dpp v{t0}, v{t0}, v{t0} row_ror:1 row_mask:0xf bank_mask:0xf
    v_max_u32_dpp v{t0}, v{t0}, v{t0} row_ror:2 row_mask:0xf bank_mask:0xf
    v_max_u32_dpp v{t0}, v{t0}, v{t0} row_ror:4 row_mask:0xf bank_mask:0xf
    v_max_u32_dpp v{t0}, v{t0}, v{t0} row_ror:8 row_mask:0xf bank_mask:0xf
    v_readlane_b32 s52, v{t0}, 0
    v_readlane_b32 s53, v{t0}, 16
    v_readlane_b32 s68, v{t0}, 32
    v_readlane_b32 s69, v{t0}, 48
    s_max_u32 s52, s52, s53
    s_max_u32 s68, s68, s69
    s_max_u32 s52, s52, s68
    s_lshr_b32 s52, s52, 23
    s_add_u32 s52, s52, 8
    s_bfe_u32 s53, s30, 0x80017
    s_max_u32 s52, s52, s53
    s_max_u32 s52, s52, 14
    s_min_u32 s52, s52, 262
    s_sub_u32 s53, 267, s52
    s_lshl_b32 s53, s53, 23
    """)
    R.put(par, 10); R.put(W2, 2); R.put(pp, 8)
    Y0 = R.get(2); Y1 = R.get(2)
    Yk = {0: Y0}
    Yh = {h: R.get() for h in (0, 2, 4, 6, 8, 10, 12, 14, 16)}
    E = {}
    e3 = R.get()
    for p in (1, 16, 256):
        e = R.get(2); E[p] = e
        if p == 1:
            a(f"v_exp_f32 v{t0}, v{are}"); th = aim
        else:
            a(f"v_mul_f32 v{t0}, {fbits(float(p))}, v{are}")
            a(f"v_mul_f32 v{t1}, {fbits(float(p))}, v{aim}")
            a(f"v_exp_f32 v{t0}, v{t0}"); th = t1
        a(f"""
        v_mul_f32 v{t2}, s54, v{th}
        v_fma_f32 v{e3}, v{th}, s54, -v{t2}
        v_fma_f32 v{e3}, v{th}, s55, v{e3}
        v_fract_f32 v{t2}, v{t2}
        v_add_f32 v{t2}, v{t2}, v{e3}
        v_cos_f32 v{e}, v{t2}
        v_sin_f32 v{e+1}, v{t2}
        v_mul_f32 v{e}, v{e}, v{t0}
        v_mul_f32 v{e+1}, v{e+1}, v{t0}
        """)
    a(f"""
    v_mul_f32 v{W}, v{dt}, v{W}
    v_mul_f32 v{W+1}, v{dt}, v{W+1}
    v_mul_f32 v{Yk[0]}, s53, v{W}
    v_mul_f32 v{Yk[0]+1}, s53, v{W+1}
    """)
    R.put(W, 2); R.put(are); R.put(aim); R.put(dt); R.put(e3)
    for _ in range(GSCHED.get(0, 0)): gather1()
    pk = [R.get() for _ in range(4)]; pki = [0]
    def put_row(buf, row, x, neg, keep=None):
        if keep is None:
            p = pk[pki[0] % 4]; pki[0] += 1
        else: p = keep
        a(f"v_cvt_pk_f16_f32 v{p}, v{x}, {'-' if neg else ''}v{x+1}")
        if row is not None: a(f"ds_write_addtid_b32 v{p} offset:{buf*SCR1 + row*272}")
    def get_frags(buf, dst):
        for ks in range(4):
            a(f"ds_read_b128 v[{dst+4*ks}:{dst+4*ks+3}], v{rd} offset:{buf*SCR1 + ks*64}")
    Z = [R.get(2), R.get(2)]
    Pf = [R.get(2), R.get(2)]
    Ph = {i: R.get() for i in range(1, 8)}
    tq = R.get(2)
    a(f"v_mov_b32 v{pk[3]}, 0x3c00")
    a(f"ds_write_addtid_b32 v{pk[3]} offset:0")
    put_row(0, 1, E[16], False)
    put_row(1, 0, Y0, True, keep=Yh[0])
    put_row(0, None, E[256], True, keep=Ph[1])
    zprev = E[16]; yprev = Y0; pprev = E[256]
    for h in range(1, 17):
        yd = Y1 if h % 2 else Y0
        cmul(a, yd, yprev, E[1], tp)
        if h + 1 <= 15:
            zd = Z[h % 2]
            cmul(a, zd, zprev, E[16], tq)
        if 1 <= h <= 6:
            pd = Pf[h % 2]
            cmul(a, pd, pprev, E[256], pd)
        put_row(1, h if h <= 15 else None, yd, True, keep=Yh.get(h))
        if h + 1 <= 15:
            put_row(0, h + 1, zd, False); zprev = zd
        if 1 <= h <= 6:
            put_row(0, None, pd, True, keep=Ph[h+1]); pprev = pd
        yprev = yd
        for _ in range(GSCHED.get(h, 0)): gather1()
    for x in (Z[0], Z[1], E[1], E[16], E[256], Pf[0], Pf[1], Y0, Y1, tq): R.put(x, 2)
    ZF = R.get(16, 2); AF = R.get(16, 2)
    D = R.get(12, 2)
    get_frags(0, ZF)
    get_frags(1, AF)
    def prod_row(buf, row, y, p):
        d = pk[pki[0] % 4]; pki[0] += 1
        a(f"v_pk_mul_f16 v{d}, v{y}, v{p} op_sel:[0,0] op_sel_hi:[0,1]")
        a(f"v_pk_fma_f16 v{d}, v{y}, v{p}, v{d} op_sel:[1,1,0] op_sel_hi:[1,0,1] neg_lo:[1,0,0]")
        a(f"ds_write_addtid_b32 v{d} offset:{buf*SCR1 + row*272}")
    for h in range(8): prod_row(0, h, Yh[2*h], Ph[1])
    prod_row(0, 8, Yh[0], Ph[2]); prod_row(0, 9, Yh[0], Ph[4])
    gather1()
    for ks in range(4):
        a(f"v_mfma_f32_16x16x32_f16 v[{D}:{D+3}], v[{AF+4*ks}:{AF+4*ks+3}], v[{ZF+4*ks}:{ZF+4*ks+3}], {f'v[{D}:{D+3}]' if ks else 0}")
    get_frags(0, AF)
    for i in range(2):
        for mu in range(1, 5): prod_row(1, 4*i + mu - 1, Yh[4*mu], Ph[2+i])
    for ks in range(4):
        a(f"v_mfma_f32_16x16x32_f16 v[{D+4}:{D+7}], v[{AF+4*ks}:{AF+4*ks+3}], v[{ZF+4*ks}:{ZF+4*ks+3}], {f'v[{D+4}:{D+7}]' if ks else 0}")
    for i in range(4):
        for mu in (1, 2): prod_row(1, 8 + 2*i + mu - 1, Yh[8*mu], Ph[4+i])
    get_frags(1, AF)
    for h in Yh.values(): R.put(h)
    for i in Ph.values(): R.put(i)
    Z4 = R.get(4, 2)
    TB = R.get(7)
    def last_mfma():
        for ks in range(4):
            a(f"v_mfma_f32_16x16x32_f16 v[{D+8}:{D+11}], v[{ZF+4*ks}:{ZF+4*ks+3}], v[{AF+4*ks}:{AF+4*ks+3}], {f'v[{D+8}:{D+11}]' if ks else 0}")
    if OFFL:
        last_mfma()
        a("s_cmp_eq_u32 s18, 0")
        snP = a.branch("s_cbranch_scc1 CV_post")
        a(f"""
        s_lshl_b32 s58, s21, 2
        s_add_u32 s58, s58, s20
        s_mul_i32 s58, s58, 3328
        s_add_u32 s58, s58, {WS_KP}
        v_lshlrev_b32 v{t0}, 4, v{lane}
        v_mov_b32 v{t1}, s52
        buffer_store_dwordx4 v[{D}:{D+3}], v{t0}, s[12:15], s58 offen sc1
        buffer_store_dwordx4 v[{D+4}:{D+7}], v{t0}, s[12:15], s58 offen offset:1024 sc1
        buffer_store_dwordx4 v[{D+8}:{D+11}], v{t0}, s[12:15], s58 offen offset:2048 sc1
        s_mov_b64 exec, 1
        buffer_store_dword v{t1}, off, s[12:15], s58 offset:3072 sc1
        s_mov_b64 exec, -1
        s_and_b32 s59, s21, 3
        s_lshl_b32 s59, s59, 3
        s_lshl_b32 s59, 1, s59
        v_mov_b32 v{t1}, s59
        s_and_b32 s58, s21, 0xfc
        """)
        for _ in range(int(os.environ.get("PBAR", 2))): a.raw("s_barrier")
        a.raw("s_waitcnt vmcnt(0)")
        a.raw("s_barrier")
        a.raw("s_cmp_lg_u32 s20, 0")
        a.raw("s_cbranch_scc1 K1_end")
        a.raw("s_mov_b64 exec, 1")
        a.raw(f"buffer_atomic_add v{t1}, off, s[92:95], s58 offset:{D_KP}")
        a.raw("s_endpgm")
        a.restore("CV_xw", ([], []))
        R.put(ZF, 16); R.put(AF, 16)
        for _ in range(8): gather1(force=True)
        a.raw("s_waitcnt vmcnt(8)")
        a(f"v_lshlrev_b32 v{t0}, 16, v{dsk}")
        a(f"v_readfirstlane_b32 s30, v{t0}")
        R.put(dsk)
        xstage()
        a.flush()
        a.raw("CV_post:")
        a.last = {}; a.lgq = []; a.vmq = []
    for j in range(4): a(f"v_mov_b32 v{Z4+j}, 0")
    for i in range(4):
        a(f"ds_write_b128 v{own}, v[{Z4}:{Z4+3}] offset:{SCR1 + i*1024}")
    a(f"ds_write_addtid_b32 v{Z4} offset:{SCR1 + 4096}")
    a(f"ds_write_b128 v{own}, v[{D}:{D+3}]")
    a(f"ds_write_b128 v{own}, v[{D+4}:{D+7}] offset:1024")
    if not OFFL: last_mfma()
    for i in range(7): a(f"ds_read_b32 v{TB+i}, v{fad} offset:{256 + 256*i}")
    if not OFFL: R.put(ZF, 16); R.put(AF, 16)
    R.put(Z4, 4)
    kA = R.get(); kB = R.get(); kC = R.get(); aB2 = R.get()
    a(f"""
    s_lshl_b64 s[66:67], 1, s57
    s_sub_u32 s63, s60, s62
    s_add_u32 s63, s63, {2*L0 - 9*128}
    s_sub_u32 s65, s64, s62
    s_sub_u32 s65, s65, 384
    s_lshl_b32 s58, s23, 10
    v_add_u32 v{t2}, s58, v{prt}
    ds_write_b128 v{own}, v[{D+8}:{D+11}] offset:2048
    ds_write_b32 v{oadr}, v{one} offset:{4*F_P}
    v_add_u32 v{aT}, s63, v{TB}
    v_add_u32 v{aT2}, 640, v{aT}
    v_add_u32 v{aU}, s65, v{TB+1}
    s_lshl_b32 s65, s23, 9
    s_add_u32 s65, s65, {1024 + 8}
    v_add_u32 v{aB2}, s65, v{TB+2}
    s_mul_i32 s65, s23, 288
    s_add_u32 s65, s65, s61
    v_add_u32 v{aKF}, s65, v{TB+3}
    s_mul_i32 s65, s23, 176
    s_add_u32 s65, s65, s61
    v_add_u32 v{aHF}, s65, v{TB+3}
    v_lshlrev_b32 v{t3}, 5, v{col}
    v_lshl_add_u32 v{aS}, v{rq}, 4, v{t3}
    s_lshl_b32 s65, s23, 4
    s_sub_u32 s65, s64, s65
    s_sub_u32 s65, s65, 32
    v_add_u32 v{aS}, s65, v{aS}
    v_lshl_add_u32 v{t3}, v{rq}, 3, v{t3}
    """)
    def rd16(dst, base, byteoff):
        o = byteoff // 4
        a(f"ds_read2_b32 v[{dst}:{dst+1}], v{base} offset0:{o} offset1:{o+1}")
        a(f"ds_read2_b32 v[{dst+2}:{dst+3}], v{base} offset0:{o+2} offset1:{o+3}")
    rd16(BX, TB+2, 0); rd16(BX+4, TB+2, 520); rd16(BX+8, aB2, 0)
    R.put(aB2)
    stamp(a, 2)
    while gcnt[0] < 8 and not OFFL: gather1()
    poll(66)
    PD = R.get(8, 2)
    if OFFL:
        a("s_cmp_ge_u32 s20, 4")
        a.nopflush(); a.raw("s_cbranch_scc1 CV_local")
        a.raw("s_setprio 0")
        a.raw("s_and_b32 s58, s21, 0xfc")
        a.raw("s_and_b32 s59, s21, 3")
        a.raw("s_lshl_b32 s59, s59, 3")
        a.raw("s_cmp_lg_u32 s20, 0")
        a.raw("s_cbranch_scc1 CV_gp_w")
        a.raw("s_mov_b64 exec, 1")
        a.raw("CV_gp:")
        a.raw(f"buffer_load_dword v{t0}, off, s[92:95], s58 offset:{D_KP} sc1")
        a.raw("s_waitcnt vmcnt(0)")
        a.raw(f"v_readfirstlane_b32 s68, v{t0}")
        a.raw("s_nop 1")
        a.raw("s_lshr_b32 s68, s68, s59")
        a.raw("s_and_b32 s68, s68, 0xff")
        a.raw("s_cmp_eq_u32 s68, 1")
        a.raw("s_cbranch_scc1 CV_gp_ok")
        a.raw("s_sleep 16")
        a.raw("s_branch CV_gp")
        a.raw("CV_gp_ok:")
        a.raw(f"ds_write_b32 v{oadr}, v{one} offset:{4*44}")
        a.raw("s_mov_b64 exec, -1")
        a.raw("CV_gp_w:")
        a.raw("s_mov_b32 s70, 0")
        a.raw("s_mov_b32 s71, 0x1000")
        poll(70)
        a.raw("s_lshl_b32 s58, s21, 2")
        a.raw("s_and_b32 s59, s20, 2")
        a.raw("s_add_u32 s58, s58, s59")
        a.raw("s_mul_i32 s58, s58, 3328")
        a.raw(f"s_add_u32 s58, s58, {WS_KP}")
        a.raw("s_lshl_b32 s59, s23, 10")
        a.raw("s_add_u32 s59, s59, s58")
        a.raw("s_add_u32 s59, s59, 3328")
        a.raw(f"v_lshlrev_b32 v{t0}, 4, v{lane}")
        for T in range(3): a.raw(f"buffer_load_dwordx4 v[{D+4*T}:{D+4*T+3}], v{t0}, s[12:15], s58 offen offset:{1024*T} sc1")
        for T in range(2): a.raw(f"buffer_load_dwordx4 v[{PD+4*T}:{PD+4*T+3}], v{t0}, s[12:15], s59 offen offset:{1024*T} sc1")
        a.raw("s_mov_b64 exec, 1")
        a.raw(f"buffer_load_dword v{t1}, off, s[12:15], s58 offset:3072 sc1")
        a.raw("s_waitcnt vmcnt(0)")
        a.raw(f"v_readfirstlane_b32 s52, v{t1}")
        a.raw("s_mov_b64 exec, -1")
        a.raw("s_nop 1")
        a.raw("s_sub_u32 s53, 267, s52")
        a.raw("s_lshl_b32 s53, s53, 23")
        a.raw("s_branch CV_havep")
        a.raw("CV_local:")
    a(f"ds_read_b128 v[{PD}:{PD+3}], v{t2}")
    a(f"ds_read_b128 v[{PD+4}:{PD+7}], v{t2} offset:1024")
    if OFFL: a.raw("CV_havep:")
    q = R.get(8, 2)
    a("s_cmp_eq_u32 s23, 1")
    snapK = a.branch("s_cbranch_scc1 CV_kfin1")
    a(f"""
    v_sub_u32 v{kA}, s60, v{t3}
    v_mov_b32 v{t1}, s30
    v_mul_f32 v{t1}, s53, v{t1}
    v_cmp_eq_u32 vcc, 0, v{lane}
    v_cndmask_b32 v{t1}, 0, v{t1}, vcc
    v_add_f32 v{D}, v{D}, v{t1}
    v_pk_add_f32 v[{D}:{D+1}], v[{D}:{D+1}], v[{PD}:{PD+1}]
    v_pk_add_f32 v[{D+2}:{D+3}], v[{D+2}:{D+3}], v[{PD+2}:{PD+3}]
    v_cvt_pk_f16_f32 v{q}, v{D+3}, v{D+2}
    v_cvt_pk_f16_f32 v{q+1}, v{D+1}, v{D}
    v_cvt_pk_f16_f32 v{q+2}, v{D+2}, v{D+1}
    ds_write_b64 v{kA}, v[{q}:{q+1}] offset:{2*(L0-3)}
    ds_write_b16 v{kA}, v{q} offset:{KR_COPY + 2*(L0-3) + 2}
    ds_write_b32 v{kA}, v{q+2} offset:{KR_COPY + 2*(L0-3) + 4}
    ds_write_b16_d16_hi v{kA}, v{q+1} offset:{KR_COPY + 2*(L0-3) + 8}
    """)
    a.nopflush()
    a.raw("s_branch CV_kfin_done")
    a.restore("CV_kfin1", snapK)
    a(f"""
    v_sub_u32 v{kB}, s60, v{TB+5}
    v_add_u32 v{kC}, s61, v{TB+6}
    v_cmp_eq_u32 s[68:69], 32, v{lane}
    """)
    for j in range(0, 8, 2): a(f"v_pk_add_f32 v[{D+4+j}:{D+5+j}], v[{D+4+j}:{D+5+j}], v[{PD+j}:{PD+j+1}]")
    c0, c2, c4, c6 = D+4, D+5, D+6, D+7
    c8 = PD
    T2 = D + 8
    a(f"""
    ds_bpermute_b32 v{c8}, v{TB+4}, v{c0}
    v_cvt_pk_f16_f32 v{q}, v{T2+3}, v{T2+2}
    v_cvt_pk_f16_f32 v{q+1}, v{T2+1}, v{T2}
    v_cvt_pk_f16_f32 v{q+2}, v{T2+2}, v{T2+1}
    ds_write_b64 v{kC}, v[{q}:{q+1}]
    ds_write_b16 v{kC}, v{q} offset:{GH_COPY + 2}
    ds_write_b32 v{kC}, v{q+2} offset:{GH_COPY + 4}
    ds_write_b16_d16_hi v{kC}, v{q+1} offset:{GH_COPY + 8}
    ds_write_b32 v{kC}, v{q} offset:{2*GH_COPY + 4}
    ds_write_b32 v{kC}, v{q+1} offset:{2*GH_COPY + 8}
    ds_write_b16 v{kC}, v{q} offset:{3*GH_COPY + 6}
    ds_write_b32 v{kC}, v{q+2} offset:{3*GH_COPY + 8}
    ds_write_b16_d16_hi v{kC}, v{q+1} offset:{3*GH_COPY + 12}
    v_cvt_pk_f16_f32 v{q+7}, v{c2}, v{c2}
    v_cndmask_b32 v{c2}, v{c2}, v{c0}, s[68:69]
    v_cndmask_b32 v{c4}, v{c4}, 0, s[68:69]
    v_cndmask_b32 v{c6}, v{c6}, 0, s[68:69]
    v_cndmask_b32 v{c8}, v{c8}, 0, s[68:69]
    v_cvt_pk_f16_f32 v{T2}, v{c8}, v{c6}
    v_cvt_pk_f16_f32 v{T2+1}, v{c4}, v{c4}
    v_cvt_pk_f16_f32 v{T2+2}, v{c4}, v{c2}
    v_cvt_pk_f16_f32 v{T2+3}, v{c0}, v{c0}
    v_mov_b32 v{q+4}, v{T2+1}
    v_cvt_pk_f16_f32 v{q+5}, v{c2}, v{c0}
    v_cvt_pk_f16_f32 v{q+6}, v{c6}, v{c4}
    v_mov_b32 v{t2}, s60
    s_mov_b32 exec_hi, 1
    ds_write_b128 v{kB}, v[{T2}:{T2+3}] offset:{2*(L0-256-7)}
    ds_write_b16 v{kB}, v{T2} offset:{KR_COPY + 2*(L0-256-7) + 2}
    ds_write_b32 v{kB}, v{q+6} offset:{KR_COPY + 2*(L0-256-7) + 4}
    ds_write_b64 v{kB}, v[{q+4}:{q+5}] offset:{KR_COPY + 2*(L0-256-7) + 8}
    ds_write_b16 v{kB}, v{T2+3} offset:{KR_COPY + 2*(L0-256-7) + 16}
    s_mov_b32 exec_lo, 0
    ds_write_b16 v{t2}, v{q+7} offset:{2*(L0-580)}
    ds_write_b16 v{t2}, v{q+7} offset:{2*(L0-579)}
    ds_write_b32 v{t2}, v{q+7} offset:{KR_COPY + 2*(L0-580) + 2}
    s_mov_b64 exec, -1
    """)
    a.nopflush()
    a.raw("CV_kfin_done:")
    a.last = {}
    a(f"""
    ds_write_b32 v{oadr}, v{one} offset:{4*F_K}
    s_lshl_b64 s[66:67], s[66:67], {F_K}
    """)
    R.put(q, 8); R.put(D, 12); R.put(PD, 8); R.put(TB, 7)
    for p in pk: R.put(p)
    R.put(rd); R.put(tp, 2); R.put(kA); R.put(kB); R.put(kC)
    if not OFFL: xstage()
    poll(66)
    TK = R.get(40, 2); KF = R.get(12, 2); HF = R.get(10, 2)
    acc = R.get(32, 2)
    NU = 6
    UF = [R.get(4, 2) for _ in range(4)] + [aT, lane]
    US = R.get(4, 2)
    S1 = R.get(12, 2)
    W2f = R.get(4, 2); W3f = R.get(4, 2)
    gam = list(range(-3, 29))
    def ldU(i):
        if i < len(gam):
            a(f"ds_read_b128 v[{UF[i%NU]}:{UF[i%NU]+3}], v{aU} offset:{(gam[i]+3)*128}")
    for sg in range(10):
        o = (9 - sg) * 32; base = aT
        if o >= 160: base = aT2; o -= 160
        a(f"ds_read2_b32 v[{TK+4*sg}:{TK+4*sg+1}], v{base} offset0:{o} offset1:{o+1}")
        a(f"ds_read2_b32 v[{TK+4*sg+2}:{TK+4*sg+3}], v{base} offset0:{o+2} offset1:{o+3}")
    for ai, aa in enumerate((2, 3, 4)):
        a(f"ds_read_b64 v[{KF+4*ai}:{KF+4*ai+1}], v{aKF} offset:{2*(79 - 16*aa)}")
        a(f"ds_read_b64 v[{KF+4*ai+2}:{KF+4*ai+3}], v{aKF} offset:{144 + 2*(79 - 16*aa)}")
    for aa in (7, 6, 5, 4):
        a(f"ds_read_b64 v[{HF+2*(7-aa)}:{HF+2*(7-aa)+1}], v{aHF} offset:{576 + 2*(127 - 16*aa)}")
    a(f"v_mov_b32 v{HF+8}, 0"); a(f"v_mov_b32 v{HF+9}, 0")
    a(f"s_mov_b32 s66, {0xfff if WAITALL else 0}")
    a("s_mov_b32 s67, 0xf00")
    poll(66)
    stamp(a, 5)
    if os.environ.get("MPRIO"): a(f"s_setprio {os.environ['MPRIO']}")
    a(f"ds_read_b128 v[{US}:{US+3}], v{aS}")
    for i in range(NU - 1): ldU(i)
    scale_from_flags()
    a(f"""
    s_add_u32 s59, s59, s52
    s_sub_u32 s59, s59, 277
    s_lshl_b64 s[66:67], 1, s57
    s_lshl_b64 s[66:67], s[66:67], {F_A}
    s_cmp_eq_u32 s23, 1
    """)
    fillers = []
    inited = set()
    def fill(n):
        for _ in range(n):
            if fillers: a(fillers.pop(0))
    def mm(J, A, B, nf=1):
        c = f"v[{acc+4*J}:{acc+4*J+3}]"
        a(f"v_mfma_f32_16x16x32_f16 {c}, v[{A}:{A+3}], v[{B}:{B+3}], {c if J in inited else 0}")
        inited.add(J)
        fill(nf)
    def direct(i, nf=1):
        g = gam[i]
        ldU(i + NU - 1)
        extra = []
        for J in range(8):
            sg = 4*J - g
            if 0 <= sg <= 7: mm(J, TK + 4*sg, UF[i % NU], nf)
            if sg == 8: extra.append((J, TK + 32))
            if sg == 16: extra.append((J, TK + 36))
        if extra:
            if SKIPW and all(J in inited for J, _ in extra):
                p0 = a.pos
                a.raw(f"s_cbranch_scc1 CV_sk{i}")
                for J, A in extra: mm(J, A, UF[i % NU], 0)
                a.raw(f"CV_sk{i}:")
                d = a.pos - p0
                for k in list(a.last):
                    if k[0] != 'mfma_wt' and a.last[k] < p0: a.last[k] += d
            else:
                for J, A in extra: mm(J, A, UF[i % NU], nf)
    di = 0
    for b in range(6):
        nf0 = 4 if b == 0 else 1
        a(f"v_mfma_f32_16x16x32_f16 v[{S1}:{S1+3}], v[{US}:{US+3}], v[{BX}:{BX+3}], 0"); fill(nf0)
        a(f"v_mfma_f32_16x16x32_f16 v[{S1+4}:{S1+7}], v[{US}:{US+3}], v[{BX+4}:{BX+7}], 0"); fill(nf0)
        if b < 4:
            a(f"v_mfma_f32_16x16x32_f16 v[{S1+8}:{S1+11}], v[{US}:{US+3}], v[{BX+8}:{BX+11}], 0"); fill(nf0)
        if b < 5: a(f"ds_read_b128 v[{US}:{US+3}], v{aS} offset:{512*(b+1)}")
        for _ in range(2): direct(di, 3 if b == 0 else 1); di += 1
        fill(len(fillers))
        cv = [f"v_cvt_pk_f16_f32 v{W2f+j}, v{S1+2*j}, v{S1+2*j+1}" for j in range(4)]
        if b < 4:
            cv += [f"v_cvt_pk_f16_f32 v{W3f+2*(b&1)}, v{S1+8}, v{S1+9}", f"v_cvt_pk_f16_f32 v{W3f+2*(b&1)+1}, v{S1+10}, v{S1+11}"]
        fillers.extend(cv)
        for _ in range(3): direct(di); di += 1
        fill(len(fillers))
        for ai, aa in enumerate((2, 3, 4)):
            if b + aa <= 7: mm(b + aa, W2f, KF + 4*ai)
        if b in (1, 3):
            Bq = b >> 1
            for aa in (4, 5, 6, 7):
                if aa + 2*Bq <= 7: mm(aa + 2*Bq, W3f, HF + 2*(7-aa))
    while di < len(gam): direct(di); di += 1
    assert len(inited) == 8
    for x in UF[:4]: R.put(x, 4)
    R.put(US, 4); R.put(S1, 12); R.put(W2f, 4); R.put(W3f, 4); R.put(TK, 40); R.put(BX, 12); R.put(KF, 12); R.put(HF, 10)
    stamp(a, 6)
    a(f"""
    s_mul_i32 s65, s23, {32*36864}
    s_lshl_b32 s63, s24, 6
    s_add_u32 s63, s63, s65
    s_add_u32 s63, s63, {WS_BT}
    v_lshrrev_b32 v{t0}, 6, v{t3}
    v_mul_u32_u24 v{t0}, 36800, v{t0}
    v_add_u32 v{t3}, v{t3}, v{t0}
    """)
    PA = R.get(16, 2)
    def tail(w):
        keep = acc + 16*w; send = acc + 16*(1-w)
        for j in range(4):
            a(f"ds_write_b128 v{own}, v[{send+4*j}:{send+4*j+3}] offset:{j*1024}")
        a(f"ds_write_b32 v{oadr}, v{one} offset:{4*F_A}")
        poll(66)
        stamp(a, 7)
        for j in range(4):
            a(f"ds_read_b128 v[{PA+4*j}:{PA+4*j+3}], v{prt} offset:{j*1024}")
        for j in range(4):
            k = keep + 4*j
            for e in range(4): a(f"v_add_f32 v{k+e}, v{k+e}, v{PA+4*j+e}")
            for e in range(4): a(f"v_ldexp_f32 v{k+e}, v{k+e}, s59")
            a(f"""
            v_cvt_pk_bf16_f32 v{k}, v{k}, v{k+1}
            v_cvt_pk_bf16_f32 v{k+1}, v{k+2}, v{k+3}
            buffer_store_dwordx2 v[{k}:{k+1}], v{t3}, s[12:15], s63 offen{SC}
            s_add_u32 s63, s63, {8*36864}
            """)
        stamp(a, 8)
        stamp_dump(a, 9, 12, 20, t0, t1)
        if MERGE:
            a("s_mul_hi_u32 s19, s21, 178956971")
            a("s_lshl_b32 s19, s19, 2"); a(f"s_add_u32 s19, s19, {D_CONV}"); a("s_mov_b32 s18, 23"); a.raw("s_branch PH2")
        else: a.raw("s_endpgm")
    a("s_cmp_eq_u32 s23, 1")
    snapE = a.branch("s_cbranch_scc1 CV_tail1")
    tail(0)
    a.restore("CV_tail1", snapE)
    tail(1)
```

```python
from asmlib import *
import os
from layout import *
from k1_conv import LOG2E

ASLOT = 16384
BSLOT = 24576
if OFFL:
    ABASE = 17408; AOFF = [0, 16384, 52224]; BRING = 86016; G_KVI = 0
else:
    ABASE = 0; AOFF = [0, 16384, 32768]; BRING = 3 * ASLOT; G_KVI = BRING + 3 * BSLOT
KVI_H = 7424
G_LDS = G_KVI + 2 * KVI_H
EPS = 0x358637bd
AZ = int(os.environ.get('AZ', 1))
LAT = int(os.environ.get('LAT', 0))

def lanemask(f):
    m = 0
    for l in range(64):
        if f(l & 15, l >> 4): m |= 1 << l
    return m
MASKS = {}
def set_exec(a, m):
    if m in MASKS:
        a(f"s_mov_b64 exec, s[{MASKS[m]}:{MASKS[m]+1}]"); return
    a(f"s_mov_b32 exec_lo, {m & 0xffffffff:#x}")
    a(f"s_mov_b32 exec_hi, {m >> 32:#x}")
def preload_masks(a, ms, base):
    for i, m in enumerate(ms):
        MASKS[m] = base + 2*i
        a(f"s_mov_b32 s{base+2*i}, {m & 0xffffffff:#x}")
        a(f"s_mov_b32 s{base+2*i+1}, {m >> 32:#x}")

def gen_gemm(a, R):
    a(f"s_cmp_ge_u32 s20, {9 if MERGE else 8}")
    a("s_cbranch_scc1 GM_exit")
    if MERGE:
        a("s_cmp_lg_u32 s20, 8")
        a("s_cbranch_scc1 GM_not8")
        for _ in range(11): a.raw("s_barrier")
        a.raw("s_branch PH2")
        a.raw("GM_not8:")
    lane = R.get(); t0 = R.get(); t1 = R.get(); t2 = R.get(); t3 = R.get()
    stamp(a, 0)
    a(f"""
    s_load_dwordx4 s[4:7], s[0:1], 0
    s_load_dwordx4 s[36:39], s[0:1], 112
    v_and_b32 v{lane}, 63, v0
    s_sub_u32 s21, s17, 12
    s_and_b32 s22, s16, 3
    s_lshl_b32 s22, s22, 2
    s_lshr_b32 s23, s16, 2
    s_and_b32 s24, s21, 3
    s_lshr_b32 s25, s21, 2
    s_lshl_b32 s26, s23, 1
    s_add_u32 s26, s26, s24
    s_mul_i32 s27, s23, 5
    s_add_u32 s27, s27, s25
    s_cmp_ge_u32 s21, 16
    s_cselect_b32 s24, s26, s24
    s_cselect_b32 s27, 4, s27
    s_add_u32 s28, s22, s24
    s_add_u32 s29, s24, s25
    s_lshl_b32 s29, s29, 1
    s_cmp_ge_u32 s29, 9
    s_cselect_b32 s30, 9, 0
    s_sub_u32 s29, s29, s30
    """)
    NP = int(os.environ.get("NP", 0)); NR = 9 - NP
    if NP: a(f"""
    s_mul_i32 s29, s24, 3
    s_lshr_b32 s29, s29, 1
    s_add_u32 s29, s29, s25
    s_cmp_ge_u32 s29, {NR}
    s_cselect_b32 s30, {NR}, 0
    s_sub_u32 s29, s29, s30
    """)
    def st_calc(s):
        if s < NP: return f"s_mov_b32 s56, {s}"
        return f"""s_add_u32 s56, s29, {s - NP}
        s_cmp_ge_u32 s56, {NR}
        s_cselect_b32 s60, {NR}, 0
        s_sub_u32 s56, s56, s60
        s_add_u32 s56, s56, {NP}"""
    def srd_setup():
        a(f"""
    s_mov_b32 s8, s4
    s_mov_b32 s9, s5
    s_mov_b32 s10, 2359296
    s_mov_b32 s11, 0x20000
    s_mov_b32 s12, s6
    s_mov_b32 s13, s7
    s_mov_b32 s14, 1990656
    s_mov_b32 s15, 0x20000
    s_mov_b32 s40, s38
    s_mov_b32 s41, s39
    s_mov_b32 s42, {WS_SIZE}
    s_mov_b32 s43, 0x20000
    s_mov_b32 s44, s36
    s_mov_b32 s45, s37
    s_mov_b32 s46, 256
    s_mov_b32 s47, 0x20000
    """)
    a("s_cmp_lt_u32 s20, 4")
    snapC = a.branch("s_cbranch_scc1 GM_cons")
    vA = R.get(4); vB = R.get(6)
    a(f"""
    s_sub_u32 s48, s20, 4
    v_lshrrev_b32 v{t0}, 3, v{lane}
    v_mul_u32_u24 v{t0}, 1152, v{t0}
    v_and_b32 v{t1}, 7, v{lane}
    v_bfe_u32 v{t2}, v{lane}, 4, 1
    v_xor_b32 v{t1}, v{t1}, v{t2}
    v_lshl_add_u32 v{vA}, v{t1}, 4, v{t0}
    v_xor_b32 v{vA+1}, 32, v{vA}
    v_xor_b32 v{vA+2}, 64, v{vA}
    v_xor_b32 v{vA+3}, 0x60, v{vA}
    s_lshl_b32 s49, s28, 7
    s_lshl_b32 s50, s48, 5
    s_add_u32 s49, s49, s50
    s_mul_i32 s49, s49, 1152
    s_lshl_b32 s50, s48, 12
    s_mul_i32 s51, s48, {16*3456}
    s_mul_i32 s52, s48, {16*384}
    s_add_u32 s52, s52, {BRING}
    """)
    a(f"""
    s_mul_i32 s53, s27, 144
    s_add_u32 s54, s53, {2304 - 144}
    s_add_u32 s53, s53, 1152
    s_mul_i32 s55, s27, 96
    s_sub_u32 s55, s55, 288
    s_cmp_eq_u32 s27, 8
    s_cselect_b32 s53, 768, s53
    s_cselect_b32 s54, 768, s54
    s_cselect_b32 s55, 768, s55
    """)
    def stage_st(s):
        a(st_calc(s))
        a(f"""
        s_lshl_b32 s57, s56, 7
        s_add_u32 s57, s57, s49
        s_mul_i32 s58, s56, {64*3456}
        s_add_u32 s58, s58, s51
        """)
    def issueA(s):
        for i in range(4):
            a(f"""
            s_add_u32 s59, s57, {8*i*1152}
            s_add_u32 m0, s50, {ABASE + AOFF[s % 3] + i*1024}
            buffer_load_dwordx4 v{vA + i}, s[8:11], s59 offen lds
            """)
    def issueB(s, i):
        a(f"""
        s_add_u32 m0, s52, {(s % 3)*BSLOT + i*1024}
        buffer_load_dwordx4 v{vB + i}, s[12:15], s58 offen lds
        """)
    stage_st(0)
    a("s_mov_b32 s60, 2731")
    def calcB(i):
        a(f"""
        v_add_u32 v{t0}, {64*i}, v{lane}
        v_mul_lo_u32 v{t1}, v{t0}, s60
        v_lshrrev_b32 v{t1}, 16, v{t1}
        v_mul_u32_u24 v{t2}, 24, v{t1}
        v_sub_u32 v{t0}, v{t0}, v{t2}
        v_and_b32 v{t2}, 2, v{t1}
        v_lshrrev_b32 v{t3}, 1, v{t1}
        v_and_b32 v{t3}, 4, v{t3}
        v_or_b32 v{t2}, v{t2}, v{t3}
        v_xor_b32 v{t0}, v{t0}, v{t2}
        v_mov_b32 v{t2}, s53
        v_mov_b32 v{t3}, s54
        v_cmp_lt_u32 vcc, 8, v{t0}
        v_cndmask_b32 v{t2}, v{t2}, v{t3}, vcc
        v_mov_b32 v{t3}, s55
        v_cmp_lt_u32 vcc, 17, v{t0}
        v_cndmask_b32 v{t2}, v{t2}, v{t3}, vcc
        v_lshl_add_u32 v{t2}, v{t0}, 4, v{t2}
        v_mul_u32_u24 v{t1}, 3456, v{t1}
        v_add_u32 v{vB+i}, v{t1}, v{t2}
        """)
    calcB(0); calcB(1)
    srd_setup()
    issueA(0)
    issueB(0, 0); issueB(0, 1)
    for i in range(2, 6):
        calcB(i); issueB(0, i)
    stamp(a, 1)
    a("s_barrier")
    for s in (1,):
        stage_st(s); issueA(s)
        for i in range(6): issueB(s, i)
    gA = R.get(); gacc = R.get(2); gx = R.get(32, 4); ga = R.get(8)
    a(f"""
    s_load_dwordx2 s[62:63], s[0:1], 96
    s_cmp_eq_u32 s27, 8
    s_cselect_b32 s61, s48, 9
    v_bfe_u32 v{t0}, v{lane}, 1, 1
    v_lshrrev_b32 v{t1}, 2, v{lane}
    v_and_b32 v{t1}, 6, v{t1}
    v_or_b32 v{t0}, v{t0}, v{t1}
    v_lshlrev_b32 v{t0}, 4, v{t0}
    v_lshl_add_u32 v{gA}, v{lane}, 7, v{t0}
    s_lshl_b32 s60, s48, 13
    v_add_u32 v{gA}, s60, v{gA}
    v_mov_b32 v{gacc}, 0
    v_mov_b32 v{gacc+1}, 0
    """)
    a.wait(lg=0)
    def gate_ld(s):
        for l in st_calc(s).split("\n"): a.raw(l.strip())
        for l in f"""s_lshl_b32 s56, s56, 7
        s_load_dwordx16 s[64:79], s[62:63], s56
        s_add_u32 s56, s56, 64
        s_load_dwordx16 s[80:95], s[62:63], s56""".split("\n"): a.raw(l.strip())
    def gate(s):
        a("s_cmp_ge_u32 s61, 2")
        sn = a.branch(f"s_cbranch_scc1 GM_nogate{s}")
        a(f"v_add_u32 v{ga}, {ABASE + AOFF[s % 3]}, v{gA}")
        for c in range(1, 8): a(f"v_xor_b32 v{ga+c}, {16*c}, v{ga}")
        for c in range(8): a(f"ds_read_b128 v[{gx+4*c}:{gx+4*c+3}], v{ga+c}")
        a.wait(lg=0)
        for i in range(32): a(f"v_dot2c_f32_bf16 v{gacc+(i&1)}, s{64+i}, v{gx+i}")
        if s < 8: gate_ld(s + 1)
        a.merge(f"GM_nogate{s}", sn)
    stamp(a, 2)
    a.wait(vm=10)
    stamp(a, 3)
    if STAMPS: stamp_dump(a, 4, 40, 20, t0, t1); a.raw("s_mov_b64 exec, -1")
    gate_ld(0)
    a("s_barrier")
    stage_st(2); issueA(2)
    for i in range(6): issueB(2, i)
    for s in range(8):
        gate(s)
        a.wait(vm=10 if s + 2 <= 8 else 0)
        a("s_barrier")
        if OFFL and s == 4:
            for j in range(4): a(f"v_mov_b32 v{gx+j}, 0")
            a(f"v_lshlrev_b32 v{t0}, 4, v0")
            a(f"v_subrev_u32 v{t0}, 4096, v{t0}")
            for i in range(4): a(f"ds_write_b128 v{t0}, v[{gx}:{gx+3}] offset:{4096*i}")
            a.wait(lg=0)
        if s + 3 <= 8 and not os.environ.get("NOLOAD"):
            stage_st(s + 3); issueA(s + 3)
            for i in range(6): issueB(s + 3, i)
    gate(8)
    if LAT:
        a("s_cmp_eq_u32 s27, 8")
        a("s_cbranch_scc1 GM_ld_q")
        a("s_barrier")
        V6 = gx; V7 = gx + 8
        a(f"""
        v_lshlrev_b32 v{t0}, 2, v0
        v_subrev_u32 v{t0}, 1024, v{t0}
        v_add_u32 v{t1}, {G_KVI}, v{t0}
        """)
        for i in range(8): a(f"ds_read_b32 v{V6+i}, v{t1} offset:{1024*i}")
        for i in range(7): a(f"ds_read_b32 v{V7+i}, v{t1} offset:{KVI_H + 1024*i}")
        a(f"v_min_u32 v{t2}, {G_KVI + 124}, v{t1}")
        a(f"ds_read_b32 v{V7+7}, v{t2} offset:{KVI_H + 7168}")
        a(f"""
        s_mul_i32 s33, s27, 7296
        s_add_u32 s33, s33, {WS_KVS}
        v_mov_b32 v{t2}, 0x7f000000
        v_cmp_gt_u32 vcc, 288, v0
        v_cndmask_b32 v{t1}, v{t2}, v{t0}, vcc
        """)
        for i in range(8): a(f"v_add_f32 v{V6+i}, v{V6+i}, v{V7+i}")
        for i in range(4):
            a(f"buffer_atomic_add_f32 v{V6+i}, v{t0}, s[40:43], s33 offen offset:{1024*i}")
        a(f"""
        s_add_u32 s33, s33, 4096
        buffer_atomic_add_f32 v{V6+4}, v{t0}, s[40:43], s33 offen
        buffer_atomic_add_f32 v{V6+5}, v{t0}, s[40:43], s33 offen offset:1024
        buffer_atomic_add_f32 v{V6+6}, v{t0}, s[40:43], s33 offen offset:2048
        buffer_atomic_add_f32 v{V6+7}, v{t1}, s[40:43], s33 offen offset:3072
        """)
        a.raw("s_endpgm")
        a.restore("GM_ld_q", ([], []))
    a("s_cmp_ge_u32 s61, 2")
    a(f"s_cbranch_scc1 {'GM_ld_end' if MERGE else 'GM_exit'}")
    a("s_nop 3")
    a(f"""
    v_add_f32 v{gacc}, v{gacc}, v{gacc+1}
    v_cvt_pk_bf16_f32 v{gacc}, v{gacc}, v{gacc}
    v_lshlrev_b32 v{gacc}, 16, v{gacc}
    v_mul_f32 v{gacc}, {LOG2E}, v{gacc}
    v_exp_f32 v{gacc}, -v{gacc}
    v_add_f32 v{gacc}, 1.0, v{gacc}
    v_rcp_f32 v{gacc}, v{gacc}
    v_cvt_pk_bf16_f32 v{gacc}, v{gacc}, v{gacc}
    v_lshlrev_b32 v{gacc}, 16, v{gacc}
    v_lshlrev_b32 v{t0}, 2, v{lane}
    s_lshl_b32 s56, s28, 9
    s_lshl_b32 s60, s48, 8
    s_add_u32 s56, s56, s60
    s_add_u32 s56, s56, {WS_G}
    buffer_store_dword v{gacc}, v{t0}, s[40:43], s56 offen{SC}
    """)
    if MERGE:
        a.raw("GM_ld_end:")
        a.raw("s_barrier")
        a.raw("s_branch PH2")
    else: a.raw("s_endpgm")
    R.put(gA); R.put(gacc, 2); R.put(gx, 32); R.put(ga, 8)
    R.put(vA, 4); R.put(vB, 6)
    a.restore("GM_cons", snapC)
    col = R.get(); rq = R.get()
    acc = R.get(96, 4)
    AF = [R.get(16, 4), R.get(16, 4)]
    BF = R.get(24, 4)
    aA = R.get(2); aB = R.get(6)
    ac = lambda mt, T: acc + 4 * (mt * 6 + T)
    srd_setup()
    if not AZ:
        tk = AF[1]
        a(f"""
        s_mov_b32 s61, 1
        s_lshl_b32 s31, s27, 2
        v_mov_b32 v{tk}, 1
        v_mov_b32 v{tk+1}, 0
        s_cmp_eq_u32 s27, 8
        s_cselect_b32 s62, 1, s20
        s_cmp_lg_u32 s62, 0
        """)
        snapT = a.branch("s_cbranch_scc1 GM_notick")
        a.raw("s_mov_b64 exec, 1")
        a.raw(f"buffer_atomic_add v{tk}, v{tk+1}, s[44:47], s31 offen sc0")
        a.raw("s_mov_b64 exec, -1")
        a.merge("GM_notick", snapT)
    if not OFFL:
        zz = AF[0]
        for j in range(4): a(f"v_mov_b32 v{zz+j}, 0")
        a(f"v_lshlrev_b32 v{t0}, 4, v0")
        a(f"v_add_u32 v{t0}, {G_KVI}, v{t0}")
        for i in range(3): a(f"ds_write_b128 v{t0}, v[{zz}:{zz+3}] offset:{4096*i}")
        a("v_cmp_gt_u32 vcc, 160, v0")
        a("s_and_saveexec_b64 s[32:33], vcc")
        a(f"ds_write_b128 v{t0}, v[{zz}:{zz+3}] offset:12288")
        a("s_mov_b64 exec, -1")
    a(f"""
    s_and_b32 s48, s20, 1
    s_lshr_b32 s49, s20, 1
    v_and_b32 v{col}, 15, v{lane}
    v_lshrrev_b32 v{rq}, 4, v{lane}
    v_lshrrev_b32 v{t0}, 1, v{col}
    v_xor_b32 v{t0}, v{t0}, v{rq}
    v_lshlrev_b32 v{t0}, 4, v{t0}
    v_and_b32 v{t1}, 12, v{col}
    v_add_u32 v{t1}, v{t1}, v{col}
    v_lshl_add_u32 v{t0}, v{t1}, 7, v{t0}
    s_lshl_b32 s50, s48, 13
    s_add_u32 s50, s50, {ABASE}
    v_add_u32 v{aA}, s50, v{t0}
    v_xor_b32 v{aA+1}, 64, v{aA}
    """)
    rr = BF; cc = BF + 1; gg = BF + 2
    a(f"""
    v_lshrrev_b32 v{rr}, 2, v{lane}
    v_and_b32 v{rr}, 3, v{rr}
    v_and_b32 v{cc}, 3, v{lane}
    v_and_b32 v{gg}, 2, v{rr}
    v_and_b32 v{t0}, 1, v{rq}
    v_lshl_or_b32 v{gg}, v{t0}, 2, v{gg}
    v_lshl_add_u32 v{rr}, v{rq}, 3, v{rr}
    v_mul_u32_u24 v{rr}, 384, v{rr}
    v_add_u32 v{rr}, {BRING}, v{rr}
    s_mul_i32 s51, s49, 9
    s_mul_i32 s52, s49, 6
    s_mul_i32 s53, s49, 24
    s_cmp_eq_u32 s27, 8
    s_cselect_b64 s[54:55], -1, 0
    """)
    for T in range(6):
        if T < 4:
            a(f"v_add_u32 v{t0}, s51, v{cc}")
            k = [0, 5, 18, 23][T]
            if k: a(f"v_add_u32 v{t0}, {k}, v{t0}")
        elif T == 5:
            a(f"v_add_u32 v{t0}, s52, v{cc}"); a(f"v_add_u32 v{t0}, 38, v{t0}")
        else:
            a(f"""
            v_mul_u32_u24 v{t0}, 18, v{cc}
            v_add_u32 v{t0}, s51, v{t0}
            v_add_u32 v{t0}, 4, v{t0}
            v_add_u32 v{t1}, s52, v{cc}
            v_add_u32 v{t1}, 34, v{t1}
            v_cmp_lt_u32 vcc, 1, v{cc}
            v_cndmask_b32 v{t0}, v{t0}, v{t1}, vcc
            """)
        a(f"""
        v_add_u32 v{t1}, s53, v{cc}
        v_add_u32 v{t1}, {4*T}, v{t1}
        v_cndmask_b32 v{t0}, v{t0}, v{t1}, s[54:55]
        v_lshrrev_b32 v{t1}, 1, v{t0}
        v_xor_b32 v{t1}, v{t1}, v{gg}
        v_and_b32 v{t0}, 1, v{t0}
        v_lshlrev_b32 v{t0}, 3, v{t0}
        v_lshl_add_u32 v{t0}, v{t1}, 4, v{t0}
        v_add_u32 v{aB+T}, v{rr}, v{t0}
        """)
    a(f"""
    v_mov_b32 v{t2}, {EPS:#x}
    v_cndmask_b32 v{t0}, 0, v{t2}, s[54:55]
    v_lshrrev_b32 v{t3}, 2, v{col}
    v_cmp_eq_u32 vcc, 1, v{t3}
    v_cndmask_b32 v{t1}, v{t2}, v{t0}, vcc
    """)
    for mt in range(4):
        for T in range(6):
            src = t0 if T in (2, 3) else (t1 if T == 4 else t2)
            for j in range(4): a(f"v_mov_b32 v{ac(mt,T)+j}, v{src}")
    if not STAMPS:
        preload_masks(a, [lanemask(f) for f in (lambda c, r: (c >> 2) != 1, lambda c, r: r == 1, lambda c, r: r == 2, lambda c, r: c < 2, lambda c, r: c in (2, 3),
            lambda c, r: r == 1 and c < 2, lambda c, r: r == 1 and c in (2, 3), lambda c, r: r == 2 and c < 2, lambda c, r: r == 2 and c in (2, 3), lambda c, r: c >= 8)], 66)
    a.raw("s_barrier")
    if not AZ:
        a.raw("s_waitcnt vmcnt(0)")
        a(f"v_readfirstlane_b32 s61, v{tk}")
        a("s_cmp_lg_u32 s61, 0")
        snapZ = a.branch("s_cbranch_scc1 GM_nozero")
        Z4 = BF
        for j in range(4): a(f"v_mov_b32 v{Z4+j}, 0")
        a(f"""
        v_lshlrev_b32 v{Z4+4}, 4, v{lane}
        s_mul_i32 s33, s27, 7296
        s_add_u32 s33, s33, {WS_KVS}
        """)
        for i in range(7):
            a.raw(f"buffer_store_dwordx4 v[{Z4}:{Z4+3}], v{Z4+4}, s[40:43], s33 offen sc1")
            a.raw("s_add_u32 s33, s33, 1024")
        a.raw("s_mov_b64 exec, 0xff")
        a.raw(f"buffer_store_dwordx4 v[{Z4}:{Z4+3}], v{Z4+4}, s[40:43], s33 offen sc1")
        a.raw("s_mov_b64 exec, -1")
        a.raw("s_nop 2")
        a.merge("GM_nozero", snapZ)
    def setflag():
        a("s_cmp_lg_u32 s61, 0")
        sn = a.branch("s_cbranch_scc1 GM_noflag", rawblock=True)
        a.raw("s_waitcnt vmcnt(0)")
        a.raw("s_mov_b64 exec, 1")
        a.raw(f"v_mov_b32 v{t0}, 1")
        a.raw(f"v_mov_b32 v{t1}, 0")
        a.raw(f"buffer_atomic_add v{t0}, v{t1}, s[44:47], s31 offen offset:64")
        a.raw("s_mov_b64 exec, -1")
        a.merge("GM_noflag", sn, rawblock=True)
    def ldA1(t, mt):
        f = AF[t & 1]
        return f"ds_read_b128 v[{f+4*mt}:{f+4*mt+3}], v{aA + (t & 1)} offset:{AOFF[(t>>1)%3] + (mt>>1)*4096 + (mt&1)*512}"
    def ldB1(t, T, h):
        o = ((t >> 1) % 3) * BSLOT + (t & 1) * 32 * 384 + h * 4 * 384
        return f"ds_read_b64_tr_b16 v[{BF+4*T+2*h}:{BF+4*T+2*h+1}], v{aB+T} offset:{o}"
    a.wait(lg=0)
    a("s_barrier")
    stamp(a, 1)
    for mt in range(4): a(ldA1(0, mt))
    for T in range(6):
        a(ldB1(0, T, 0)); a(ldB1(0, T, 1))
    for t in range(18):
        f = AF[t & 1]
        if t == 4: stamp(a, 6)
        if t == 10: stamp(a, 7)
        fill = {g: [] for g in range(24)}
        if t > 0:
            fill[0].append(ldB1(t, 5, 0)); fill[1].append(ldB1(t, 5, 1))
        if t < 17:
            n = t + 1
            if t & 1 == 0:
                for T in range(5):
                    fill[4*(T+1)].append(ldB1(n, T, 0)); fill[4*(T+1)+1].append(ldB1(n, T, 1))
                for mt in range(4): fill[6 + 4*mt].append(ldA1(n, mt))
            else:
                fill[7].append("BAR")
                seq = [ldB1(n, 0, 0), ldB1(n, 0, 1), ldA1(n, 0), ldA1(n, 1), ldB1(n, 1, 0), ldB1(n, 1, 1), ldA1(n, 2), ldA1(n, 3),
                       ldB1(n, 2, 0), ldB1(n, 2, 1), ldB1(n, 3, 0), ldB1(n, 3, 1), ldB1(n, 4, 0), ldB1(n, 4, 1)]
                for i, x in enumerate(seq): fill[8 + i].append(x)
        for T in range(6):
            for mt in range(4):
                c = f"v[{ac(mt,T)}:{ac(mt,T)+3}]"
                a(f"v_mfma_f32_16x16x32_bf16 {c}, v[{f+4*mt}:{f+4*mt+3}], v[{BF+4*T}:{BF+4*T+3}], {c}")
                for x in fill[4*T + mt]:
                    if x == "BAR":
                        a.wait(lg=0)
                        a("s_barrier")
                        if t == 3 and not AZ: setflag()
                    else: a(x)
    stamp(a, 2)
    R.put(AF[0], 16); R.put(AF[1], 16); R.put(BF, 24); R.put(aA, 2); R.put(aB, 6)
    FOFF = f'0 offen offset:{D_AUX}' if AZ else 's31 offen offset:64'
    FT = 16 if AZ else 1
    tm = R.get(4, 2); L2 = R.get(2); fl = R.get(); zr = R.get()
    a(f"""
    v_mov_b32 v{zr}, 0
    v_mov_b32 v{fl}, 16
    s_cmp_lg_u32 s20, 0
    """)
    a.raw("s_cbranch_scc1 GM_nofl")
    a.raw("s_mov_b64 exec, 1")
    a(f"buffer_load_dword v{fl}, v{zr}, s[44:47], {FOFF} sc1")
    a.raw("s_mov_b64 exec, -1")
    a.raw("GM_nofl:")
    a(f"""
    v_mov_b32 v{L2}, {LOG2E:#x}
    v_mov_b32 v{L2+1}, {LOG2E:#x}
    s_mov_b32 s56, {EPS:#x}
    """)
    def phi(r, keepmask=None):
        a(f"v_pk_mul_f32 v[{tm}:{tm+1}], v[{r}:{r+1}], v[{L2}:{L2+1}]")
        a(f"v_pk_mul_f32 v[{tm+2}:{tm+3}], v[{r+2}:{r+3}], v[{L2}:{L2+1}]")
        for j in range(4): a(f"v_exp_f32_e64 v{tm+j}, v{tm+j} clamp")
        if keepmask is not None: set_exec(a, keepmask)
        for j in range(4): a(f"v_max_f32 v{r+j}, s56, v{r+j}")
        a(f"v_pk_add_f32 v[{r}:{r+1}], v[{r}:{r+1}], v[{tm}:{tm+1}]")
        a(f"v_pk_add_f32 v[{r+2}:{r+3}], v[{r+2}:{r+3}], v[{tm+2}:{tm+3}]")
        if keepmask is not None: a("s_mov_b64 exec, -1")
    def pack(d, r):
        a(f"v_cvt_pk_bf16_f32 v{d}, v{r}, v{r+1}")
        a(f"v_cvt_pk_bf16_f32 v{d+1}, v{r+2}, v{r+3}")
    vq = R.get(); vq2 = lane
    a(f"""
    v_lshlrev_b32 v{vq}, 6, v{col}
    v_lshl_add_u32 v{vq}, v{rq}, 4, v{vq}
    v_add_u32 v{vq2}, 36864, v{vq}
    s_lshl_b32 s57, s28, 1
    s_add_u32 s57, s57, s48
    s_mul_i32 s57, s57, 73728
    """)
    a("s_cmp_eq_u32 s27, 8")
    snapQ = a.branch("s_cbranch_scc1 GM_epi_q")
    F = {(T, p): R.get(4, 4) for T in range(5) for p in range(2)}
    AL = [R.get(4, 4) for p in range(2)]
    m_nv = lanemask(lambda c, r: (c >> 2) != 1)
    KVt = [ac(0, 0), ac(0, 1), ac(0, 2), ac(0, 3), ac(0, 4), ac(1, 0), ac(1, 1)]
    prods = [(('F', 2), 0), (('F', 3), 1), (('L', 0), 0), (('L', 0), 1), (('F', 2), 4), (('F', 3), 4), (('L', 0), 4)]
    a(f"v_cmp_eq_u32 s[64:65], 1, v{t3}")
    a(f"v_mov_b32 v{t1}, 0x3f803f80")
    for p in range(2):
        for mt in (2*p, 2*p+1):
            for T in (0, 1, 4, 2, 3):
                r = ac(mt, T)
                if T in (0, 1): phi(r)
                if T == 4: phi(r, m_nv)
                pack(F[(T, p)] + 2 * (mt & 1), r)
        for j in range(4): a(f"v_cndmask_b32 v{AL[p]+j}, v{t1}, v{F[(4,p)]+j}, s[64:65]")
        for i, (A_, B_) in enumerate(prods):
            Ar = F[(A_[1], p)] if A_[0] == 'F' else AL[p]
            Br = F[(B_, p)]
            c = f"v[{KVt[i]}:{KVt[i]+3}]"
            a(f"v_mfma_f32_16x16x32_bf16 {c}, v[{Ar}:{Ar+3}], v[{Br}:{Br+3}], {c if p else 0}")
    stamp(a, 4)
    b1 = AL[0]; b2 = AL[0] + 1; b3 = AL[0] + 2
    a(f"""
    s_mul_i32 s63, s48, {KVI_H}
    s_mul_i32 s60, s49, {2*456*4}
    s_add_u32 s60, s60, s63
    s_add_u32 s60, s60, {G_KVI}
    v_mul_u32_u24 v{b1}, {4*24*4}, v{rq}
    v_lshl_add_u32 v{b1}, v{col}, 2, v{b1}
    v_add_u32 v{b1}, s60, v{b1}
    v_lshlrev_b32 v{b2}, 2, v{col}
    v_add_u32 v{b2}, s60, v{b2}
    s_mul_i32 s58, s27, 48
    s_mul_i32 s59, s49, 24
    s_add_u32 s58, s58, s59
    s_lshl_b32 s58, s58, 6
    s_add_u32 s58, s58, s57
    s_add_u32 s59, s58, 512
    s_sub_u32 s58, s58, 512
    """)
    def add(base, reg, off): a(f"ds_write_b32 v{base}, v{reg} offset:{4*off}")
    K = KVt
    RS = 24; HS = 456
    for j in range(4): add(b1, K[0] + j, j * RS)
    for j in range(4): add(b1, K[1] + j, HS + (2 + j) * RS + 2)
    set_exec(a, lanemask(lambda c, r: r == 1))
    add(b2, K[2], 16 * RS); add(b2, K[2] + 1, 17 * RS)
    add(b2, K[3] + 2, HS + 2); add(b2, K[3] + 3, HS + RS + 2)
    set_exec(a, lanemask(lambda c, r: r == 2))
    add(b2, K[2], 18 * RS); add(b2, K[3], HS + 18 * RS + 2)
    set_exec(a, lanemask(lambda c, r: c < 2))
    for j in range(4): add(b1, K[4] + j, j * RS + 16)
    set_exec(a, lanemask(lambda c, r: c in (2, 3)))
    for j in range(4): add(b1, K[5] + j, HS + (2 + j) * RS - 2)
    set_exec(a, lanemask(lambda c, r: r == 1 and c < 2))
    add(b2, K[6], 16 * RS + 16); add(b2, K[6] + 1, 17 * RS + 16)
    set_exec(a, lanemask(lambda c, r: r == 1 and c in (2, 3)))
    add(b2, K[6] + 2, HS - 2); add(b2, K[6] + 3, HS + RS - 2)
    set_exec(a, lanemask(lambda c, r: r == 2 and c < 2))
    add(b2, K[6], 18 * RS + 16)
    set_exec(a, lanemask(lambda c, r: r == 2 and c in (2, 3)))
    add(b2, K[6], HS + 18 * RS - 2)
    a("s_mov_b64 exec, -1")
    a(f"v_readfirstlane_b32 s32, v{fl}")
    a(f"s_cmp_ge_u32 s32, {FT}")
    sn = a.branch("s_cbranch_scc1 GM_flagok")
    a.raw("s_mov_b64 exec, 1")
    a.raw("GM_poll:")
    a.raw("s_sleep 8")
    a.raw(f"buffer_load_dword v{fl}, v{zr}, s[44:47], {FOFF} sc1")
    a.raw("s_waitcnt vmcnt(0)")
    a.raw(f"v_readfirstlane_b32 s32, v{fl}")
    a.raw("s_nop 1")
    a.raw(f"s_cmp_lt_u32 s32, {FT}")
    a.raw("s_cbranch_scc1 GM_poll")
    a.raw("s_mov_b64 exec, -1")
    a.merge("GM_flagok", sn)
    a(f"v_add_u32 v{t0}, s58, v{vq}")
    a("s_mov_b32 s62, 36864")
    set_exec(a, lanemask(lambda c, r: c >= 8))
    for p in range(2):
        d = F[(4, p)]
        a(f"buffer_store_dwordx4 v[{d}:{d+3}], v{t0}, s[40:43], {'s62' if p else 0} offen{SC}")
    a("s_mov_b64 exec, -1")
    a.wait(lg=0)
    a("s_barrier")
    stamp(a, 5)
    if not LAT:
        V6 = ac(2, 0); V7 = ac(3, 0)
        a(f"""
        v_lshlrev_b32 v{t0}, 2, v0
        v_add_u32 v{t1}, {G_KVI}, v{t0}
        """)
        for i in range(8): a(f"ds_read_b32 v{V6+i}, v{t1} offset:{1024*i}")
        for i in range(7): a(f"ds_read_b32 v{V7+i}, v{t1} offset:{KVI_H + 1024*i}")
        a(f"v_min_u32 v{t2}, {G_KVI + 124}, v{t1}")
        a(f"ds_read_b32 v{V7+7}, v{t2} offset:{KVI_H + 7168}")
        a(f"""
        s_mul_i32 s33, s27, 7296
        s_add_u32 s33, s33, {WS_KVS}
        v_mov_b32 v{t2}, 0x7f000000
        v_cmp_gt_u32 vcc, 32, v0
        v_cndmask_b32 v{t1}, v{t2}, v{t0}, vcc
        """)
        for i in range(8): a(f"v_add_f32 v{V6+i}, v{V6+i}, v{V7+i}")
        for i in range(4):
            a(f"buffer_atomic_add_f32 v{V6+i}, v{t0}, s[40:43], s33 offen offset:{1024*i}")
        a(f"""
        s_add_u32 s33, s33, 4096
        buffer_atomic_add_f32 v{V6+4}, v{t0}, s[40:43], s33 offen
        buffer_atomic_add_f32 v{V6+5}, v{t0}, s[40:43], s33 offen offset:1024
        buffer_atomic_add_f32 v{V6+6}, v{t0}, s[40:43], s33 offen offset:2048
        buffer_atomic_add_f32 v{V6+7}, v{t1}, s[40:43], s33 offen offset:3072
        """)
    for p in range(2):
        d = F[(0, p)]
        for mt in (2*p, 2*p+1):
            r = ac(mt, 5); phi(r); pack(d + 2 * (mt & 1), r)
        a(f"buffer_store_dwordx4 v[{d}:{d+3}], v{vq2 if p else vq}, s[40:43], s59 offen{SC}")
    stamp(a, 3)
    stamp_dump(a, 8, 40, 20, t0, t1)
    if MERGE:
        a(f"s_mov_b32 s19, {D_GEMM}"); a("s_mov_b32 s18, 143"); a.raw("s_branch PH2")
    else: a.raw("s_endpgm")
    a.restore("GM_epi_q", snapQ)
    if MERGE: a("s_barrier")
    a(f"""
    s_mul_i32 s58, s49, 96
    s_add_u32 s58, s58, 384
    s_lshl_b32 s58, s58, 6
    s_add_u32 s58, s58, s57
    """)
    k = 0
    for T in range(6):
        for p in range(2):
            d = list(F.values())[k % 10]; k += 1
            for mt in (2*p, 2*p+1):
                r = ac(mt, T); phi(r); pack(d + 2 * (mt & 1), r)
            a(f"buffer_store_dwordx4 v[{d}:{d+3}], v{vq2 if p else vq}, s[40:43], s58 offen{SC}")
        a(f"s_add_u32 s58, s58, 1024")
    stamp(a, 3)
    stamp_dump(a, 8, 40, 20, t0, t1)
    if MERGE:
        a(f"s_mov_b32 s19, {D_GEMM}"); a("s_mov_b32 s18, 143"); a.raw("s_branch PH2")
    a.label("GM_exit", flush=False)
    a.raw("s_endpgm")
```
